```python
import torch

def _softmax(x, axis=-1):
    return torch.softmax(x, dim=axis)
def _gelu(x):
    return torch.nn.functional.gelu(x, approximate="tanh")
def _silu(x):
    return torch.nn.functional.silu(x)
def _sigmoid(x):
    return torch.sigmoid(x)
def _layernorm(x, axis=-1, eps=1e-5):
    m = x.mean(dim=axis, keepdim=True)
    v = x.var(dim=axis, keepdim=True, unbiased=False)
    return (x - m) / torch.sqrt(v + eps)
def _scatter_add(tgt, idx, src, axis=0):
    return tgt.clone().index_add_(axis, idx, src)
def _segment_sum(src, seg, n):
    out = torch.zeros((n,) + src.shape[1:], dtype=src.dtype)
    return out.index_add_(0, seg, src)
def _pad(x, pw):
    flat = tuple(v for pair in reversed(pw) for v in pair)
    return torch.nn.functional.pad(x, flat)

kernel_name = 'standalone__kv_cache_quant_int4_int2_kv_with_per_channel_or_per_token_scales__decode'

def setup_inputs():

    _w = (lambda a: (lambda t: t.to(torch.bfloat16) if t.is_floating_point() else t)(torch.as_tensor(a)))
    B = 1
    Sq = 1
    Skv = 32768
    Hq = 32
    Hkv = 8
    Dh = 128
    bits = 4
    G = -1
    if G <= 0 or G >= Skv:
        G = max(1, Skv // 2)
    Skv = (Skv // G) * G
    ngk = Skv // G
    qmax = (1 << bits) - 1
    return {
        "q": _w((lambda *s: torch.randn(*s, dtype=torch.bfloat16) * 1.6)(B, Hq, Sq, Dh)),
        "qk": _w(torch.randint(0, qmax + 1, (B, Hkv, Skv, Dh)).to(torch.int32)),
        "qv": _w(torch.randint(0, qmax + 1, (B, Hkv, Skv, Dh)).to(torch.int32)),
        "k_scales": _w(torch.abs((lambda *s: torch.randn(*s, dtype=torch.bfloat16) * 1.6)(B, Hkv, ngk, Dh)) * 0.05 + 0.02),
        "k_zeros": _w((lambda *s: torch.randn(*s, dtype=torch.bfloat16) * 1.6)(B, Hkv, ngk, Dh) + float(qmax) / 2.0),
        "v_scales": _w(torch.abs((lambda *s: torch.randn(*s, dtype=torch.bfloat16) * 0.05)(B, Hkv, Skv, 1)) * 0.05 + 0.02),
        "v_zeros": _w((lambda *s: torch.randn(*s, dtype=torch.bfloat16) * 0.05)(B, Hkv, Skv, 1) + float(qmax) / 2.0),
    }

def reference(q, qk, qv, k_scales, k_zeros, v_scales, v_zeros):
    B, Hq, Sq, Dh = q.shape
    Hkv, Skv = qk.shape[1], qk.shape[2]
    ngk = k_scales.shape[2]
    G = Skv // ngk
    ks = (lambda x, n, axis: torch.repeat_interleave(x, n, dim=axis))(k_scales, G, axis=2)
    kz = (lambda x, n, axis: torch.repeat_interleave(x, n, dim=axis))(k_zeros, G, axis=2)
    k = ((lambda x, dt: x.to(dt))(qk, q.dtype) - kz) * ks
    v = ((lambda x, dt: x.to(dt))(qv, q.dtype) - v_zeros) * v_scales
    rep = Hq // Hkv
    if rep > 1:
        k = (lambda x, n, axis: torch.repeat_interleave(x, n, dim=axis))(k, rep, axis=1)
        v = (lambda x, n, axis: torch.repeat_interleave(x, n, dim=axis))(v, rep, axis=1)
    scale = float(Dh) ** -0.5
    logits = torch.einsum("bhqd,bhkd->bhqk", q, k) * scale
    p = _softmax(logits, axis=-1)
    o = torch.einsum("bhqk,bhkd->bhqd", p, v)
    return o
```

```python
import sys, math, struct, argparse

NAME = "standalone__kv_cache_quant_int4_int2_kv_with_per_channel_or_per_token_scales__decode"

HEADER = """; Kernarg layout for this problem (80 bytes, ptrs only, base s[0:1]):
"""


def f32bits(x):
    return struct.unpack("<I", struct.pack("<f", x))[0]


class G:
    def __init__(self):
        self.L = []
        self.issued = 0
        self.known_done = 0

    def e(self, s):
        self.L.append("    " + s)

    def lab(self, s):
        self.L.append(s + ":")

    def c(self, s):
        self.L.append("    ; " + s)

    def vm(self, s):
        self.e(s)
        i = self.issued
        self.issued += 1
        assert self.issued - self.known_done <= 63, "too many outstanding"
        return i

    def wait_vm(self, idx):
        if idx < self.known_done:
            return
        n = self.issued - 1 - idx
        assert 0 <= n <= 63
        self.e(f"s_waitcnt vmcnt({n})")
        self.known_done = idx + 1

    def nop(self, n):
        while n > 0:
            k = min(n, 16)
            self.e(f"s_nop {k-1}")
            n -= k


def vr(b, n=1):
    return f"v{b}" if n == 1 else f"v[{b}:{b+n-1}]"


def sr(b, n=1):
    return f"s{b}" if n == 1 else f"s[{b}:{b+n-1}]"


def gen(W=32, pol="", vs_at=24, stamp=False):
    g = G()
    e = g.e
    pol = (" " + pol) if pol else ""
    C = (128.0 ** -0.5) * math.log2(math.e)

    S_Q, S_QK, S_QV, S_KS, S_KZ, S_VS, S_VZ, S_OUT, S_DBG, S_WS = 4, 6, 8, 10, 12, 14, 16, 18, 20, 22
    R_K, R_V, R_VS, R_VZ, R_Q, R_KS, R_KZ, R_OUT, R_WS, R_DBG = 24, 28, 32, 36, 40, 44, 48, 52, 56, 60
    S_U = 64
    S_VSO = 68
    S_QO = 69
    S_KSO = 70
    S_KVH = 71
    S_WAVE = 72
    S_C = 73
    S_MASK = 74
    S_T0 = 75
    S_T1 = 76
    S_SPLIT = 77
    S_REC = 78
    S_EX = 80
    S_ODD = 82
    S_TS = 84
    NSGPR = 92

    V_TID, V_LANE, V_KO, V_VO, V_SO, V_WV, V_G, V_N, V_H = 0, 1, 2, 3, 4, 5, 6, 7, 8
    V_T = 9
    V_QB = 16
    V_PA = V_QB
    V_S = 32
    V_ACC = 32
    V_Z = 64
    V_NC = 68
    V_VS = 72
    V_VZ = 88
    V_PK = 104
    V_BUF = 120
    NV = V_BUF + 4 * W
    assert NV <= 256, NV

    L_QS = 0
    L_KZ = 2048
    L_ML = 2304
    L_O = 2560
    LDS = L_O + 8 * 4608

    WS_E = 64 * 8192

    e("s_cmp_ge_u32 s2, 256")
    e("s_cbranch_scc1 L_end")
    e(f"s_load_dwordx16 s[4:19], s[0:1], 0")
    e(f"s_load_dwordx4 s[20:23], s[0:1], 64")
    if stamp:
        e(f"s_memrealtime {sr(S_TS,2)}")
    e(f"v_and_b32 v{V_LANE}, 63, v0")
    e(f"v_lshrrev_b32 v{V_WV}, 6, v0")
    e(f"v_lshrrev_b32 v{V_G}, 4, v{V_LANE}")
    e(f"v_and_b32 v{V_N}, 15, v{V_LANE}")
    e(f"v_and_b32 v{V_H}, 3, v{V_LANE}")
    e(f"v_readfirstlane_b32 s{S_WAVE}, v{V_WV}")
    e(f"v_lshlrev_b32 v{V_KO}, 16, v{V_WV}")
    e(f"v_lshrrev_b32 v{V_T}, 2, v{V_N}")
    e(f"v_lshl_add_u32 v{V_KO}, v{V_T}, 12, v{V_KO}")
    e(f"v_lshl_add_u32 v{V_KO}, v{V_H}, 9, v{V_KO}")
    e(f"v_lshl_add_u32 v{V_KO}, v{V_G}, 4, v{V_KO}")
    e(f"v_lshlrev_b32 v{V_VO}, 16, v{V_WV}")
    e(f"v_lshl_add_u32 v{V_VO}, v{V_G}, 12, v{V_VO}")
    e(f"v_lshl_add_u32 v{V_VO}, v{V_N}, 4, v{V_VO}")
    e(f"v_lshlrev_b32 v{V_SO}, 8, v{V_WV}")
    e(f"v_lshl_add_u32 v{V_SO}, v{V_G}, 4, v{V_SO}")
    e(f"v_lshlrev_b32 v{V_T}, 1, v0")
    e(f"v_and_b32 v{V_T+1}, 0xfe, v{V_T}")
    e(f"s_lshl_b32 s{S_U}, s2, 19")
    for u in range(1, 4):
        e(f"s_add_u32 s{S_U+u}, s{S_U}, {u*16384}")
    e(f"s_lshl_b32 s{S_VSO}, s2, 11")
    e(f"s_lshr_b32 s{S_KVH}, s2, 5")
    e(f"s_and_b32 s{S_SPLIT}, s2, 31")
    e(f"s_lshl_b32 s{S_QO}, s{S_KVH}, 10")
    e(f"s_lshr_b32 s{S_KSO}, s2, 4")
    e(f"s_lshl_b32 s{S_KSO}, s{S_KSO}, 8")
    e(f"s_mov_b32 s{S_C}, 0x{f32bits(C):08x}")
    e(f"s_mov_b32 s{S_MASK}, 0xffff0000")
    for r, n in ((R_K, 1 << 27), (R_V, 1 << 27), (R_VS, 1 << 19), (R_VZ, 1 << 19), (R_Q, 8192),
                 (R_KS, 4096), (R_KZ, 4096), (R_OUT, 8192), (R_WS, 1 << 29), (R_DBG, 256)):
        e(f"s_mov_b32 s{r+2}, 0x{n:x}")
        e(f"s_mov_b32 s{r+3}, 0x00020000")
    e("s_waitcnt lgkmcnt(0)")
    for r, p in ((R_Q, S_Q), (R_KS, S_KS), (R_KZ, S_KZ), (R_K, S_QK)):
        e(f"s_mov_b32 s{r}, s{p}")
        e(f"s_mov_b32 s{r+1}, s{p+1}")

    VQ, VKS, VKZ = V_T + 2, V_T + 3, V_T + 4
    g.vm(f"buffer_load_ushort v{VQ}, v{V_T}, {sr(R_Q,4)}, s{S_QO} offen")
    g.vm(f"buffer_load_ushort v{VKS}, v{V_T+1}, {sr(R_KS,4)}, s{S_KSO} offen")
    i_kz = g.vm(f"buffer_load_ushort v{VKZ}, v{V_T+1}, {sr(R_KZ,4)}, s{S_KSO} offen")

    seq = []
    for u in range(4):
        for tl in range(2):
            for j in range(8):
                seq.append(("K", u, tl * 2048 + j * 64))
    for u in range(4):
        for hf in range(2):
            for i in range(8):
                seq.append(("V", u, i * 512 + hf * 256))
    ld_idx = {}
    state = {"next": 0, "vs_idx": None}

    def issue_next():
        n = state["next"]
        if n >= len(seq):
            return False
        if n == vs_at:
            for u in range(4):
                g.vm(f"buffer_load_dwordx4 {vr(V_VS+4*u,4)}, v{V_SO}, {sr(R_VS,4)}, s{S_VSO} offen offset:{u*64}")
            for u in range(4):
                state["vs_idx"] = g.vm(f"buffer_load_dwordx4 {vr(V_VZ+4*u,4)}, v{V_SO}, {sr(R_VZ,4)}, s{S_VSO} offen offset:{u*64}")
        kind, u, off = seq[n]
        b = V_BUF + 4 * (n % W)
        if kind == "K":
            ld_idx[n] = g.vm(f"buffer_load_dwordx4 {vr(b,4)}, v{V_KO}, {sr(R_K,4)}, s{S_U+u} offen offset:{off}{pol}")
        else:
            ld_idx[n] = g.vm(f"buffer_load_dwordx4 {vr(b,4)}, v{V_VO}, {sr(R_V,4)}, s{S_U+u} offen offset:{off}{pol}")
        state["next"] = n + 1
        return True

    first = min(W, 16)
    for _ in range(first):
        issue_next()
    for r, p in ((R_V, S_QV), (R_VS, S_VS), (R_VZ, S_VZ), (R_OUT, S_OUT), (R_WS, S_WS), (R_DBG, S_DBG)):
        e(f"s_mov_b32 s{r}, s{p}")
        e(f"s_mov_b32 s{r+1}, s{p+1}")
    for _ in range(W - first):
        issue_next()

    e(f"v_and_b32 v{V_T+5}, 4, v{V_LANE}")
    e(f"v_cmp_ne_u32 {sr(S_ODD,2)}, 0, v{V_T+5}")

    g.wait_vm(i_kz)
    e(f"v_lshlrev_b32 v{VQ}, 16, v{VQ}")
    e(f"v_lshlrev_b32 v{VKS}, 16, v{VKS}")
    e(f"v_mul_f32 v{VQ}, v{VQ}, v{VKS}")
    e(f"v_and_b32 v{VKS}, s{S_MASK}, v{VQ}")
    e(f"v_sub_f32 v{VKS}, v{VQ}, v{VKS}")
    e(f"ds_write_b16_d16_hi v{V_T}, v{VQ} offset:{L_QS}")
    e(f"ds_write_b16_d16_hi v{V_T}, v{VKS} offset:{L_QS+1024}")
    e(f"ds_write_b16 v{V_T+1}, v{VKZ} offset:{L_KZ}")
    e(f"v_lshlrev_b32 v{V_T+5}, 8, v{V_T+5}")
    e(f"v_lshl_add_u32 v{V_T+5}, v{V_H}, 8, v{V_T+5}")
    e(f"v_lshlrev_b32 v{V_T+6}, 3, v{V_G}")
    e(f"v_add_u32 v{V_T+5}, v{V_T+5}, v{V_T+6}")
    e("s_waitcnt lgkmcnt(0)")
    e("s_barrier")
    for j in range(8):
        e(f"ds_read_b64 {vr(V_QB+2*j,2)}, v{V_T+5} offset:{L_QS+32*j}")
    for j in range(8):
        e(f"ds_read_b64 {vr(V_PK+2*j,2)}, v{V_T+6} offset:{L_KZ+32*j}")
    e("s_waitcnt lgkmcnt(0)")
    for c in range(4):
        e(f"v_mfma_f32_16x16x32_bf16 {vr(V_NC,4)}, {vr(V_PK+4*c,4)}, {vr(V_QB+4*c,4)}, {'0' if c == 0 else vr(V_NC,4)}")
    g.nop(10)
    for r in range(4):
        e(f"v_xor_b32 v{V_NC+r}, 0x80000000, v{V_NC+r}")

    for p in range(32):
        T, c = p >> 2, p & 3
        n0, n1 = 2 * p, 2 * p + 1
        b0, b1 = V_BUF + 4 * (n0 % W), V_BUF + 4 * (n1 % W)
        pk = V_PK + 4 * (p & 3)
        g.wait_vm(ld_idx[n0])
        for k in range(4):
            e(f"v_cvt_f32_i32 v{b0+k}, v{b0+k}")
        g.wait_vm(ld_idx[n1])
        for k in range(4):
            e(f"v_cvt_f32_i32 v{b1+k}, v{b1+k}")
        e(f"v_cvt_pk_bf16_f32 v{pk}, v{b0}, v{b0+1}")
        e(f"v_cvt_pk_bf16_f32 v{pk+1}, v{b0+2}, v{b0+3}")
        e(f"v_cvt_pk_bf16_f32 v{pk+2}, v{b1}, v{b1+1}")
        e(f"v_cvt_pk_bf16_f32 v{pk+3}, v{b1+2}, v{b1+3}")
        k = 0
        k += issue_next()
        k += issue_next()
        g.nop(2 - k)
        e(f"v_mfma_f32_16x16x32_bf16 {vr(V_S+4*T,4)}, {vr(pk,4)}, {vr(V_QB+4*c,4)}, {vr(V_NC,4) if c == 0 else vr(V_S+4*T,4)}")

    g.c("softmax")
    g.nop(10)
    for x in range(32):
        e(f"v_add_f32_dpp v{V_S+x}, v{V_S+x}, v{V_S+x} row_ror:4 row_mask:0xf bank_mask:0xf")
    VM, VM2, VL, VX, VY = V_T, V_T + 1, V_T + 2, V_T + 3, V_T + 4
    e(f"v_max3_f32 v{VM}, v{V_S}, v{V_S+1}, v{V_S+2}")
    for x in range(3, 31, 2):
        e(f"v_max3_f32 v{VM}, v{VM}, v{V_S+x}, v{V_S+x+1}")
    e(f"v_max_f32 v{VM}, v{VM}, v{V_S+31}")
    e(f"v_mov_b32 v{VM2}, v{VM}")
    g.nop(2)
    e(f"v_permlane16_swap_b32 v{VM}, v{VM2}")
    e(f"v_max_f32 v{VM}, v{VM}, v{VM2}")
    e(f"v_mov_b32 v{VM2}, v{VM}")
    g.nop(2)
    e(f"v_permlane32_swap_b32 v{VM}, v{VM2}")
    e(f"v_max_f32 v{VM}, v{VM}, v{VM2}")
    e(f"v_mul_f32 v{VM}, s{S_C}, v{VM}")
    for x in range(32):
        e(f"v_fma_f32 v{V_S+x}, v{V_S+x}, s{S_C}, -v{VM}")
    for x in range(32):
        e(f"v_exp_f32 v{V_S+x}, v{V_S+x}")
    e(f"v_add_f32 v{VL}, v{V_S}, v{V_S+1}")
    e(f"v_add_f32 v{VX}, v{V_S+2}, v{V_S+3}")
    for x in range(4, 32, 2):
        e(f"v_add_f32 v{VL}, v{VL}, v{V_S+x}")
        e(f"v_add_f32 v{VX}, v{VX}, v{V_S+x+1}")
    e(f"v_add_f32 v{VL}, v{VL}, v{VX}")
    e(f"v_mov_b32 v{VX}, v{VL}")
    g.nop(2)
    e(f"v_permlane16_swap_b32 v{VL}, v{VX}")
    e(f"v_add_f32 v{VL}, v{VL}, v{VX}")
    e(f"v_mov_b32 v{VX}, v{VL}")
    g.nop(2)
    e(f"v_permlane32_swap_b32 v{VL}, v{VX}")
    e(f"v_add_f32 v{VM2}, v{VL}, v{VX}")
    assert VM % 2 == 1 or True
    VP = V_PK
    e(f"v_mov_b32 v{VP}, v{VM}")
    e(f"v_mov_b32 v{VP+1}, v{VM2}")
    e(f"v_lshlrev_b32 v{VX}, 5, v{V_WV}")
    e(f"v_lshl_add_u32 v{VX}, v{V_H}, 3, v{VX}")
    e("s_mov_b64 exec, 0xf")
    e(f"ds_write_b64 v{VX}, {vr(VP,2)} offset:{L_ML}")
    e("s_mov_b64 exec, -1")
    g.wait_vm(state["vs_idx"])
    for u in range(4):
        for q in range(4):
            a, b = V_S + 8 * u + 2 * q, V_S + 8 * u + 2 * q + 1
            src = V_VS + 4 * u + q
            e(f"v_lshlrev_b32 v{VX}, 16, v{src}")
            e(f"v_and_b32 v{VY}, s{S_MASK}, v{src}")
            e(f"v_mul_f32 v{a}, v{a}, v{VX}")
            e(f"v_mul_f32 v{b}, v{b}, v{VY}")
            e(f"v_and_b32 v{VX}, s{S_MASK}, v{a}")
            e(f"v_and_b32 v{VY}, s{S_MASK}, v{b}")
            e(f"v_sub_f32 v{a}, v{a}, v{VX}")
            e(f"v_sub_f32 v{b}, v{b}, v{VY}")
            e(f"v_cndmask_b32 v{a}, v{VX}, v{a}, {sr(S_ODD,2)}")
            e(f"v_cndmask_b32 v{b}, v{VY}, v{b}, {sr(S_ODD,2)}")
            e(f"v_cvt_pk_bf16_f32 v{V_PA+4*u+q}, v{a}, v{b}")
    g.nop(2)
    for u in range(4):
        e(f"v_mfma_f32_16x16x32_bf16 {vr(V_Z,4)}, {vr(V_PA+4*u,4)}, {vr(V_VZ+4*u,4)}, {'0' if u == 0 else vr(V_Z,4)}")

    g.c("V phase")
    for p in range(32):
        u, hf, q = p >> 3, (p >> 2) & 1, p & 3
        n0, n1 = 64 + 2 * p, 64 + 2 * p + 1
        b0, b1 = V_BUF + 4 * (n0 % W), V_BUF + 4 * (n1 % W)
        g.wait_vm(ld_idx[n0])
        for k in range(4):
            e(f"v_cvt_f32_i32 v{b0+k}, v{b0+k}")
        g.wait_vm(ld_idx[n1])
        for k in range(4):
            e(f"v_cvt_f32_i32 v{b1+k}, v{b1+k}")
        for j in range(4):
            e(f"v_cvt_pk_bf16_f32 v{V_PK+4*j+q}, v{b0+j}, v{b1+j}")
        k = 0
        k += issue_next()
        k += issue_next()
        if q == 3:
            g.nop(2 - k)
            for j in range(4):
                acc = V_ACC + 4 * (hf * 4 + j)
                e(f"v_mfma_f32_16x16x32_bf16 {vr(acc,4)}, {vr(V_PA+4*u,4)}, {vr(V_PK+4*j,4)}, {'0' if u == 0 else vr(acc,4)}")

    g.c("WG combine")
    if stamp:
        e(f"s_memrealtime {sr(S_TS+2,2)}")
    VA, VB = V_T, V_T + 1
    e(f"v_mul_u32_u24 v{VA}, 4608, v{V_WV}")
    e(f"v_lshl_add_u32 v{VA}, v{V_LANE}, 4, v{VA}")
    e(f"v_lshrrev_b32 v{VX}, 2, v{V_WV}")
    e(f"v_lshl_add_u32 v{VX}, v{VX}, 2, v{V_G}")
    e(f"v_mul_u32_u24 v{VB}, 576, v{VX}")
    e(f"v_and_b32 v{VX}, 3, v{V_WV}")
    e(f"v_lshl_add_u32 v{VB}, v{VX}, 6, v{VB}")
    e(f"v_lshl_add_u32 v{VB}, v{V_N}, 2, v{VB}")
    e(f"v_lshlrev_b32 v{VY}, 3, v{V_H}")
    g.nop(4)
    for blk in range(8):
        for r in range(4):
            e(f"v_sub_f32 v{V_ACC+4*blk+r}, v{V_ACC+4*blk+r}, v{V_Z+r}")
    e("s_mov_b32 exec_hi, 0")
    for blk in range(8):
        e(f"ds_write_b128 v{VA}, {vr(V_ACC+4*blk,4)} offset:{L_O+blk*576}")
    e("s_mov_b64 exec, -1")
    e("s_waitcnt lgkmcnt(0)")
    e("s_barrier")
    RB = V_BUF
    MB = V_BUF + 16
    assert L_O % 256 == 0
    for w in range(8):
        e(f"ds_read_b64 {vr(MB+2*w,2)}, v{VY} offset:{L_ML+w*32}")
    for w in range(8):
        o0 = L_O // 256 + w * 18
        e(f"ds_read2st64_b32 {vr(RB+2*w,2)}, v{VB} offset0:{o0} offset1:{o0+1}")
    e(f"s_lshl_b32 s{S_T0}, s{S_KVH}, 3")
    e(f"s_add_u32 s{S_T0}, s{S_T0}, s{S_WAVE}")
    e(f"s_lshl_b32 s{S_REC}, s{S_T0}, 13")
    e(f"s_lshl_b32 s{S_T1}, s{S_SPLIT}, 8")
    e(f"s_add_u32 s{S_U}, s{S_REC}, s{S_T1}")
    e(f"s_lshl_b32 s{S_REC+1}, s{S_T0}, 9")
    e(f"s_add_u32 s{S_REC+1}, s{S_REC+1}, {WS_E}")
    e(f"s_lshl_b32 s{S_T1}, s{S_SPLIT}, 4")
    e(f"s_add_u32 s{S_U+1}, s{S_REC+1}, s{S_T1}")
    e(f"s_lshl_b32 s{S_U+2}, s{S_T0}, 2")
    e(f"v_lshlrev_b32 v{VA}, 2, v{V_LANE}")
    e("s_waitcnt lgkmcnt(8)")
    VMX, VO, VLs = V_T + 2, V_T + 3, V_T + 4
    e(f"v_max3_f32 v{VMX}, v{MB}, v{MB+2}, v{MB+4}")
    e(f"v_max3_f32 v{VMX}, v{VMX}, v{MB+6}, v{MB+8}")
    e(f"v_max3_f32 v{VMX}, v{VMX}, v{MB+10}, v{MB+12}")
    e(f"v_max_f32 v{VMX}, v{VMX}, v{MB+14}")
    for w in range(8):
        e(f"v_sub_f32 v{MB+2*w}, v{MB+2*w}, v{VMX}")
    for w in range(8):
        e(f"v_exp_f32 v{MB+2*w}, v{MB+2*w}")
    g.nop(1)
    e(f"v_mul_f32 v{VLs}, v{MB}, v{MB+1}")
    for w in range(1, 8):
        e(f"v_fmac_f32 v{VLs}, v{MB+2*w}, v{MB+2*w+1}")
    e("s_waitcnt lgkmcnt(0)")
    for w in range(8):
        e(f"v_add_f32 v{RB+2*w}, v{RB+2*w}, v{RB+2*w+1}")
    e(f"v_rcp_f32 v{VB}, v{VLs}")
    e(f"v_log_f32 v{VLs}, v{VLs}")
    e(f"v_mul_f32 v{VO}, v{MB}, v{RB}")
    for w in range(1, 8):
        e(f"v_fmac_f32 v{VO}, v{MB+2*w}, v{RB+2*w}")
    X = V_BUF + 32
    e(f"v_mul_f32 v{X}, v{VO}, v{VB}")
    e(f"v_add_f32 v{X+4}, v{VMX}, v{VLs}")
    g.nop(2)
    for k in range(1, 4):
        e(f"v_mov_b32_dpp v{X+k}, v{X} quad_perm:[{k},{k},{k},{k}] row_mask:0xf bank_mask:0xf")
    for k in range(1, 4):
        e(f"v_mov_b32_dpp v{X+4+k}, v{X+4} quad_perm:[{k},{k},{k},{k}] row_mask:0xf bank_mask:0xf")
    e(f"v_mov_b32 v{VB}, 1")
    e(f"s_mov_b32 s{S_T0}, 0x11111111")
    e(f"s_mov_b32 exec_lo, s{S_T0}")
    e(f"s_mov_b32 exec_hi, s{S_T0}")
    g.vm(f"buffer_store_dwordx4 {vr(X,4)}, v{VA}, {sr(R_WS,4)}, s{S_U} offen sc1")
    e("s_mov_b64 exec, 1")
    g.vm(f"buffer_store_dwordx4 {vr(X+4,4)}, v{VA}, {sr(R_WS,4)}, s{S_U+1} offen sc1")
    e("s_waitcnt vmcnt(0)")
    g.known_done = g.issued
    g.vm(f"buffer_atomic_add v{VB}, v{VA}, {sr(R_DBG,4)}, s{S_U+2} offen sc0")
    e("s_waitcnt vmcnt(0)")
    g.known_done = g.issued
    e(f"v_readfirstlane_b32 s{S_T0}, v{VB}")
    e("s_mov_b64 exec, -1")
    g.nop(2)
    if stamp:
        e(f"s_memrealtime {sr(S_TS+4,2)}")
        e("s_waitcnt lgkmcnt(0)")
        e(f"s_lshl_b32 s{S_T1}, s2, 3")
        e(f"s_add_u32 s{S_T1}, s{S_T1}, s{S_WAVE}")
        e(f"s_lshl_b32 s{S_T1}, s{S_T1}, 5")
        e(f"s_add_u32 s{S_T1}, s{S_T1}, 0x100000")
        e(f"s_getreg_b32 s{S_TS+6}, hwreg(HW_REG_XCC_ID)")
        for k in range(4):
            e(f"v_mov_b32 v{X+k}, s{S_TS+2*k}")
        e("s_mov_b64 exec, 1")
        g.vm(f"buffer_store_dwordx4 {vr(X,4)}, v{VA}, {sr(R_WS,4)}, s{S_T1} offen")
        e("s_mov_b64 exec, -1")
    e(f"s_cmp_lg_u32 s{S_T0}, 31")
    e("s_cbranch_scc1 L_end")

    g.c("final combine")
    OB = V_BUF
    EB = V_BUF + 32
    e(f"v_lshlrev_b32 v{VA}, 4, v{V_LANE}")
    e(f"v_lshlrev_b32 v{VB}, 4, v{V_G}")
    ie = []
    for k in range(8):
        ie.append(g.vm(f"buffer_load_dwordx4 {vr(EB+4*k,4)}, v{VB}, {sr(R_WS,4)}, s{S_REC+1} offen offset:{k*64} sc1"))
    io = []
    e(f"s_add_u32 s{S_T1}, s{S_REC}, 4096")
    for k in range(8):
        so = S_REC if k < 4 else S_T1
        io.append(g.vm(f"buffer_load_dwordx4 {vr(OB+4*k,4)}, v{VA}, {sr(R_WS,4)}, s{so} offen offset:{(k&3)*1024} sc1"))
    VOUT = V_T + 5
    e(f"v_lshrrev_b32 v{VX}, 2, v{V_N}")
    e(f"v_lshl_add_u32 v{VX}, v{V_H}, 2, v{VX}")
    e(f"v_lshlrev_b32 v{VOUT}, 1, v{VX}")
    e(f"s_lshl_b32 s{S_T0}, s{S_WAVE}, 5")
    e(f"s_add_u32 s{S_T0}, s{S_T0}, s{S_QO}")
    g.wait_vm(ie[-1])
    MX = V_S
    M2 = V_S + 4
    for h in range(4):
        e(f"v_max3_f32 v{MX+h}, v{EB+h}, v{EB+4+h}, v{EB+8+h}")
        e(f"v_max3_f32 v{MX+h}, v{MX+h}, v{EB+12+h}, v{EB+16+h}")
        e(f"v_max3_f32 v{MX+h}, v{MX+h}, v{EB+20+h}, v{EB+24+h}")
        e(f"v_max_f32 v{MX+h}, v{MX+h}, v{EB+28+h}")
    for h in range(4):
        e(f"v_mov_b32 v{M2+h}, v{MX+h}")
    g.nop(1)
    for h in range(4):
        e(f"v_permlane16_swap_b32 v{MX+h}, v{M2+h}")
    for h in range(4):
        e(f"v_max_f32 v{MX+h}, v{MX+h}, v{M2+h}")
    for h in range(4):
        e(f"v_mov_b32 v{M2+h}, v{MX+h}")
    g.nop(1)
    for h in range(4):
        e(f"v_permlane32_swap_b32 v{MX+h}, v{M2+h}")
    for h in range(4):
        e(f"v_max_f32 v{MX+h}, v{MX+h}, v{M2+h}")
    for k in range(8):
        for h in range(4):
            e(f"v_sub_f32 v{EB+4*k+h}, v{EB+4*k+h}, v{MX+h}")
    for k in range(32):
        e(f"v_exp_f32 v{EB+k}, v{EB+k}")
    DN = V_S + 8
    NU = V_S + 12
    g.nop(1)
    for h in range(4):
        e(f"v_add_f32 v{DN+h}, v{EB+h}, v{EB+4+h}")
    for k in range(2, 8):
        for h in range(4):
            e(f"v_add_f32 v{DN+h}, v{DN+h}, v{EB+4*k+h}")
    for k in range(8):
        g.wait_vm(io[k])
        for h in range(4):
            if k == 0:
                e(f"v_mul_f32 v{NU+h}, v{EB+h}, v{OB+h}")
            else:
                e(f"v_fmac_f32 v{NU+h}, v{EB+4*k+h}, v{OB+4*k+h}")
    g.nop(2)
    for base in (NU, DN):
        e(f"v_permlane16_swap_b32 v{base}, v{base+1}")
        e(f"v_permlane16_swap_b32 v{base+2}, v{base+3}")
    for base in (NU, DN):
        e(f"v_add_f32 v{base}, v{base}, v{base+1}")
        e(f"v_add_f32 v{base+2}, v{base+2}, v{base+3}")
    g.nop(2)
    for base in (NU, DN):
        e(f"v_permlane32_swap_b32 v{base}, v{base+2}")
    for base in (NU, DN):
        e(f"v_add_f32 v{base}, v{base}, v{base+2}")
    e(f"v_rcp_f32 v{DN}, v{DN}")
    e(f"v_lshl_add_u32 v{VOUT}, v{V_G}, 8, v{VOUT}")
    e(f"v_mul_f32 v{NU}, v{NU}, v{DN}")
    e(f"v_cvt_pk_bf16_f32 v{NU}, v{NU}, v{NU}")
    g.vm(f"buffer_store_short v{NU}, v{VOUT}, {sr(R_OUT,4)}, s{S_T0} offen")
    g.lab("L_end")
    e("s_endpgm")

    body = "\n".join(g.L)
    nv = (NV + 7) // 8 * 8
    text = HEADER + f"; @launch grid=(256,1,1) block=(512,1,1) lds={LDS}\n"
    text += f""".amdgcn_target "amdgcn-amd-amdhsa--gfx950"
.text
.globl {NAME}_kernel
.p2align 8
.type {NAME}_kernel,@function
{NAME}_kernel:
{body}
.section .rodata,"a"
.p2align 6
.amdhsa_kernel {NAME}_kernel
  .amdhsa_next_free_vgpr {nv}
  .amdhsa_next_free_sgpr {NSGPR}
  .amdhsa_accum_offset {nv}
  .amdhsa_group_segment_fixed_size 0
  .amdhsa_kernarg_size 80
  .amdhsa_user_sgpr_count 2
  .amdhsa_user_sgpr_kernarg_segment_ptr 1
  .amdhsa_system_sgpr_workgroup_id_x 1
  .amdhsa_float_denorm_mode_32 3
.end_amdhsa_kernel
"""
    return text


if __name__ == "__main__":
    ap = argparse.ArgumentParser()
    ap.add_argument("-o", default=f"cdna_kernels/{NAME}.s")
    ap.add_argument("--W", type=int, default=32)
    ap.add_argument("--pol", default="")
    ap.add_argument("--vs_at", type=int, default=24)
    ap.add_argument("--stamp", action="store_true")
    a = ap.parse_args()
    open(a.o, "w").write(gen(W=a.W, pol=a.pol, vs_at=a.vs_at, stamp=a.stamp))
    print("wrote", a.o)
```

```python
import sys, math, struct, argparse

NAME = "standalone__kv_cache_quant_int4_int2_kv_with_per_channel_or_per_token_scales__decode"

HEADER = """; Kernarg layout for this problem (80 bytes, ptrs only, base s[0:1]):
"""


def f32bits(x):
    return struct.unpack("<I", struct.pack("<f", x))[0]


class G:
    def __init__(self):
        self.L = []
        self.issued = 0
        self.known_done = 0

    def e(self, s):
        self.L.append("    " + s)

    def lab(self, s):
        self.L.append(s + ":")

    def c(self, s):
        self.L.append("    ; " + s)

    def vm(self, s):
        self.e(s)
        i = self.issued
        self.issued += 1
        assert self.issued - self.known_done <= 63, "too many outstanding"
        return i

    def wait_vm(self, idx):
        if idx < self.known_done:
            return
        n = self.issued - 1 - idx
        assert 0 <= n <= 63
        self.e(f"s_waitcnt vmcnt({n})")
        self.known_done = idx + 1

    def nop(self, n):
        while n > 0:
            k = min(n, 16)
            self.e(f"s_nop {k-1}")
            n -= k


def vr(b, n=1):
    return f"v{b}" if n == 1 else f"v[{b}:{b+n-1}]"


def sr(b, n=1):
    return f"s{b}" if n == 1 else f"s[{b}:{b+n-1}]"


def gen(W=32, pol="", vs_at=24, stamp=False, force_nv=256, noatomic=False, mode="wave", polv=None):
    g = G()
    e = g.e
    if polv is None: polv = pol
    pol = (" " + pol) if pol else ""
    polv = (" " + polv) if polv else ""
    C = (128.0 ** -0.5) * math.log2(math.e)

    S_Q, S_QK, S_QV, S_KS, S_KZ, S_VS, S_VZ, S_OUT, S_DBG, S_WS = 4, 6, 8, 10, 12, 14, 16, 18, 20, 22
    R_K, R_V, R_VS, R_VZ, R_Q, R_KS, R_KZ, R_OUT, R_WS, R_DBG = 24, 28, 32, 36, 40, 44, 48, 52, 56, 60
    S_U = 64
    S_VSO = 68
    S_QO = 69
    S_KSO = 70
    S_KVH = 71
    S_WAVE = 72
    S_C = 73
    S_MASK = 74
    S_T0 = 75
    S_T1 = 76
    S_SPLIT = 77
    S_REC = 78
    S_EX = 80
    S_ODD = 82
    S_TS = 84
    NSGPR = 92

    V_TID, V_LANE, V_KO, V_VO, V_SO, V_WV, V_G, V_N, V_H = 0, 1, 2, 3, 4, 5, 6, 7, 8
    V_T = 9
    V_QB = 16
    V_PA = V_QB
    V_S = 32
    V_ACC = 32
    V_Z = 64
    V_NC = 68
    V_VS = 72
    V_VZ = 88
    V_PK = 104
    V_BUF = 120
    NV = V_BUF + max(4 * W, 64)
    if force_nv: NV = force_nv
    assert NV <= 256, NV

    L_QS = 0
    L_KZ = 2048
    L_ML = 2304
    L_O = 2560
    LDS = L_O + 8 * 4608

    WS_E = 64 * 8192

    e("s_cmp_ge_u32 s2, 256")
    e("s_cbranch_scc1 L_end")
    e(f"s_load_dwordx16 s[4:19], s[0:1], 0")
    e(f"s_load_dwordx4 s[20:23], s[0:1], 64")
    if stamp:
        e(f"s_memrealtime {sr(S_TS,2)}")
    e(f"v_and_b32 v{V_LANE}, 63, v0")
    e(f"v_lshrrev_b32 v{V_WV}, 6, v0")
    e(f"v_lshrrev_b32 v{V_G}, 4, v{V_LANE}")
    e(f"v_and_b32 v{V_N}, 15, v{V_LANE}")
    e(f"v_and_b32 v{V_H}, 3, v{V_LANE}")
    e(f"v_readfirstlane_b32 s{S_WAVE}, v{V_WV}")
    e(f"v_lshlrev_b32 v{V_KO}, 16, v{V_WV}")
    e(f"v_lshrrev_b32 v{V_T}, 2, v{V_N}")
    e(f"v_lshl_add_u32 v{V_KO}, v{V_T}, 12, v{V_KO}")
    e(f"v_lshl_add_u32 v{V_KO}, v{V_H}, 9, v{V_KO}")
    e(f"v_lshl_add_u32 v{V_KO}, v{V_G}, 4, v{V_KO}")
    e(f"v_lshlrev_b32 v{V_VO}, 16, v{V_WV}")
    e(f"v_lshl_add_u32 v{V_VO}, v{V_G}, 12, v{V_VO}")
    e(f"v_lshl_add_u32 v{V_VO}, v{V_N}, 4, v{V_VO}")
    e(f"v_lshlrev_b32 v{V_SO}, 8, v{V_WV}")
    e(f"v_lshl_add_u32 v{V_SO}, v{V_G}, 4, v{V_SO}")
    e(f"v_lshlrev_b32 v{V_T}, 1, v0")
    e(f"v_and_b32 v{V_T+1}, 0xfe, v{V_T}")
    e(f"s_lshl_b32 s{S_U}, s2, 19")
    for u in range(1, 4):
        e(f"s_add_u32 s{S_U+u}, s{S_U}, {u*16384}")
    e(f"s_lshl_b32 s{S_VSO}, s2, 11")
    e(f"s_lshr_b32 s{S_KVH}, s2, 5")
    e(f"s_and_b32 s{S_SPLIT}, s2, 31")
    e(f"s_lshl_b32 s{S_QO}, s{S_KVH}, 10")
    e(f"s_lshr_b32 s{S_KSO}, s2, 4")
    e(f"s_lshl_b32 s{S_KSO}, s{S_KSO}, 8")
    e(f"s_mov_b32 s{S_C}, 0x{f32bits(C):08x}")
    e(f"s_mov_b32 s{S_MASK}, 0xffff0000")
    for r, n in ((R_K, 1 << 27), (R_V, 1 << 27), (R_VS, 1 << 19), (R_VZ, 1 << 19), (R_Q, 8192),
                 (R_KS, 4096), (R_KZ, 4096), (R_OUT, 8192), (R_WS, 1 << 29), (R_DBG, 256)):
        e(f"s_mov_b32 s{r+2}, 0x{n:x}")
        e(f"s_mov_b32 s{r+3}, 0x00020000")
    e("s_waitcnt lgkmcnt(0)")
    for r, p in ((R_Q, S_Q), (R_KS, S_KS), (R_KZ, S_KZ), (R_K, S_QK)):
        e(f"s_mov_b32 s{r}, s{p}")
        e(f"s_mov_b32 s{r+1}, s{p+1}")

    VQ, VKS, VKZ = V_T + 2, V_T + 3, V_T + 4
    g.vm(f"buffer_load_ushort v{VQ}, v{V_T}, {sr(R_Q,4)}, s{S_QO} offen")
    g.vm(f"buffer_load_ushort v{VKS}, v{V_T+1}, {sr(R_KS,4)}, s{S_KSO} offen")
    i_kz = g.vm(f"buffer_load_ushort v{VKZ}, v{V_T+1}, {sr(R_KZ,4)}, s{S_KSO} offen")

    seq = []
    for u in range(4):
        for tl in range(2):
            for j in range(8):
                seq.append(("K", u, tl * 2048 + j * 64))
    for u in range(4):
        for hf in range(2):
            for i in range(8):
                seq.append(("V", u, i * 512 + hf * 256))
    ld_idx = {}
    state = {"next": 0, "vs_idx": None}

    def issue_next():
        n = state["next"]
        if n >= len(seq):
            return False
        if n == vs_at:
            for u in range(4):
                g.vm(f"buffer_load_dwordx4 {vr(V_VS+4*u,4)}, v{V_SO}, {sr(R_VS,4)}, s{S_VSO} offen offset:{u*64}")
            for u in range(4):
                state["vs_idx"] = g.vm(f"buffer_load_dwordx4 {vr(V_VZ+4*u,4)}, v{V_SO}, {sr(R_VZ,4)}, s{S_VSO} offen offset:{u*64}")
        kind, u, off = seq[n]
        b = V_BUF + 4 * (n % W)
        if kind == "K":
            ld_idx[n] = g.vm(f"buffer_load_dwordx4 {vr(b,4)}, v{V_KO}, {sr(R_K,4)}, s{S_U+u} offen offset:{off}{pol}")
        else:
            ld_idx[n] = g.vm(f"buffer_load_dwordx4 {vr(b,4)}, v{V_VO}, {sr(R_V,4)}, s{S_U+u} offen offset:{off}{polv}")
        state["next"] = n + 1
        return True

    first = min(W, 16, vs_at)
    for _ in range(first):
        issue_next()
    for r, p in ((R_V, S_QV), (R_VS, S_VS), (R_VZ, S_VZ), (R_OUT, S_OUT), (R_WS, S_WS), (R_DBG, S_DBG)):
        e(f"s_mov_b32 s{r}, s{p}")
        e(f"s_mov_b32 s{r+1}, s{p+1}")
    for _ in range(W - first):
        issue_next()

    e(f"v_and_b32 v{V_T+5}, 4, v{V_LANE}")
    e(f"v_cmp_ne_u32 {sr(S_ODD,2)}, 0, v{V_T+5}")

    g.wait_vm(i_kz)
    e(f"v_lshlrev_b32 v{VQ}, 16, v{VQ}")
    e(f"v_lshlrev_b32 v{VKS}, 16, v{VKS}")
    e(f"v_mul_f32 v{VQ}, v{VQ}, v{VKS}")
    e(f"v_and_b32 v{VKS}, s{S_MASK}, v{VQ}")
    e(f"v_sub_f32 v{VKS}, v{VQ}, v{VKS}")
    e(f"ds_write_b16_d16_hi v{V_T}, v{VQ} offset:{L_QS}")
    e(f"ds_write_b16_d16_hi v{V_T}, v{VKS} offset:{L_QS+1024}")
    e(f"ds_write_b16 v{V_T+1}, v{VKZ} offset:{L_KZ}")
    e(f"v_lshlrev_b32 v{V_T+5}, 8, v{V_T+5}")
    e(f"v_lshl_add_u32 v{V_T+5}, v{V_H}, 8, v{V_T+5}")
    e(f"v_lshlrev_b32 v{V_T+6}, 3, v{V_G}")
    e(f"v_add_u32 v{V_T+5}, v{V_T+5}, v{V_T+6}")
    e("s_waitcnt lgkmcnt(0)")
    e("s_barrier")
    for j in range(8):
        e(f"ds_read_b64 {vr(V_QB+2*j,2)}, v{V_T+5} offset:{L_QS+32*j}")
    for j in range(8):
        e(f"ds_read_b64 {vr(V_PK+2*j,2)}, v{V_T+6} offset:{L_KZ+32*j}")
    e("s_waitcnt lgkmcnt(0)")
    for c in range(4):
        e(f"v_mfma_f32_16x16x32_bf16 {vr(V_NC,4)}, {vr(V_PK+4*c,4)}, {vr(V_QB+4*c,4)}, {'0' if c == 0 else vr(V_NC,4)}")
    g.nop(10)
    for r in range(4):
        e(f"v_xor_b32 v{V_NC+r}, 0x80000000, v{V_NC+r}")

    for p in range(32):
        T, c = p >> 2, p & 3
        n0, n1 = 2 * p, 2 * p + 1
        b0, b1 = V_BUF + 4 * (n0 % W), V_BUF + 4 * (n1 % W)
        pk = V_PK + 4 * (p & 3)
        g.wait_vm(ld_idx[n0])
        for k in range(4):
            e(f"v_cvt_f32_i32 v{b0+k}, v{b0+k}")
        g.wait_vm(ld_idx[n1])
        for k in range(4):
            e(f"v_cvt_f32_i32 v{b1+k}, v{b1+k}")
        e(f"v_cvt_pk_bf16_f32 v{pk}, v{b0}, v{b0+1}")
        e(f"v_cvt_pk_bf16_f32 v{pk+1}, v{b0+2}, v{b0+3}")
        e(f"v_cvt_pk_bf16_f32 v{pk+2}, v{b1}, v{b1+1}")
        e(f"v_cvt_pk_bf16_f32 v{pk+3}, v{b1+2}, v{b1+3}")
        k = 0
        k += issue_next()
        k += issue_next()
        g.nop(2 - k)
        e(f"v_mfma_f32_16x16x32_bf16 {vr(V_S+4*T,4)}, {vr(pk,4)}, {vr(V_QB+4*c,4)}, {vr(V_NC,4) if c == 0 else vr(V_S+4*T,4)}")

    g.c("softmax")
    g.nop(10)
    for x in range(32):
        e(f"v_add_f32_dpp v{V_S+x}, v{V_S+x}, v{V_S+x} row_ror:4 row_mask:0xf bank_mask:0xf")
    VM, VM2, VL, VX, VY = V_T, V_T + 1, V_T + 2, V_T + 3, V_T + 4
    e(f"v_max3_f32 v{VM}, v{V_S}, v{V_S+1}, v{V_S+2}")
    for x in range(3, 31, 2):
        e(f"v_max3_f32 v{VM}, v{VM}, v{V_S+x}, v{V_S+x+1}")
    e(f"v_max_f32 v{VM}, v{VM}, v{V_S+31}")
    e(f"v_mov_b32 v{VM2}, v{VM}")
    g.nop(2)
    e(f"v_permlane16_swap_b32 v{VM}, v{VM2}")
    e(f"v_max_f32 v{VM}, v{VM}, v{VM2}")
    e(f"v_mov_b32 v{VM2}, v{VM}")
    g.nop(2)
    e(f"v_permlane32_swap_b32 v{VM}, v{VM2}")
    e(f"v_max_f32 v{VM}, v{VM}, v{VM2}")
    e(f"v_mul_f32 v{VM}, s{S_C}, v{VM}")
    for x in range(32):
        e(f"v_fma_f32 v{V_S+x}, v{V_S+x}, s{S_C}, -v{VM}")
    for x in range(32):
        e(f"v_exp_f32 v{V_S+x}, v{V_S+x}")
    e(f"v_add_f32 v{VL}, v{V_S}, v{V_S+1}")
    e(f"v_add_f32 v{VX}, v{V_S+2}, v{V_S+3}")
    for x in range(4, 32, 2):
        e(f"v_add_f32 v{VL}, v{VL}, v{V_S+x}")
        e(f"v_add_f32 v{VX}, v{VX}, v{V_S+x+1}")
    e(f"v_add_f32 v{VL}, v{VL}, v{VX}")
    e(f"v_mov_b32 v{VX}, v{VL}")
    g.nop(2)
    e(f"v_permlane16_swap_b32 v{VL}, v{VX}")
    e(f"v_add_f32 v{VL}, v{VL}, v{VX}")
    e(f"v_mov_b32 v{VX}, v{VL}")
    g.nop(2)
    e(f"v_permlane32_swap_b32 v{VL}, v{VX}")
    e(f"v_add_f32 v{VM2}, v{VL}, v{VX}")
    assert VM % 2 == 1 or True
    VP = V_PK
    e(f"v_mov_b32 v{VP}, v{VM}")
    e(f"v_mov_b32 v{VP+1}, v{VM2}")
    e(f"v_lshlrev_b32 v{VX}, 5, v{V_WV}")
    e(f"v_lshl_add_u32 v{VX}, v{V_H}, 3, v{VX}")
    e("s_mov_b64 exec, 0xf")
    e(f"ds_write_b64 v{VX}, {vr(VP,2)} offset:{L_ML}")
    e("s_mov_b64 exec, -1")
    g.wait_vm(state["vs_idx"])
    for u in range(4):
        for q in range(4):
            a, b = V_S + 8 * u + 2 * q, V_S + 8 * u + 2 * q + 1
            src = V_VS + 4 * u + q
            e(f"v_lshlrev_b32 v{VX}, 16, v{src}")
            e(f"v_and_b32 v{VY}, s{S_MASK}, v{src}")
            e(f"v_mul_f32 v{a}, v{a}, v{VX}")
            e(f"v_mul_f32 v{b}, v{b}, v{VY}")
            e(f"v_and_b32 v{VX}, s{S_MASK}, v{a}")
            e(f"v_and_b32 v{VY}, s{S_MASK}, v{b}")
            e(f"v_sub_f32 v{a}, v{a}, v{VX}")
            e(f"v_sub_f32 v{b}, v{b}, v{VY}")
            e(f"v_cndmask_b32 v{a}, v{VX}, v{a}, {sr(S_ODD,2)}")
            e(f"v_cndmask_b32 v{b}, v{VY}, v{b}, {sr(S_ODD,2)}")
            e(f"v_cvt_pk_bf16_f32 v{V_PA+4*u+q}, v{a}, v{b}")
    g.nop(2)
    for u in range(4):
        e(f"v_mfma_f32_16x16x32_bf16 {vr(V_Z,4)}, {vr(V_PA+4*u,4)}, {vr(V_VZ+4*u,4)}, {'0' if u == 0 else vr(V_Z,4)}")

    g.c("V phase")
    for p in range(32):
        u, hf, q = p >> 3, (p >> 2) & 1, p & 3
        n0, n1 = 64 + 2 * p, 64 + 2 * p + 1
        b0, b1 = V_BUF + 4 * (n0 % W), V_BUF + 4 * (n1 % W)
        g.wait_vm(ld_idx[n0])
        for k in range(4):
            e(f"v_cvt_f32_i32 v{b0+k}, v{b0+k}")
        g.wait_vm(ld_idx[n1])
        for k in range(4):
            e(f"v_cvt_f32_i32 v{b1+k}, v{b1+k}")
        for j in range(4):
            e(f"v_cvt_pk_bf16_f32 v{V_PK+4*j+q}, v{b0+j}, v{b1+j}")
        k = 0
        k += issue_next()
        k += issue_next()
        if q == 3:
            g.nop(2 - k)
            for j in range(4):
                acc = V_ACC + 4 * (hf * 4 + j)
                e(f"v_mfma_f32_16x16x32_bf16 {vr(acc,4)}, {vr(V_PA+4*u,4)}, {vr(V_PK+4*j,4)}, {'0' if u == 0 else vr(acc,4)}")

    g.c("WG combine")
    if stamp:
        e(f"s_memrealtime {sr(S_TS+2,2)}")
    VA, VB = V_T, V_T + 1
    e(f"v_mul_u32_u24 v{VA}, 4608, v{V_WV}")
    e(f"v_lshl_add_u32 v{VA}, v{V_LANE}, 4, v{VA}")
    e(f"v_lshrrev_b32 v{VX}, 2, v{V_WV}")
    e(f"v_lshl_add_u32 v{VX}, v{VX}, 2, v{V_G}")
    e(f"v_mul_u32_u24 v{VB}, 576, v{VX}")
    e(f"v_and_b32 v{VX}, 3, v{V_WV}")
    e(f"v_lshl_add_u32 v{VB}, v{VX}, 6, v{VB}")
    e(f"v_lshl_add_u32 v{VB}, v{V_N}, 2, v{VB}")
    e(f"v_lshlrev_b32 v{VY}, 3, v{V_H}")
    g.nop(4)
    for blk in range(8):
        for r in range(4):
            e(f"v_sub_f32 v{V_ACC+4*blk+r}, v{V_ACC+4*blk+r}, v{V_Z+r}")
    e("s_mov_b32 exec_hi, 0")
    for blk in range(8):
        e(f"ds_write_b128 v{VA}, {vr(V_ACC+4*blk,4)} offset:{L_O+blk*576}")
    e("s_mov_b64 exec, -1")
    e("s_waitcnt lgkmcnt(0)")
    e("s_barrier")
    RB = V_BUF
    MB = V_BUF + 16
    assert L_O % 256 == 0
    for w in range(8):
        e(f"ds_read_b64 {vr(MB+2*w,2)}, v{VY} offset:{L_ML+w*32}")
    for w in range(8):
        o0 = L_O // 256 + w * 18
        e(f"ds_read2st64_b32 {vr(RB+2*w,2)}, v{VB} offset0:{o0} offset1:{o0+1}")
    e(f"s_lshl_b32 s{S_T0}, s{S_KVH}, 3")
    e(f"s_add_u32 s{S_T0}, s{S_T0}, s{S_WAVE}")
    e(f"s_lshl_b32 s{S_REC}, s{S_T0}, 13")
    e(f"s_lshl_b32 s{S_T1}, s{S_SPLIT}, 8")
    e(f"s_add_u32 s{S_U}, s{S_REC}, s{S_T1}")
    e(f"s_lshl_b32 s{S_REC+1}, s{S_T0}, 9")
    e(f"s_add_u32 s{S_REC+1}, s{S_REC+1}, {WS_E}")
    e(f"s_lshl_b32 s{S_T1}, s{S_SPLIT}, 4")
    e(f"s_add_u32 s{S_U+1}, s{S_REC+1}, s{S_T1}")
    e(f"s_lshl_b32 s{S_U+2}, s{S_T0}, 2")
    e(f"v_lshlrev_b32 v{VA}, 2, v{V_LANE}")
    e("s_waitcnt lgkmcnt(8)")
    VMX, VO, VLs = V_T + 2, V_T + 3, V_T + 4
    e(f"v_max3_f32 v{VMX}, v{MB}, v{MB+2}, v{MB+4}")
    e(f"v_max3_f32 v{VMX}, v{VMX}, v{MB+6}, v{MB+8}")
    e(f"v_max3_f32 v{VMX}, v{VMX}, v{MB+10}, v{MB+12}")
    e(f"v_max_f32 v{VMX}, v{VMX}, v{MB+14}")
    for w in range(8):
        e(f"v_sub_f32 v{MB+2*w}, v{MB+2*w}, v{VMX}")
    for w in range(8):
        e(f"v_exp_f32 v{MB+2*w}, v{MB+2*w}")
    g.nop(1)
    e(f"v_mul_f32 v{VLs}, v{MB}, v{MB+1}")
    for w in range(1, 8):
        e(f"v_fmac_f32 v{VLs}, v{MB+2*w}, v{MB+2*w+1}")
    e("s_waitcnt lgkmcnt(0)")
    for w in range(8):
        e(f"v_add_f32 v{RB+2*w}, v{RB+2*w}, v{RB+2*w+1}")
    e(f"v_rcp_f32 v{VB}, v{VLs}")
    e(f"v_log_f32 v{VLs}, v{VLs}")
    e(f"v_mul_f32 v{VO}, v{MB}, v{RB}")
    for w in range(1, 8):
        e(f"v_fmac_f32 v{VO}, v{MB+2*w}, v{RB+2*w}")
    X = V_BUF + 32
    e(f"v_mul_f32 v{X}, v{VO}, v{VB}")
    e(f"v_add_f32 v{X+4}, v{VMX}, v{VLs}")
    g.nop(2)
    for k in range(1, 4):
        e(f"v_mov_b32_dpp v{X+k}, v{X} quad_perm:[{k},{k},{k},{k}] row_mask:0xf bank_mask:0xf")
    for k in range(1, 4):
        e(f"v_mov_b32_dpp v{X+4+k}, v{X+4} quad_perm:[{k},{k},{k},{k}] row_mask:0xf bank_mask:0xf")
    e(f"v_mov_b32 v{VB}, 1")
    e(f"s_mov_b32 s{S_T0}, 0x11111111")
    e(f"s_mov_b32 exec_lo, s{S_T0}")
    e(f"s_mov_b32 exec_hi, s{S_T0}")
    stpol = "" if mode == "two" else " sc1"
    g.vm(f"buffer_store_dwordx4 {vr(X,4)}, v{VA}, {sr(R_WS,4)}, s{S_U} offen{stpol}")
    e("s_mov_b64 exec, 1")
    g.vm(f"buffer_store_dwordx4 {vr(X+4,4)}, v{VA}, {sr(R_WS,4)}, s{S_U+1} offen{stpol}")
    if mode == "wave":
        e("s_waitcnt vmcnt(0)")
        g.known_done = g.issued
        if not noatomic:
            g.vm(f"buffer_atomic_add v{VB}, v{VA}, {sr(R_DBG,4)}, s{S_U+2} offen sc0")
        e("s_waitcnt vmcnt(0)")
        g.known_done = g.issued
        e(f"v_readfirstlane_b32 s{S_T0}, v{VB}")
        e("s_mov_b64 exec, -1")
        g.nop(2)
    elif mode == "wg":
        e("s_waitcnt vmcnt(0)")
        g.known_done = g.issued
        e("s_barrier")
        e(f"s_cmp_lg_u32 s{S_WAVE}, 0")
        e("s_cbranch_scc1 L_skip_atomic")
        e(f"s_lshl_b32 s{S_U+2}, s{S_KVH}, 5")
        g.vm(f"buffer_atomic_add v{VB}, v{VA}, {sr(R_DBG,4)}, s{S_U+2} offen sc0")
        e("s_waitcnt vmcnt(0)")
        g.known_done = g.issued
        e(f"ds_write_b32 v{VA}, v{VB} offset:{L_KZ}")
        e("s_waitcnt lgkmcnt(0)")
        g.lab("L_skip_atomic")
        e("s_barrier")
        e(f"ds_read_b32 v{VB}, v{VA} offset:{L_KZ}")
        e("s_waitcnt lgkmcnt(0)")
        e(f"v_readfirstlane_b32 s{S_T0}, v{VB}")
        e("s_mov_b64 exec, -1")
        g.nop(2)
    else:
        e("s_mov_b64 exec, -1")
        if stamp:
            e("s_waitcnt vmcnt(0)")
            g.known_done = g.issued
    if stamp:
        e(f"s_memrealtime {sr(S_TS+4,2)}")
        e("s_waitcnt lgkmcnt(0)")
        e(f"s_lshl_b32 s{S_T1}, s2, 3")
        e(f"s_add_u32 s{S_T1}, s{S_T1}, s{S_WAVE}")
        e(f"s_lshl_b32 s{S_T1}, s{S_T1}, 5")
        e(f"s_add_u32 s{S_T1}, s{S_T1}, 0x100000")
        e(f"s_getreg_b32 s{S_TS+6}, hwreg(HW_REG_XCC_ID)")
        e(f"s_getreg_b32 s{S_TS+7}, hwreg(HW_REG_HW_ID)")
        e(f"s_and_b32 s{S_TS+6}, s{S_TS+6}, 15")
        e(f"s_lshl_b32 s{S_TS+7}, s{S_TS+7}, 4")
        e(f"s_or_b32 s{S_TS+6}, s{S_TS+6}, s{S_TS+7}")
        for k in range(4):
            e(f"v_mov_b32 v{X+k}, s{S_TS+2*k}")
        e("s_mov_b64 exec, 1")
        g.vm(f"buffer_store_dwordx4 {vr(X,4)}, v{VA}, {sr(R_WS,4)}, s{S_T1} offen")
        e("s_mov_b64 exec, -1")
    ldpol = " sc1"
    if mode == "two":
        ldpol = ""
        g.lab("L_end")
        e("s_endpgm")
        g.L.append(".p2align 8")
        g.L.append(".globl combine_kernel")
        g.L.append(".type combine_kernel,@function")
        g.lab("combine_kernel")
        g.issued = 0; g.known_done = 0
        e("s_cmp_ge_u32 s2, 64")
        e("s_cbranch_scc1 L_end2")
        e(f"s_load_dwordx2 {sr(S_OUT,2)}, s[0:1], 56")
        e(f"s_load_dwordx2 {sr(S_WS,2)}, s[0:1], 72")
        e(f"v_mov_b32 v{V_LANE}, v0")
        e(f"v_lshrrev_b32 v{V_G}, 4, v{V_LANE}")
        e(f"v_and_b32 v{V_N}, 15, v{V_LANE}")
        e(f"v_and_b32 v{V_H}, 3, v{V_LANE}")
        e(f"s_and_b32 s{S_WAVE}, s2, 7")
        e(f"s_lshr_b32 s{S_QO}, s2, 3")
        e(f"s_lshl_b32 s{S_QO}, s{S_QO}, 10")
        e(f"s_lshl_b32 s{S_REC}, s2, 13")
        e(f"s_lshl_b32 s{S_REC+1}, s2, 9")
        e(f"s_add_u32 s{S_REC+1}, s{S_REC+1}, {WS_E}")
        for r, n in ((R_OUT, 8192), (R_WS, 1 << 29)):
            e(f"s_mov_b32 s{r+2}, 0x{n:x}")
            e(f"s_mov_b32 s{r+3}, 0x00020000")
        e("s_waitcnt lgkmcnt(0)")
        for r, p in ((R_OUT, S_OUT), (R_WS, S_WS)):
            e(f"s_mov_b32 s{r}, s{p}")
            e(f"s_mov_b32 s{r+1}, s{p+1}")
    else:
        e(f"s_cmp_lg_u32 s{S_T0}, 31")
        e("s_cbranch_scc1 L_end")

    g.c("final combine")
    OB = V_BUF
    EB = V_BUF + 32
    e(f"v_lshlrev_b32 v{VA}, 4, v{V_LANE}")
    e(f"v_lshlrev_b32 v{VB}, 4, v{V_G}")
    ie = []
    for k in range(8):
        ie.append(g.vm(f"buffer_load_dwordx4 {vr(EB+4*k,4)}, v{VB}, {sr(R_WS,4)}, s{S_REC+1} offen offset:{k*64}{ldpol}"))
    io = []
    e(f"s_add_u32 s{S_T1}, s{S_REC}, 4096")
    for k in range(8):
        so = S_REC if k < 4 else S_T1
        io.append(g.vm(f"buffer_load_dwordx4 {vr(OB+4*k,4)}, v{VA}, {sr(R_WS,4)}, s{so} offen offset:{(k&3)*1024}{ldpol}"))
    VOUT = V_T + 5
    e(f"v_lshrrev_b32 v{VX}, 2, v{V_N}")
    e(f"v_lshl_add_u32 v{VX}, v{V_H}, 2, v{VX}")
    e(f"v_lshlrev_b32 v{VOUT}, 1, v{VX}")
    e(f"s_lshl_b32 s{S_T0}, s{S_WAVE}, 5")
    e(f"s_add_u32 s{S_T0}, s{S_T0}, s{S_QO}")
    g.wait_vm(ie[-1])
    MX = V_S
    M2 = V_S + 4
    for h in range(4):
        e(f"v_max3_f32 v{MX+h}, v{EB+h}, v{EB+4+h}, v{EB+8+h}")
        e(f"v_max3_f32 v{MX+h}, v{MX+h}, v{EB+12+h}, v{EB+16+h}")
        e(f"v_max3_f32 v{MX+h}, v{MX+h}, v{EB+20+h}, v{EB+24+h}")
        e(f"v_max_f32 v{MX+h}, v{MX+h}, v{EB+28+h}")
    for h in range(4):
        e(f"v_mov_b32 v{M2+h}, v{MX+h}")
    g.nop(1)
    for h in range(4):
        e(f"v_permlane16_swap_b32 v{MX+h}, v{M2+h}")
    for h in range(4):
        e(f"v_max_f32 v{MX+h}, v{MX+h}, v{M2+h}")
    for h in range(4):
        e(f"v_mov_b32 v{M2+h}, v{MX+h}")
    g.nop(1)
    for h in range(4):
        e(f"v_permlane32_swap_b32 v{MX+h}, v{M2+h}")
    for h in range(4):
        e(f"v_max_f32 v{MX+h}, v{MX+h}, v{M2+h}")
    for k in range(8):
        for h in range(4):
            e(f"v_sub_f32 v{EB+4*k+h}, v{EB+4*k+h}, v{MX+h}")
    for k in range(32):
        e(f"v_exp_f32 v{EB+k}, v{EB+k}")
    DN = V_S + 8
    NU = V_S + 12
    g.nop(1)
    for h in range(4):
        e(f"v_add_f32 v{DN+h}, v{EB+h}, v{EB+4+h}")
    for k in range(2, 8):
        for h in range(4):
            e(f"v_add_f32 v{DN+h}, v{DN+h}, v{EB+4*k+h}")
    for k in range(8):
        g.wait_vm(io[k])
        for h in range(4):
            if k == 0:
                e(f"v_mul_f32 v{NU+h}, v{EB+h}, v{OB+h}")
            else:
                e(f"v_fmac_f32 v{NU+h}, v{EB+4*k+h}, v{OB+4*k+h}")
    g.nop(2)
    for base in (NU, DN):
        e(f"v_permlane16_swap_b32 v{base}, v{base+1}")
        e(f"v_permlane16_swap_b32 v{base+2}, v{base+3}")
    for base in (NU, DN):
        e(f"v_add_f32 v{base}, v{base}, v{base+1}")
        e(f"v_add_f32 v{base+2}, v{base+2}, v{base+3}")
    g.nop(2)
    for base in (NU, DN):
        e(f"v_permlane32_swap_b32 v{base}, v{base+2}")
    for base in (NU, DN):
        e(f"v_add_f32 v{base}, v{base}, v{base+2}")
    e(f"v_rcp_f32 v{DN}, v{DN}")
    e(f"v_lshl_add_u32 v{VOUT}, v{V_G}, 8, v{VOUT}")
    e(f"v_mul_f32 v{NU}, v{NU}, v{DN}")
    e(f"v_cvt_pk_bf16_f32 v{NU}, v{NU}, v{NU}")
    g.vm(f"buffer_store_short v{NU}, v{VOUT}, {sr(R_OUT,4)}, s{S_T0} offen")
    g.lab("L_end2" if mode == "two" else "L_end")
    e("s_endpgm")

    body = "\n".join(g.L)
    nv = (NV + 7) // 8 * 8
    if mode == "two":
        text = HEADER + f"; @launch kernel={NAME}_kernel grid=(256,1,1) block=(512,1,1) lds={LDS}\n"
        text += f"; @launch kernel=combine_kernel grid=(64,1,1) block=(64,1,1) lds=0\n"
    else:
        text = HEADER + f"; @launch grid=(256,1,1) block=(512,1,1) lds={LDS}\n"
    text += f""".amdgcn_target "amdgcn-amd-amdhsa--gfx950"
.text
.globl {NAME}_kernel
.p2align 8
.type {NAME}_kernel,@function
{NAME}_kernel:
{body}
.section .rodata,"a"
.p2align 6
.amdhsa_kernel {NAME}_kernel
  .amdhsa_next_free_vgpr {nv}
  .amdhsa_next_free_sgpr {NSGPR}
  .amdhsa_accum_offset {nv}
  .amdhsa_group_segment_fixed_size 0
  .amdhsa_kernarg_size 80
  .amdhsa_user_sgpr_count 2
  .amdhsa_user_sgpr_kernarg_segment_ptr 1
  .amdhsa_system_sgpr_workgroup_id_x 1
  .amdhsa_float_denorm_mode_32 3
.end_amdhsa_kernel
"""
    if mode == "two":
        text += f""".p2align 6
.amdhsa_kernel combine_kernel
  .amdhsa_next_free_vgpr {V_BUF+64}
  .amdhsa_next_free_sgpr {NSGPR}
  .amdhsa_accum_offset {V_BUF+64}
  .amdhsa_group_segment_fixed_size 0
  .amdhsa_kernarg_size 80
  .amdhsa_user_sgpr_count 2
  .amdhsa_user_sgpr_kernarg_segment_ptr 1
  .amdhsa_system_sgpr_workgroup_id_x 1
  .amdhsa_float_denorm_mode_32 3
.end_amdhsa_kernel
"""
    return text


if __name__ == "__main__":
    ap = argparse.ArgumentParser()
    ap.add_argument("-o", default=f"cdna_kernels/{NAME}.s")
    ap.add_argument("--W", type=int, default=32)
    ap.add_argument("--pol", default="")
    ap.add_argument("--vs_at", type=int, default=24)
    ap.add_argument("--stamp", action="store_true")
    ap.add_argument("--noatomic", action="store_true")
    ap.add_argument("--mode", default="wave")
    ap.add_argument("--polv", default=None)
    a = ap.parse_args()
    open(a.o, "w").write(gen(W=a.W, pol=a.pol, vs_at=a.vs_at, stamp=a.stamp, noatomic=a.noatomic, mode=a.mode, polv=a.polv))
    print("wrote", a.o)
```

```python
import sys, math, struct, argparse

NAME = "standalone__kv_cache_quant_int4_int2_kv_with_per_channel_or_per_token_scales__decode"

HEADER = """; Kernarg layout for this problem (80 bytes, ptrs only, base s[0:1]):
"""


def f32bits(x):
    return struct.unpack("<I", struct.pack("<f", x))[0]


class G:
    def __init__(self):
        self.L = []
        self.issued = 0
        self.known_done = 0

    def e(self, s):
        self.L.append("    " + s)

    def lab(self, s):
        self.L.append(s + ":")

    def c(self, s):
        self.L.append("    ; " + s)

    def vm(self, s):
        self.e(s)
        i = self.issued
        self.issued += 1
        assert self.issued - self.known_done <= 63, "too many outstanding"
        return i

    def wait_vm(self, idx):
        if idx < self.known_done:
            return
        n = self.issued - 1 - idx
        assert 0 <= n <= 63
        self.e(f"s_waitcnt vmcnt({n})")
        self.known_done = idx + 1

    def nop(self, n):
        while n > 0:
            k = min(n, 16)
            self.e(f"s_nop {k-1}")
            n -= k


def vr(b, n=1):
    return f"v{b}" if n == 1 else f"v[{b}:{b+n-1}]"


def sr(b, n=1):
    return f"s{b}" if n == 1 else f"s[{b}:{b+n-1}]"


def gen(W=32, pol="", vs_at=24, stamp=False, force_nv=256, noatomic=False, mode="wave", polv=None):
    g = G()
    e = g.e
    if polv is None: polv = pol
    pol = (" " + pol) if pol else ""
    polv = (" " + polv) if polv else ""
    C = (128.0 ** -0.5) * math.log2(math.e)

    S_Q, S_QK, S_QV, S_KS, S_KZ, S_VS, S_VZ, S_OUT, S_DBG, S_WS = 4, 6, 8, 10, 12, 14, 16, 18, 20, 22
    R_K, R_V, R_VS, R_VZ, R_Q, R_KS, R_KZ, R_OUT, R_WS, R_DBG = 24, 28, 32, 36, 40, 44, 48, 52, 56, 60
    S_U = 64
    S_VSO = 68
    S_QO = 69
    S_KSO = 70
    S_KVH = 71
    S_WAVE = 72
    S_C = 73
    S_MASK = 74
    S_T0 = 75
    S_T1 = 76
    S_SPLIT = 77
    S_REC = 78
    S_EX = 80
    S_ODD = 82
    S_TS = 84
    S_TX = 92
    NSGPR = 100

    V_TID, V_LANE, V_KO, V_VO, V_SO, V_WV, V_G, V_N, V_H = 0, 1, 2, 3, 4, 5, 6, 7, 8
    V_T = 9
    V_QB = 16
    V_PA = V_QB
    V_S = 32
    V_ACC = 32
    V_Z = 64
    V_NC = 68
    V_VS = 72
    V_VZ = 88
    V_PK = 104
    V_BUF = 120
    NV = V_BUF + max(4 * W, 64)
    if force_nv: NV = force_nv
    assert NV <= 256, NV

    L_QS = 0
    L_KZ = 2048
    L_ML = 2304
    L_O = 2560
    LDS = L_O + 8 * 4608

    WS_E = 64 * 8192

    e("s_cmp_ge_u32 s2, 256")
    e("s_cbranch_scc1 L_end")
    e(f"s_load_dwordx16 s[4:19], s[0:1], 0")
    e(f"s_load_dwordx4 s[20:23], s[0:1], 64")
    if stamp:
        e(f"s_memrealtime {sr(S_TS,2)}")
    e(f"v_and_b32 v{V_LANE}, 63, v0")
    e(f"v_lshrrev_b32 v{V_WV}, 6, v0")
    e(f"v_lshrrev_b32 v{V_G}, 4, v{V_LANE}")
    e(f"v_and_b32 v{V_N}, 15, v{V_LANE}")
    e(f"v_and_b32 v{V_H}, 3, v{V_LANE}")
    e(f"v_readfirstlane_b32 s{S_WAVE}, v{V_WV}")
    e(f"v_lshlrev_b32 v{V_KO}, 16, v{V_WV}")
    e(f"v_lshrrev_b32 v{V_T}, 2, v{V_N}")
    e(f"v_lshl_add_u32 v{V_KO}, v{V_T}, 12, v{V_KO}")
    e(f"v_lshl_add_u32 v{V_KO}, v{V_H}, 9, v{V_KO}")
    e(f"v_lshl_add_u32 v{V_KO}, v{V_G}, 4, v{V_KO}")
    e(f"v_lshlrev_b32 v{V_VO}, 16, v{V_WV}")
    e(f"v_lshl_add_u32 v{V_VO}, v{V_G}, 12, v{V_VO}")
    e(f"v_lshl_add_u32 v{V_VO}, v{V_N}, 4, v{V_VO}")
    e(f"v_lshlrev_b32 v{V_SO}, 8, v{V_WV}")
    e(f"v_lshl_add_u32 v{V_SO}, v{V_G}, 4, v{V_SO}")
    e(f"v_lshlrev_b32 v{V_T}, 1, v0")
    e(f"v_and_b32 v{V_T+1}, 0xfe, v{V_T}")
    e(f"s_lshl_b32 s{S_U}, s2, 19")
    for u in range(1, 4):
        e(f"s_add_u32 s{S_U+u}, s{S_U}, {u*16384}")
    e(f"s_lshl_b32 s{S_VSO}, s2, 11")
    e(f"s_lshr_b32 s{S_KVH}, s2, 5")
    e(f"s_and_b32 s{S_SPLIT}, s2, 31")
    e(f"s_lshl_b32 s{S_QO}, s{S_KVH}, 10")
    e(f"s_lshr_b32 s{S_KSO}, s2, 4")
    e(f"s_lshl_b32 s{S_KSO}, s{S_KSO}, 8")
    e(f"s_mov_b32 s{S_C}, 0x{f32bits(C):08x}")
    e(f"s_mov_b32 s{S_MASK}, 0xffff0000")
    for r, n in ((R_K, 1 << 27), (R_V, 1 << 27), (R_VS, 1 << 19), (R_VZ, 1 << 19), (R_Q, 8192),
                 (R_KS, 4096), (R_KZ, 4096), (R_OUT, 8192), (R_WS, 1 << 29), (R_DBG, 256)):
        e(f"s_mov_b32 s{r+2}, 0x{n:x}")
        e(f"s_mov_b32 s{r+3}, 0x00020000")
    e("s_waitcnt lgkmcnt(0)")
    if stamp:
        e(f"s_memrealtime {sr(S_TX,2)}")
    for r, p in ((R_Q, S_Q), (R_KS, S_KS), (R_KZ, S_KZ), (R_K, S_QK)):
        e(f"s_mov_b32 s{r}, s{p}")
        e(f"s_mov_b32 s{r+1}, s{p+1}")

    VQ, VKS, VKZ = V_T + 2, V_T + 3, V_T + 4
    g.vm(f"buffer_load_ushort v{VQ}, v{V_T}, {sr(R_Q,4)}, s{S_QO} offen")
    g.vm(f"buffer_load_ushort v{VKS}, v{V_T+1}, {sr(R_KS,4)}, s{S_KSO} offen")
    i_kz = g.vm(f"buffer_load_ushort v{VKZ}, v{V_T+1}, {sr(R_KZ,4)}, s{S_KSO} offen")

    seq = []
    for u in range(4):
        for tl in range(2):
            for j in range(8):
                seq.append(("K", u, tl * 2048 + j * 64))
    for u in range(4):
        for hf in range(2):
            for i in range(8):
                seq.append(("V", u, i * 512 + hf * 256))
    ld_idx = {}
    state = {"next": 0, "vs_idx": None}

    def issue_next():
        n = state["next"]
        if n >= len(seq):
            return False
        if n == vs_at:
            for u in range(4):
                g.vm(f"buffer_load_dwordx4 {vr(V_VS+4*u,4)}, v{V_SO}, {sr(R_VS,4)}, s{S_VSO} offen offset:{u*64}")
            for u in range(4):
                state["vs_idx"] = g.vm(f"buffer_load_dwordx4 {vr(V_VZ+4*u,4)}, v{V_SO}, {sr(R_VZ,4)}, s{S_VSO} offen offset:{u*64}")
        kind, u, off = seq[n]
        b = V_BUF + 4 * (n % W)
        if kind == "K":
            ld_idx[n] = g.vm(f"buffer_load_dwordx4 {vr(b,4)}, v{V_KO}, {sr(R_K,4)}, s{S_U+u} offen offset:{off}{pol}")
        else:
            ld_idx[n] = g.vm(f"buffer_load_dwordx4 {vr(b,4)}, v{V_VO}, {sr(R_V,4)}, s{S_U+u} offen offset:{off}{polv}")
        state["next"] = n + 1
        return True

    first = min(W, 16, vs_at)
    for _ in range(first):
        issue_next()
    for r, p in ((R_V, S_QV), (R_VS, S_VS), (R_VZ, S_VZ), (R_OUT, S_OUT), (R_WS, S_WS), (R_DBG, S_DBG)):
        e(f"s_mov_b32 s{r}, s{p}")
        e(f"s_mov_b32 s{r+1}, s{p+1}")
    for _ in range(W - first):
        issue_next()

    e(f"v_and_b32 v{V_T+5}, 4, v{V_LANE}")
    e(f"v_cmp_ne_u32 {sr(S_ODD,2)}, 0, v{V_T+5}")

    g.wait_vm(i_kz)
    if stamp:
        e(f"s_memrealtime {sr(S_TX+2,2)}")
    e(f"v_lshlrev_b32 v{VQ}, 16, v{VQ}")
    e(f"v_lshlrev_b32 v{VKS}, 16, v{VKS}")
    e(f"v_mul_f32 v{VQ}, v{VQ}, v{VKS}")
    e(f"v_and_b32 v{VKS}, s{S_MASK}, v{VQ}")
    e(f"v_sub_f32 v{VKS}, v{VQ}, v{VKS}")
    e(f"ds_write_b16_d16_hi v{V_T}, v{VQ} offset:{L_QS}")
    e(f"ds_write_b16_d16_hi v{V_T}, v{VKS} offset:{L_QS+1024}")
    e(f"ds_write_b16 v{V_T+1}, v{VKZ} offset:{L_KZ}")
    e(f"v_lshlrev_b32 v{V_T+5}, 8, v{V_T+5}")
    e(f"v_lshl_add_u32 v{V_T+5}, v{V_H}, 8, v{V_T+5}")
    e(f"v_lshlrev_b32 v{V_T+6}, 3, v{V_G}")
    e(f"v_add_u32 v{V_T+5}, v{V_T+5}, v{V_T+6}")
    e("s_waitcnt lgkmcnt(0)")
    e("s_barrier")
    for j in range(8):
        e(f"ds_read_b64 {vr(V_QB+2*j,2)}, v{V_T+5} offset:{L_QS+32*j}")
    for j in range(8):
        e(f"ds_read_b64 {vr(V_PK+2*j,2)}, v{V_T+6} offset:{L_KZ+32*j}")
    e("s_waitcnt lgkmcnt(0)")
    for c in range(4):
        e(f"v_mfma_f32_16x16x32_bf16 {vr(V_NC,4)}, {vr(V_PK+4*c,4)}, {vr(V_QB+4*c,4)}, {'0' if c == 0 else vr(V_NC,4)}")
    g.nop(10)
    for r in range(4):
        e(f"v_xor_b32 v{V_NC+r}, 0x80000000, v{V_NC+r}")

    for p in range(32):
        T, c = p >> 2, p & 3
        n0, n1 = 2 * p, 2 * p + 1
        b0, b1 = V_BUF + 4 * (n0 % W), V_BUF + 4 * (n1 % W)
        pk = V_PK + 4 * (p & 3)
        g.wait_vm(ld_idx[n0])
        for k in range(4):
            e(f"v_cvt_f32_i32 v{b0+k}, v{b0+k}")
        g.wait_vm(ld_idx[n1])
        if stamp and p == 0:
            e(f"s_memrealtime {sr(S_TX+4,2)}")
        for k in range(4):
            e(f"v_cvt_f32_i32 v{b1+k}, v{b1+k}")
        e(f"v_cvt_pk_bf16_f32 v{pk}, v{b0}, v{b0+1}")
        e(f"v_cvt_pk_bf16_f32 v{pk+1}, v{b0+2}, v{b0+3}")
        e(f"v_cvt_pk_bf16_f32 v{pk+2}, v{b1}, v{b1+1}")
        e(f"v_cvt_pk_bf16_f32 v{pk+3}, v{b1+2}, v{b1+3}")
        k = 0
        k += issue_next()
        k += issue_next()
        g.nop(2 - k)
        e(f"v_mfma_f32_16x16x32_bf16 {vr(V_S+4*T,4)}, {vr(pk,4)}, {vr(V_QB+4*c,4)}, {vr(V_NC,4) if c == 0 else vr(V_S+4*T,4)}")

    g.c("softmax")
    if stamp:
        e(f"s_memrealtime {sr(S_TX+6,2)}")
    g.nop(10)
    for x in range(32):
        e(f"v_add_f32_dpp v{V_S+x}, v{V_S+x}, v{V_S+x} row_ror:4 row_mask:0xf bank_mask:0xf")
    VM, VM2, VL, VX, VY = V_T, V_T + 1, V_T + 2, V_T + 3, V_T + 4
    e(f"v_max3_f32 v{VM}, v{V_S}, v{V_S+1}, v{V_S+2}")
    for x in range(3, 31, 2):
        e(f"v_max3_f32 v{VM}, v{VM}, v{V_S+x}, v{V_S+x+1}")
    e(f"v_max_f32 v{VM}, v{VM}, v{V_S+31}")
    e(f"v_mov_b32 v{VM2}, v{VM}")
    g.nop(2)
    e(f"v_permlane16_swap_b32 v{VM}, v{VM2}")
    e(f"v_max_f32 v{VM}, v{VM}, v{VM2}")
    e(f"v_mov_b32 v{VM2}, v{VM}")
    g.nop(2)
    e(f"v_permlane32_swap_b32 v{VM}, v{VM2}")
    e(f"v_max_f32 v{VM}, v{VM}, v{VM2}")
    e(f"v_mul_f32 v{VM}, s{S_C}, v{VM}")
    for x in range(32):
        e(f"v_fma_f32 v{V_S+x}, v{V_S+x}, s{S_C}, -v{VM}")
    for x in range(32):
        e(f"v_exp_f32 v{V_S+x}, v{V_S+x}")
    e(f"v_add_f32 v{VL}, v{V_S}, v{V_S+1}")
    e(f"v_add_f32 v{VX}, v{V_S+2}, v{V_S+3}")
    for x in range(4, 32, 2):
        e(f"v_add_f32 v{VL}, v{VL}, v{V_S+x}")
        e(f"v_add_f32 v{VX}, v{VX}, v{V_S+x+1}")
    e(f"v_add_f32 v{VL}, v{VL}, v{VX}")
    e(f"v_mov_b32 v{VX}, v{VL}")
    g.nop(2)
    e(f"v_permlane16_swap_b32 v{VL}, v{VX}")
    e(f"v_add_f32 v{VL}, v{VL}, v{VX}")
    e(f"v_mov_b32 v{VX}, v{VL}")
    g.nop(2)
    e(f"v_permlane32_swap_b32 v{VL}, v{VX}")
    e(f"v_add_f32 v{VM2}, v{VL}, v{VX}")
    assert VM % 2 == 1 or True
    VP = V_PK
    e(f"v_mov_b32 v{VP}, v{VM}")
    e(f"v_mov_b32 v{VP+1}, v{VM2}")
    e(f"v_lshlrev_b32 v{VX}, 5, v{V_WV}")
    e(f"v_lshl_add_u32 v{VX}, v{V_H}, 3, v{VX}")
    e("s_mov_b64 exec, 0xf")
    e(f"ds_write_b64 v{VX}, {vr(VP,2)} offset:{L_ML}")
    e("s_mov_b64 exec, -1")
    g.wait_vm(state["vs_idx"])
    for u in range(4):
        for q in range(4):
            a, b = V_S + 8 * u + 2 * q, V_S + 8 * u + 2 * q + 1
            src = V_VS + 4 * u + q
            e(f"v_lshlrev_b32 v{VX}, 16, v{src}")
            e(f"v_and_b32 v{VY}, s{S_MASK}, v{src}")
            e(f"v_mul_f32 v{a}, v{a}, v{VX}")
            e(f"v_mul_f32 v{b}, v{b}, v{VY}")
            e(f"v_and_b32 v{VX}, s{S_MASK}, v{a}")
            e(f"v_and_b32 v{VY}, s{S_MASK}, v{b}")
            e(f"v_sub_f32 v{a}, v{a}, v{VX}")
            e(f"v_sub_f32 v{b}, v{b}, v{VY}")
            e(f"v_cndmask_b32 v{a}, v{VX}, v{a}, {sr(S_ODD,2)}")
            e(f"v_cndmask_b32 v{b}, v{VY}, v{b}, {sr(S_ODD,2)}")
            e(f"v_cvt_pk_bf16_f32 v{V_PA+4*u+q}, v{a}, v{b}")
    g.nop(2)
    for u in range(4):
        e(f"v_mfma_f32_16x16x32_bf16 {vr(V_Z,4)}, {vr(V_PA+4*u,4)}, {vr(V_VZ+4*u,4)}, {'0' if u == 0 else vr(V_Z,4)}")

    g.c("V phase")
    for p in range(32):
        u, hf, q = p >> 3, (p >> 2) & 1, p & 3
        n0, n1 = 64 + 2 * p, 64 + 2 * p + 1
        b0, b1 = V_BUF + 4 * (n0 % W), V_BUF + 4 * (n1 % W)
        g.wait_vm(ld_idx[n0])
        for k in range(4):
            e(f"v_cvt_f32_i32 v{b0+k}, v{b0+k}")
        g.wait_vm(ld_idx[n1])
        for k in range(4):
            e(f"v_cvt_f32_i32 v{b1+k}, v{b1+k}")
        for j in range(4):
            e(f"v_cvt_pk_bf16_f32 v{V_PK+4*j+q}, v{b0+j}, v{b1+j}")
        k = 0
        k += issue_next()
        k += issue_next()
        if q == 3:
            g.nop(2 - k)
            for j in range(4):
                acc = V_ACC + 4 * (hf * 4 + j)
                e(f"v_mfma_f32_16x16x32_bf16 {vr(acc,4)}, {vr(V_PA+4*u,4)}, {vr(V_PK+4*j,4)}, {'0' if u == 0 else vr(acc,4)}")

    g.c("WG combine")
    if stamp:
        e(f"s_memrealtime {sr(S_TS+2,2)}")
    VA, VB = V_T, V_T + 1
    e(f"v_mul_u32_u24 v{VA}, 4608, v{V_WV}")
    e(f"v_lshl_add_u32 v{VA}, v{V_LANE}, 4, v{VA}")
    e(f"v_lshrrev_b32 v{VX}, 2, v{V_WV}")
    e(f"v_lshl_add_u32 v{VX}, v{VX}, 2, v{V_G}")
    e(f"v_mul_u32_u24 v{VB}, 576, v{VX}")
    e(f"v_and_b32 v{VX}, 3, v{V_WV}")
    e(f"v_lshl_add_u32 v{VB}, v{VX}, 6, v{VB}")
    e(f"v_lshl_add_u32 v{VB}, v{V_N}, 2, v{VB}")
    e(f"v_lshlrev_b32 v{VY}, 3, v{V_H}")
    g.nop(4)
    for blk in range(8):
        for r in range(4):
            e(f"v_sub_f32 v{V_ACC+4*blk+r}, v{V_ACC+4*blk+r}, v{V_Z+r}")
    e("s_mov_b32 exec_hi, 0")
    for blk in range(8):
        e(f"ds_write_b128 v{VA}, {vr(V_ACC+4*blk,4)} offset:{L_O+blk*576}")
    e("s_mov_b64 exec, -1")
    e("s_waitcnt lgkmcnt(0)")
    e("s_barrier")
    RB = V_BUF
    MB = V_BUF + 16
    assert L_O % 256 == 0
    for w in range(8):
        e(f"ds_read_b64 {vr(MB+2*w,2)}, v{VY} offset:{L_ML+w*32}")
    for w in range(8):
        o0 = L_O // 256 + w * 18
        e(f"ds_read2st64_b32 {vr(RB+2*w,2)}, v{VB} offset0:{o0} offset1:{o0+1}")
    e(f"s_lshl_b32 s{S_T0}, s{S_KVH}, 3")
    e(f"s_add_u32 s{S_T0}, s{S_T0}, s{S_WAVE}")
    e(f"s_lshl_b32 s{S_REC}, s{S_T0}, 13")
    e(f"s_lshl_b32 s{S_T1}, s{S_SPLIT}, 8")
    e(f"s_add_u32 s{S_U}, s{S_REC}, s{S_T1}")
    e(f"s_lshl_b32 s{S_REC+1}, s{S_T0}, 9")
    e(f"s_add_u32 s{S_REC+1}, s{S_REC+1}, {WS_E}")
    e(f"s_lshl_b32 s{S_T1}, s{S_SPLIT}, 4")
    e(f"s_add_u32 s{S_U+1}, s{S_REC+1}, s{S_T1}")
    e(f"s_lshl_b32 s{S_U+2}, s{S_T0}, 2")
    e(f"v_lshlrev_b32 v{VA}, 2, v{V_LANE}")
    e("s_waitcnt lgkmcnt(8)")
    VMX, VO, VLs = V_T + 2, V_T + 3, V_T + 4
    e(f"v_max3_f32 v{VMX}, v{MB}, v{MB+2}, v{MB+4}")
    e(f"v_max3_f32 v{VMX}, v{VMX}, v{MB+6}, v{MB+8}")
    e(f"v_max3_f32 v{VMX}, v{VMX}, v{MB+10}, v{MB+12}")
    e(f"v_max_f32 v{VMX}, v{VMX}, v{MB+14}")
    for w in range(8):
        e(f"v_sub_f32 v{MB+2*w}, v{MB+2*w}, v{VMX}")
    for w in range(8):
        e(f"v_exp_f32 v{MB+2*w}, v{MB+2*w}")
    g.nop(1)
    e(f"v_mul_f32 v{VLs}, v{MB}, v{MB+1}")
    for w in range(1, 8):
        e(f"v_fmac_f32 v{VLs}, v{MB+2*w}, v{MB+2*w+1}")
    e("s_waitcnt lgkmcnt(0)")
    for w in range(8):
        e(f"v_add_f32 v{RB+2*w}, v{RB+2*w}, v{RB+2*w+1}")
    e(f"v_rcp_f32 v{VB}, v{VLs}")
    e(f"v_log_f32 v{VLs}, v{VLs}")
    e(f"v_mul_f32 v{VO}, v{MB}, v{RB}")
    for w in range(1, 8):
        e(f"v_fmac_f32 v{VO}, v{MB+2*w}, v{RB+2*w}")
    X = V_BUF + 32
    e(f"v_mul_f32 v{X}, v{VO}, v{VB}")
    e(f"v_add_f32 v{X+4}, v{VMX}, v{VLs}")
    g.nop(2)
    for k in range(1, 4):
        e(f"v_mov_b32_dpp v{X+k}, v{X} quad_perm:[{k},{k},{k},{k}] row_mask:0xf bank_mask:0xf")
    for k in range(1, 4):
        e(f"v_mov_b32_dpp v{X+4+k}, v{X+4} quad_perm:[{k},{k},{k},{k}] row_mask:0xf bank_mask:0xf")
    e(f"v_mov_b32 v{VB}, 1")
    e(f"s_mov_b32 s{S_T0}, 0x11111111")
    e(f"s_mov_b32 exec_lo, s{S_T0}")
    e(f"s_mov_b32 exec_hi, s{S_T0}")
    stpol = "" if mode == "two" else " sc1"
    g.vm(f"buffer_store_dwordx4 {vr(X,4)}, v{VA}, {sr(R_WS,4)}, s{S_U} offen{stpol}")
    e("s_mov_b64 exec, 1")
    g.vm(f"buffer_store_dwordx4 {vr(X+4,4)}, v{VA}, {sr(R_WS,4)}, s{S_U+1} offen{stpol}")
    if mode == "wave":
        e("s_waitcnt vmcnt(0)")
        g.known_done = g.issued
        if not noatomic:
            g.vm(f"buffer_atomic_add v{VB}, v{VA}, {sr(R_DBG,4)}, s{S_U+2} offen sc0")
        e("s_waitcnt vmcnt(0)")
        g.known_done = g.issued
        e(f"v_readfirstlane_b32 s{S_T0}, v{VB}")
        e("s_mov_b64 exec, -1")
        g.nop(2)
    elif mode == "wg":
        e("s_waitcnt vmcnt(0)")
        g.known_done = g.issued
        e("s_barrier")
        e(f"s_cmp_lg_u32 s{S_WAVE}, 0")
        e("s_cbranch_scc1 L_skip_atomic")
        e(f"s_lshl_b32 s{S_U+2}, s{S_KVH}, 5")
        g.vm(f"buffer_atomic_add v{VB}, v{VA}, {sr(R_DBG,4)}, s{S_U+2} offen sc0")
        e("s_waitcnt vmcnt(0)")
        g.known_done = g.issued
        e(f"ds_write_b32 v{VA}, v{VB} offset:{L_KZ}")
        e("s_waitcnt lgkmcnt(0)")
        g.lab("L_skip_atomic")
        e("s_barrier")
        e(f"ds_read_b32 v{VB}, v{VA} offset:{L_KZ}")
        e("s_waitcnt lgkmcnt(0)")
        e(f"v_readfirstlane_b32 s{S_T0}, v{VB}")
        e("s_mov_b64 exec, -1")
        g.nop(2)
    else:
        e("s_mov_b64 exec, -1")
        if stamp:
            e("s_waitcnt vmcnt(0)")
            g.known_done = g.issued
    if stamp:
        e(f"s_memrealtime {sr(S_TS+4,2)}")
        e("s_waitcnt lgkmcnt(0)")
        e(f"s_lshl_b32 s{S_T1}, s2, 3")
        e(f"s_add_u32 s{S_T1}, s{S_T1}, s{S_WAVE}")
        e(f"s_lshl_b32 s{S_T1}, s{S_T1}, 5")
        e(f"s_add_u32 s{S_T1}, s{S_T1}, 0x100000")
        e(f"s_getreg_b32 s{S_TS+6}, hwreg(HW_REG_XCC_ID)")
        e(f"s_getreg_b32 s{S_TS+7}, hwreg(HW_REG_HW_ID)")
        e(f"s_and_b32 s{S_TS+6}, s{S_TS+6}, 15")
        e(f"s_lshl_b32 s{S_TS+7}, s{S_TS+7}, 4")
        e(f"s_or_b32 s{S_TS+6}, s{S_TS+6}, s{S_TS+7}")
        for k in range(4):
            e(f"v_mov_b32 v{X+k}, s{S_TS+2*k}")
        e("s_mov_b64 exec, 1")
        g.vm(f"buffer_store_dwordx4 {vr(X,4)}, v{VA}, {sr(R_WS,4)}, s{S_T1} offen")
        for k in range(4):
            e(f"v_mov_b32 v{X+4+k}, s{S_TX+2*k}")
        g.vm(f"buffer_store_dwordx4 {vr(X+4,4)}, v{VA}, {sr(R_WS,4)}, s{S_T1} offen offset:16")
        e("s_mov_b64 exec, -1")
    ldpol = " sc1"
    if mode == "two":
        ldpol = ""
        g.lab("L_end")
        e("s_endpgm")
        g.L.append(".p2align 8")
        g.L.append(".globl combine_kernel")
        g.L.append(".type combine_kernel,@function")
        g.lab("combine_kernel")
        g.issued = 0; g.known_done = 0
        e("s_cmp_ge_u32 s2, 64")
        e("s_cbranch_scc1 L_end2")
        e(f"s_load_dwordx2 {sr(S_OUT,2)}, s[0:1], 56")
        e(f"s_load_dwordx2 {sr(S_WS,2)}, s[0:1], 72")
        e(f"v_mov_b32 v{V_LANE}, v0")
        e(f"v_lshrrev_b32 v{V_G}, 4, v{V_LANE}")
        e(f"v_and_b32 v{V_N}, 15, v{V_LANE}")
        e(f"v_and_b32 v{V_H}, 3, v{V_LANE}")
        e(f"s_and_b32 s{S_WAVE}, s2, 7")
        e(f"s_lshr_b32 s{S_QO}, s2, 3")
        e(f"s_lshl_b32 s{S_QO}, s{S_QO}, 10")
        e(f"s_lshl_b32 s{S_REC}, s2, 13")
        e(f"s_lshl_b32 s{S_REC+1}, s2, 9")
        e(f"s_add_u32 s{S_REC+1}, s{S_REC+1}, {WS_E}")
        for r, n in ((R_OUT, 8192), (R_WS, 1 << 29)):
            e(f"s_mov_b32 s{r+2}, 0x{n:x}")
            e(f"s_mov_b32 s{r+3}, 0x00020000")
        e("s_waitcnt lgkmcnt(0)")
        for r, p in ((R_OUT, S_OUT), (R_WS, S_WS)):
            e(f"s_mov_b32 s{r}, s{p}")
            e(f"s_mov_b32 s{r+1}, s{p+1}")
    else:
        e(f"s_cmp_lg_u32 s{S_T0}, 31")
        e("s_cbranch_scc1 L_end")

    g.c("final combine")
    OB = V_BUF
    EB = V_BUF + 32
    e(f"v_lshlrev_b32 v{VA}, 4, v{V_LANE}")
    e(f"v_lshlrev_b32 v{VB}, 4, v{V_G}")
    ie = []
    for k in range(8):
        ie.append(g.vm(f"buffer_load_dwordx4 {vr(EB+4*k,4)}, v{VB}, {sr(R_WS,4)}, s{S_REC+1} offen offset:{k*64}{ldpol}"))
    io = []
    e(f"s_add_u32 s{S_T1}, s{S_REC}, 4096")
    for k in range(8):
        so = S_REC if k < 4 else S_T1
        io.append(g.vm(f"buffer_load_dwordx4 {vr(OB+4*k,4)}, v{VA}, {sr(R_WS,4)}, s{so} offen offset:{(k&3)*1024}{ldpol}"))
    VOUT = V_T + 5
    e(f"v_lshrrev_b32 v{VX}, 2, v{V_N}")
    e(f"v_lshl_add_u32 v{VX}, v{V_H}, 2, v{VX}")
    e(f"v_lshlrev_b32 v{VOUT}, 1, v{VX}")
    e(f"s_lshl_b32 s{S_T0}, s{S_WAVE}, 5")
    e(f"s_add_u32 s{S_T0}, s{S_T0}, s{S_QO}")
    g.wait_vm(ie[-1])
    MX = V_S
    M2 = V_S + 4
    for h in range(4):
        e(f"v_max3_f32 v{MX+h}, v{EB+h}, v{EB+4+h}, v{EB+8+h}")
        e(f"v_max3_f32 v{MX+h}, v{MX+h}, v{EB+12+h}, v{EB+16+h}")
        e(f"v_max3_f32 v{MX+h}, v{MX+h}, v{EB+20+h}, v{EB+24+h}")
        e(f"v_max_f32 v{MX+h}, v{MX+h}, v{EB+28+h}")
    for h in range(4):
        e(f"v_mov_b32 v{M2+h}, v{MX+h}")
    g.nop(1)
    for h in range(4):
        e(f"v_permlane16_swap_b32 v{MX+h}, v{M2+h}")
    for h in range(4):
        e(f"v_max_f32 v{MX+h}, v{MX+h}, v{M2+h}")
    for h in range(4):
        e(f"v_mov_b32 v{M2+h}, v{MX+h}")
    g.nop(1)
    for h in range(4):
        e(f"v_permlane32_swap_b32 v{MX+h}, v{M2+h}")
    for h in range(4):
        e(f"v_max_f32 v{MX+h}, v{MX+h}, v{M2+h}")
    for k in range(8):
        for h in range(4):
            e(f"v_sub_f32 v{EB+4*k+h}, v{EB+4*k+h}, v{MX+h}")
    for k in range(32):
        e(f"v_exp_f32 v{EB+k}, v{EB+k}")
    DN = V_S + 8
    NU = V_S + 12
    g.nop(1)
    for h in range(4):
        e(f"v_add_f32 v{DN+h}, v{EB+h}, v{EB+4+h}")
    for k in range(2, 8):
        for h in range(4):
            e(f"v_add_f32 v{DN+h}, v{DN+h}, v{EB+4*k+h}")
    for k in range(8):
        g.wait_vm(io[k])
        for h in range(4):
            if k == 0:
                e(f"v_mul_f32 v{NU+h}, v{EB+h}, v{OB+h}")
            else:
                e(f"v_fmac_f32 v{NU+h}, v{EB+4*k+h}, v{OB+4*k+h}")
    g.nop(2)
    for base in (NU, DN):
        e(f"v_permlane16_swap_b32 v{base}, v{base+1}")
        e(f"v_permlane16_swap_b32 v{base+2}, v{base+3}")
    for base in (NU, DN):
        e(f"v_add_f32 v{base}, v{base}, v{base+1}")
        e(f"v_add_f32 v{base+2}, v{base+2}, v{base+3}")
    g.nop(2)
    for base in (NU, DN):
        e(f"v_permlane32_swap_b32 v{base}, v{base+2}")
    for base in (NU, DN):
        e(f"v_add_f32 v{base}, v{base}, v{base+2}")
    e(f"v_rcp_f32 v{DN}, v{DN}")
    e(f"v_lshl_add_u32 v{VOUT}, v{V_G}, 8, v{VOUT}")
    e(f"v_mul_f32 v{NU}, v{NU}, v{DN}")
    e(f"v_cvt_pk_bf16_f32 v{NU}, v{NU}, v{NU}")
    g.vm(f"buffer_store_short v{NU}, v{VOUT}, {sr(R_OUT,4)}, s{S_T0} offen")
    g.lab("L_end2" if mode == "two" else "L_end")
    e("s_endpgm")

    body = "\n".join(g.L)
    nv = (NV + 7) // 8 * 8
    if mode == "two":
        text = HEADER + f"; @launch kernel={NAME}_kernel grid=(256,1,1) block=(512,1,1) lds={LDS}\n"
        text += f"; @launch kernel=combine_kernel grid=(64,1,1) block=(64,1,1) lds=0\n"
    else:
        text = HEADER + f"; @launch grid=(256,1,1) block=(512,1,1) lds={LDS}\n"
    text += f""".amdgcn_target "amdgcn-amd-amdhsa--gfx950"
.text
.globl {NAME}_kernel
.p2align 8
.type {NAME}_kernel,@function
{NAME}_kernel:
{body}
.section .rodata,"a"
.p2align 6
.amdhsa_kernel {NAME}_kernel
  .amdhsa_next_free_vgpr {nv}
  .amdhsa_next_free_sgpr {NSGPR}
  .amdhsa_accum_offset {nv}
  .amdhsa_group_segment_fixed_size 0
  .amdhsa_kernarg_size 80
  .amdhsa_user_sgpr_count 2
  .amdhsa_user_sgpr_kernarg_segment_ptr 1
  .amdhsa_system_sgpr_workgroup_id_x 1
  .amdhsa_float_denorm_mode_32 3
.end_amdhsa_kernel
"""
    if mode == "two":
        text += f""".p2align 6
.amdhsa_kernel combine_kernel
  .amdhsa_next_free_vgpr {V_BUF+64}
  .amdhsa_next_free_sgpr {NSGPR}
  .amdhsa_accum_offset {V_BUF+64}
  .amdhsa_group_segment_fixed_size 0
  .amdhsa_kernarg_size 80
  .amdhsa_user_sgpr_count 2
  .amdhsa_user_sgpr_kernarg_segment_ptr 1
  .amdhsa_system_sgpr_workgroup_id_x 1
  .amdhsa_float_denorm_mode_32 3
.end_amdhsa_kernel
"""
    return text


if __name__ == "__main__":
    ap = argparse.ArgumentParser()
    ap.add_argument("-o", default=f"cdna_kernels/{NAME}.s")
    ap.add_argument("--W", type=int, default=32)
    ap.add_argument("--pol", default="")
    ap.add_argument("--vs_at", type=int, default=24)
    ap.add_argument("--stamp", action="store_true")
    ap.add_argument("--noatomic", action="store_true")
    ap.add_argument("--mode", default="wave")
    ap.add_argument("--polv", default=None)
    a = ap.parse_args()
    open(a.o, "w").write(gen(W=a.W, pol=a.pol, vs_at=a.vs_at, stamp=a.stamp, noatomic=a.noatomic, mode=a.mode, polv=a.polv))
    print("wrote", a.o)
```

```python
import sys, math, argparse
from gen import G, vr, sr, NAME, HEADER, f32bits


def gen(pol="nt", NS=10, J2=0, PHI=20, stamp=False, nv_force=0, lds_force=0, ctr_stride=16):
    g = G()
    e = g.e
    pol = (" " + pol) if pol else ""
    C = (128.0 ** -0.5) * math.log2(math.e)
    NR = 256
    assert 2 <= NS <= 16

    S_Q, S_QK, S_QV, S_KS, S_KZ, S_VS, S_VZ, S_OUT, S_DBG, S_WS = 4, 6, 8, 10, 12, 14, 16, 18, 20, 22
    R_K, R_V, R_VS, R_VZ, R_Q, R_KS, R_KZ, R_OUT, R_WS, R_DBG = 24, 28, 32, 36, 40, 44, 48, 52, 56, 60
    S_STRM, S_WGI, S_KVH, S_WAVE, S_C, S_MASK = 64, 65, 66, 67, 68, 69
    S_BKV, S_BVS, S_PHI, S_OFF, S_OFFS, S_R, S_TK, S_NF = 70, 71, 72, 73, 74, 75, 76, 77
    S_T0, S_T1 = 78, 79
    S_ODD, S_VALID = 80, 82
    S_AL = 84
    S_CTR = 88
    S_FL = 89
    S_QO = 90
    S_T2 = 91
    S_TS = 92
    NSGPR = 102

    V_LANE, V_KO, V_VO, V_SO, V_WV, V_G, V_N, V_H = 1, 2, 3, 4, 5, 6, 7, 8
    V_SLOT = 9
    V_M, V_L = 10, 11
    V_T = 12
    V_QB = 20
    V_NC = 28
    V_D = 32
    V_S = 40
    V_PA = 44
    V_VS = 46
    V_VZ = 48
    V_VZ2 = 50
    V_PK = 52
    V_ACC = 68
    V_Z = 100
    V_BUF = 104
    NV = V_BUF + 96
    if nv_force:
        NV = max(NV, nv_force)

    L_QS = 0
    L_KZ = 2048
    L_ML = 2304
    L_FLAG = 2432
    L_SLOT = 2560
    L_O = 3840
    assert L_O % 256 == 0
    LDS = L_O + 4 * 4608
    if lds_force:
        LDS = max(LDS, lds_force)

    WS_E = 32 * 16384

    e("s_cmp_ge_u32 s2, 256")
    e("s_cbranch_scc1 L_end")
    e("s_load_dwordx16 s[4:19], s[0:1], 0")
    e("s_load_dwordx4 s[20:23], s[0:1], 64")
    if stamp:
        e(f"s_memrealtime {sr(S_TS,2)}")
    e(f"v_and_b32 v{V_LANE}, 63, v0")
    e(f"v_lshrrev_b32 v{V_WV}, 6, v0")
    e(f"v_lshrrev_b32 v{V_G}, 4, v{V_LANE}")
    e(f"v_and_b32 v{V_N}, 15, v{V_LANE}")
    e(f"v_and_b32 v{V_H}, 3, v{V_LANE}")
    e(f"v_readfirstlane_b32 s{S_WAVE}, v{V_WV}")
    T0, T1, T2, T3, T4, T5, T6, T7 = range(V_T, V_T + 8)
    e(f"v_lshlrev_b32 v{V_KO}, 13, v{V_WV}")
    e(f"v_lshrrev_b32 v{T0}, 2, v{V_N}")
    e(f"v_lshl_add_u32 v{V_KO}, v{T0}, 11, v{V_KO}")
    e(f"v_bfe_u32 v{T0}, v{V_N}, 1, 1")
    e(f"v_lshl_add_u32 v{V_KO}, v{T0}, 9, v{V_KO}")
    e(f"v_and_b32 v{T7}, 1, v{V_N}")
    e(f"v_lshl_add_u32 v{V_KO}, v{T7}, 6, v{V_KO}")
    e(f"v_lshl_add_u32 v{V_KO}, v{V_G}, 4, v{V_KO}")
    e(f"v_lshlrev_b32 v{V_VO}, 13, v{V_WV}")
    e(f"v_lshl_add_u32 v{V_VO}, v{V_G}, 11, v{V_VO}")
    e(f"v_lshl_add_u32 v{V_VO}, v{V_N}, 4, v{V_VO}")
    e(f"v_lshlrev_b32 v{V_SO}, 5, v{V_WV}")
    e(f"v_lshl_add_u32 v{V_SO}, v{V_G}, 3, v{V_SO}")
    e(f"v_lshlrev_b32 v{T0}, 2, v0")
    e(f"v_lshlrev_b32 v{T1}, 2, v{V_LANE}")
    e(f"s_lshr_b32 s{S_STRM}, s2, 4")
    e(f"s_and_b32 s{S_WGI}, s2, 15")
    e(f"s_lshr_b32 s{S_KVH}, s2, 5")
    e(f"s_lshl_b32 s{S_BKV}, s{S_STRM}, 23")
    e(f"s_lshl_b32 s{S_BVS}, s{S_STRM}, 15")
    e(f"s_mul_i32 s{S_PHI}, s{S_STRM}, {PHI}")
    e(f"s_lshl_b32 s{S_QO}, s{S_KVH}, 10")
    e(f"s_lshl_b32 s{S_T1}, s{S_STRM}, 8")
    e(f"s_mul_i32 s{S_CTR}, s{S_STRM}, {ctr_stride}")
    e(f"s_mov_b32 s{S_C}, 0x{f32bits(C):08x}")
    e(f"s_mov_b32 s{S_MASK}, 0xffff0000")
    e(f"s_mov_b32 s{S_R}, 0")
    e(f"s_mov_b32 s{S_NF}, {NS}")

    def unit_offsets(sx):
        e(f"s_add_u32 s{S_T0}, s{sx}, s{S_PHI}")
        e(f"s_and_b32 s{S_T0}, s{S_T0}, {NR-1}")
        e(f"s_lshl_b32 s{S_OFF}, s{S_T0}, 15")
        e(f"s_add_u32 s{S_OFF}, s{S_OFF}, s{S_BKV}")
        e(f"s_lshl_b32 s{S_OFFS}, s{S_T0}, 7")
        e(f"s_add_u32 s{S_OFFS}, s{S_OFFS}, s{S_BVS}")

    unit_offsets(S_WGI)
    for r, n in ((R_K, 1 << 27), (R_V, 1 << 27), (R_VS, 1 << 19), (R_VZ, 1 << 19), (R_Q, 8192),
                 (R_KS, 4096), (R_KZ, 4096), (R_OUT, 8192), (R_WS, 1 << 29), (R_DBG, 256)):
        e(f"s_mov_b32 s{r+2}, 0x{n:x}")
        e(f"s_mov_b32 s{r+3}, 0x00020000")
    e("s_waitcnt lgkmcnt(0)")
    for r, p in ((R_Q, S_Q), (R_KS, S_KS), (R_KZ, S_KZ), (R_K, S_QK)):
        e(f"s_mov_b32 s{r}, s{p}")
        e(f"s_mov_b32 s{r+1}, s{p+1}")
    g.vm(f"buffer_load_dword v{T2}, v{T0}, {sr(R_Q,4)}, s{S_QO} offen")
    g.vm(f"buffer_load_dword v{T3}, v{T1}, {sr(R_KS,4)}, s{S_T1} offen")
    i_kz = g.vm(f"buffer_load_dword v{T4}, v{T1}, {sr(R_KZ,4)}, s{S_T1} offen")

    def ldK(k):
        a, c = k >> 2, k & 3
        return g.vm(f"buffer_load_dwordx4 {vr(V_BUF+4*k,4)}, v{V_KO}, {sr(R_K,4)}, s{S_OFF} offen offset:{a*1024+c*128}{pol}")

    def ldV(k):
        hv, i = k >> 2, k & 3
        return g.vm(f"buffer_load_dwordx4 {vr(V_BUF+32+4*k,4)}, v{V_VO}, {sr(R_V,4)}, s{S_OFF} offen offset:{i*512+hv*256}{pol}")

    def ldVS():
        return g.vm(f"buffer_load_dwordx2 {vr(V_VS,2)}, v{V_SO}, {sr(R_VS,4)}, s{S_OFFS} offen")

    def ldVZ():
        return g.vm(f"buffer_load_dwordx2 {vr(V_VZ,2)}, v{V_SO}, {sr(R_VZ,4)}, s{S_OFFS} offen")

    for k in range(8):
        ldK(k)
    for r, p in ((R_V, S_QV), (R_VS, S_VS), (R_VZ, S_VZ), (R_OUT, S_OUT), (R_WS, S_WS), (R_DBG, S_DBG)):
        e(f"s_mov_b32 s{r}, s{p}")
        e(f"s_mov_b32 s{r+1}, s{p+1}")
    ldVS()
    ldVZ()
    for k in range(8):
        ldV(k)

    e(f"v_and_b32 v{T5}, 8, v{V_LANE}")
    e(f"v_cmp_ne_u32 {sr(S_ODD,2)}, 0, v{T5}")
    e(f"v_and_b32 v{T6}, 4, v{V_LANE}")
    e(f"v_cmp_eq_u32 {sr(S_VALID,2)}, 0, v{T6}")
    e(f"v_lshlrev_b32 v{V_SLOT}, 4, v0")
    e(f"v_add_u32 v{V_SLOT}, s{S_WGI}, v{V_SLOT}")
    e(f"v_cmp_gt_u32 vcc, {NS}, v0")
    e(f"v_mov_b32 v{V_M}, 0xff7fffff")
    e(f"v_mov_b32 v{V_L}, 0")
    e(f"v_cndmask_b32 v{V_SLOT}, -1, v{V_SLOT}, vcc")
    e(f"ds_write_b32 v{T0}, v{V_SLOT} offset:{L_SLOT}")
    for x in range(36):
        e(f"v_mov_b32 v{V_ACC+x}, 0")
    e(f"v_lshlrev_b32 v{T5}, 7, v{T5}")
    e(f"v_lshl_add_u32 v{T5}, v{V_H}, 8, v{T5}")
    e(f"v_lshl_add_u32 v{T5}, v{T6}, 3, v{T5}")
    e(f"v_lshl_add_u32 v{T5}, v{V_G}, 3, v{T5}")
    e(f"v_lshlrev_b32 v{T7}, 5, v{T7}")
    e(f"v_lshl_add_u32 v{T7}, v{V_G}, 3, v{T7}")
    e(f"s_mov_b32 s{S_T0}, 0x07060302")
    g.wait_vm(i_kz)
    A0, A1, B0, B1 = V_D, V_D + 1, V_D + 2, V_D + 3
    e(f"v_lshlrev_b32 v{A0}, 16, v{T2}")
    e(f"v_and_b32 v{A1}, s{S_MASK}, v{T2}")
    e(f"v_lshlrev_b32 v{B0}, 16, v{T3}")
    e(f"v_and_b32 v{B1}, s{S_MASK}, v{T3}")
    e(f"v_mul_f32 v{A0}, v{A0}, v{B0}")
    e(f"v_mul_f32 v{A1}, v{A1}, v{B1}")
    e(f"v_and_b32 v{B0}, s{S_MASK}, v{A0}")
    e(f"v_and_b32 v{B1}, s{S_MASK}, v{A1}")
    e(f"v_sub_f32 v{B0}, v{A0}, v{B0}")
    e(f"v_sub_f32 v{B1}, v{A1}, v{B1}")
    e(f"v_perm_b32 v{A0}, v{A1}, v{A0}, s{S_T0}")
    e(f"v_perm_b32 v{B0}, v{B1}, v{B0}, s{S_T0}")
    e(f"ds_write_b32 v{T0}, v{A0} offset:{L_QS}")
    e(f"ds_write_b32 v{T0}, v{B0} offset:{L_QS+1024}")
    e(f"ds_write_b32 v{T1}, v{T4} offset:{L_KZ}")
    e(f"v_mov_b32 v{V_SLOT}, {L_SLOT+4}")
    e("s_waitcnt lgkmcnt(0)")
    e("s_barrier")
    for c in range(4):
        e(f"ds_read_b64 {vr(V_QB+2*c,2)}, v{T5} offset:{L_QS+64*c}")
    for c in range(4):
        e(f"ds_read_b64 {vr(V_PK+2*c,2)}, v{T7} offset:{L_KZ+64*c}")
    e("s_waitcnt lgkmcnt(0)")
    for ee in range(2):
        e(f"v_mfma_f32_16x16x32_bf16 {vr(V_NC,4)}, {vr(V_PK+4*ee,4)}, {vr(V_QB+4*ee,4)}, {'0' if ee == 0 else vr(V_NC,4)}")
    g.nop(10)
    for r in range(4):
        e(f"v_xor_b32 v{V_NC+r}, 0x80000000, v{V_NC+r}")

    def body(issue, tag):
        g.issued = 18
        g.known_done = 0
        iK = list(range(8))
        iVS, iVZ = 8, 9
        iV = list(range(10, 18))
        for p in range(4):
            a, ee = p >> 1, p & 1
            k0, k1 = 2 * p, 2 * p + 1
            b0, b1 = V_BUF + 4 * k0, V_BUF + 4 * k1
            pk = V_PK + 4 * (p & 1)
            g.wait_vm(iK[k0])
            for k in range(4):
                e(f"v_cvt_f32_i32 v{b0+k}, v{b0+k}")
            g.wait_vm(iK[k1])
            for k in range(4):
                e(f"v_cvt_f32_i32 v{b1+k}, v{b1+k}")
            e(f"v_cvt_pk_bf16_f32 v{pk}, v{b0}, v{b0+1}")
            e(f"v_cvt_pk_bf16_f32 v{pk+1}, v{b0+2}, v{b0+3}")
            e(f"v_cvt_pk_bf16_f32 v{pk+2}, v{b1}, v{b1+1}")
            e(f"v_cvt_pk_bf16_f32 v{pk+3}, v{b1+2}, v{b1+3}")
            if issue:
                ldK(k0)
                ldK(k1)
            else:
                g.nop(2)
            e(f"v_mfma_f32_16x16x32_bf16 {vr(V_D+4*a,4)}, {vr(pk,4)}, {vr(V_QB+4*ee,4)}, {vr(V_NC,4) if ee == 0 else vr(V_D+4*a,4)}")
        g.wait_vm(iVZ)
        X0, X1, X2, X3 = T4, T5, T6, T7
        e(f"v_lshlrev_b32 v{X0}, 16, v{V_VS}")
        e(f"v_and_b32 v{X1}, s{S_MASK}, v{V_VS}")
        e(f"v_lshlrev_b32 v{X2}, 16, v{V_VS+1}")
        e(f"v_and_b32 v{X3}, s{S_MASK}, v{V_VS+1}")
        e(f"v_mov_b32 v{V_VZ2}, v{V_VZ}")
        e(f"v_mov_b32 v{V_VZ2+1}, v{V_VZ+1}")
        if issue:
            ldVS()
            ldVZ()
        else:
            g.nop(2)
        e(f"v_add_f32_dpp v{V_S}, v{V_D+1}, v{V_D} row_ror:4 row_mask:0xf bank_mask:0xf")
        e(f"v_add_f32_dpp v{V_S+1}, v{V_D+3}, v{V_D+2} row_ror:4 row_mask:0xf bank_mask:0xf")
        e(f"v_add_f32_dpp v{V_S+2}, v{V_D+5}, v{V_D+4} row_ror:4 row_mask:0xf bank_mask:0xf")
        e(f"v_add_f32_dpp v{V_S+3}, v{V_D+7}, v{V_D+6} row_ror:4 row_mask:0xf bank_mask:0xf")
        e(f"v_add_f32_dpp v{V_S}, v{V_S}, v{V_S} row_ror:8 row_mask:0xf bank_mask:0xf")
        e(f"v_add_f32_dpp v{V_S+1}, v{V_S+1}, v{V_S+1} row_ror:8 row_mask:0xf bank_mask:0xf")
        e(f"v_add_f32_dpp v{V_S+2}, v{V_S+2}, v{V_S+2} row_ror:8 row_mask:0xf bank_mask:0xf")
        e(f"v_add_f32_dpp v{V_S+3}, v{V_S+3}, v{V_S+3} row_ror:8 row_mask:0xf bank_mask:0xf")
        e(f"v_max3_f32 v{T0}, v{V_S}, v{V_S+1}, v{V_S+2}")
        e(f"v_max_f32 v{T0}, v{T0}, v{V_S+3}")
        e(f"v_mov_b32 v{T1}, v{T0}")
        g.nop(2)
        e(f"v_permlane16_swap_b32 v{T0}, v{T1}")
        e(f"v_max_f32 v{T0}, v{T0}, v{T1}")
        e(f"v_mov_b32 v{T1}, v{T0}")
        g.nop(2)
        e(f"v_permlane32_swap_b32 v{T0}, v{T1}")
        e(f"v_max_f32 v{T0}, v{T0}, v{T1}")
        e(f"v_mul_f32 v{T0}, s{S_C}, v{T0}")
        e(f"v_cmp_gt_f32 vcc, v{T0}, v{V_M}")
        e(f"v_max_f32 v{T0}, v{T0}, v{V_M}")
        g.nop(1)
        e(f"s_and_b64 vcc, vcc, {sr(S_VALID,2)}")
        e(f"s_cbranch_scc0 L_noresc_{tag}")
        e(f"v_sub_f32 v{T1}, v{V_M}, v{T0}")
        e(f"v_exp_f32 v{T1}, v{T1}")
        g.nop(1)
        e(f"v_mul_f32 v{V_L}, v{V_L}, v{T1}")
        for h in range(4):
            e(f"v_readlane_b32 s{S_AL+h}, v{T1}, {h}")
        g.nop(2)
        for x in range(0, 36, 2):
            e(f"v_pk_mul_f32 {vr(V_ACC+x,2)}, {vr(V_ACC+x,2)}, {sr(S_AL+(x&2),2)}")
        g.lab(f"L_noresc_{tag}")
        e(f"v_mov_b32 v{V_M}, v{T0}")
        for i in range(4):
            e(f"v_fma_f32 v{V_S+i}, v{V_S+i}, s{S_C}, -v{T0}")
        for i in range(4):
            e(f"v_exp_f32 v{V_S+i}, v{V_S+i}")
        e(f"v_add_f32 v{T0}, v{V_S}, v{V_S+1}")
        e(f"v_mul_f32 v{X0}, v{X0}, v{V_S}")
        e(f"v_add_f32 v{T1}, v{V_S+2}, v{V_S+3}")
        e(f"v_mul_f32 v{X1}, v{X1}, v{V_S+1}")
        e(f"v_mul_f32 v{X2}, v{X2}, v{V_S+2}")
        e(f"v_mul_f32 v{X3}, v{X3}, v{V_S+3}")
        e(f"v_add_f32 v{V_L}, v{V_L}, v{T0}")
        for i, X in enumerate((X0, X1, X2, X3)):
            e(f"v_and_b32 v{V_S+i}, s{S_MASK}, v{X}")
        e(f"v_add_f32 v{V_L}, v{V_L}, v{T1}")
        for i, X in enumerate((X0, X1, X2, X3)):
            e(f"v_sub_f32 v{X}, v{X}, v{V_S+i}")
        for i, X in enumerate((X0, X1, X2, X3)):
            e(f"v_cndmask_b32 v{X}, v{V_S+i}, v{X}, {sr(S_ODD,2)}")
        e(f"v_cvt_pk_bf16_f32 v{V_PA}, v{X0}, v{X1}")
        e(f"v_cvt_pk_bf16_f32 v{V_PA+1}, v{X2}, v{X3}")
        g.nop(2)
        e(f"v_mfma_f32_16x16x16_bf16 {vr(V_Z,4)}, {vr(V_PA,2)}, {vr(V_VZ2,2)}, {vr(V_Z,4)}")
        for p in range(4):
            hv, q = p >> 1, p & 1
            k0, k1 = 2 * p, 2 * p + 1
            b0, b1 = V_BUF + 32 + 4 * k0, V_BUF + 32 + 4 * k1
            pk = V_PK + 8 * hv
            g.wait_vm(iV[k0])
            for k in range(4):
                e(f"v_cvt_f32_i32 v{b0+k}, v{b0+k}")
            g.wait_vm(iV[k1])
            for k in range(4):
                e(f"v_cvt_f32_i32 v{b1+k}, v{b1+k}")
            for j in range(4):
                e(f"v_cvt_pk_bf16_f32 v{pk+2*j+q}, v{b0+j}, v{b1+j}")
            if issue:
                ldV(k0)
                ldV(k1)
            elif q == 1:
                g.nop(1)
            if q == 1:
                for j in range(4):
                    acc = V_ACC + 4 * (hv * 4 + j)
                    e(f"v_mfma_f32_16x16x16_bf16 {vr(acc,4)}, {vr(V_PA,2)}, {vr(pk+2*j,2)}, {vr(acc,4)}")

    g.lab("L_loop")
    e(f"ds_read_b32 v{T0}, v{V_SLOT}")
    e("s_waitcnt lgkmcnt(0)")
    e(f"v_readfirstlane_b32 s{S_T1}, v{T0}")
    g.nop(1)
    e(f"s_cmp_eq_u32 s{S_T1}, -1")
    e("s_cbranch_scc1 L_loop")
    e(f"s_cmp_ge_u32 s{S_T1}, {NR}")
    e("s_cbranch_scc1 L_last")
    unit_offsets(S_T1)
    e(f"s_add_u32 s{S_T0}, s{S_R}, 2")
    e(f"s_sub_u32 s{S_T0}, s{S_T0}, s{S_NF}")
    e(f"s_or_b32 s{S_FL}, s{S_T0}, s{S_WAVE}")
    e("s_cbranch_scc1 L_nofetch")
    e(f"s_mov_b32 s{S_TK}, 1")
    e(f"s_atomic_add s{S_TK}, {sr(S_DBG,2)}, s{S_CTR} glc")
    g.lab("L_nofetch")
    body(True, "a")
    e(f"s_cmp_lg_u32 s{S_FL}, 0")
    e("s_cbranch_scc1 L_nopost")
    e("s_waitcnt lgkmcnt(0)")
    if J2:
        e(f"s_min_u32 s{S_T0}, s{S_TK}, {J2}")
        e(f"s_add_u32 s{S_T0}, s{S_T0}, s{S_TK}")
        e(f"s_add_u32 s{S_T0}, s{S_T0}, {NS*16}")
        e(f"s_add_u32 s{S_T1}, s{S_T0}, 1")
        e(f"s_cmp_lt_u32 s{S_TK}, {J2}")
        e(f"s_cselect_b32 s{S_T1}, s{S_T1}, -1")
        e(f"s_cselect_b32 s{S_T2}, 2, 1")
        e(f"v_mov_b32 v{T0}, s{S_T0}")
        e(f"v_mov_b32 v{T1}, s{S_T1}")
        e(f"ds_write2_b32 v{V_SLOT}, v{T0}, v{T1} offset0:1 offset1:2")
        e(f"s_add_u32 s{S_NF}, s{S_NF}, s{S_T2}")
    else:
        e(f"s_add_u32 s{S_T0}, s{S_TK}, {NS*16}")
        e(f"v_mov_b32 v{T0}, s{S_T0}")
        e(f"ds_write_b32 v{V_SLOT}, v{T0} offset:4")
        e(f"s_add_u32 s{S_NF}, s{S_NF}, 1")
    g.lab("L_nopost")
    e(f"s_add_u32 s{S_R}, s{S_R}, 1")
    e(f"v_add_u32 v{V_SLOT}, 4, v{V_SLOT}")
    e("s_branch L_loop")
    g.lab("L_last")
    body(False, "b")

    g.c("WG combine")
    if stamp:
        e(f"s_memrealtime {sr(S_TS+2,2)}")
    e(f"v_mov_b32 v{T1}, v{V_L}")
    VA, VB0, VB1, VY = T2, T3, T4, T5
    e(f"v_mul_u32_u24 v{VA}, 4608, v{V_WV}")
    e(f"v_lshrrev_b32 v{T0}, 5, v{V_LANE}")
    e(f"v_permlane16_swap_b32 v{V_L}, v{T1}")
    e(f"v_lshl_add_u32 v{VA}, v{T0}, 8, v{VA}")
    e(f"v_add_f32 v{V_L}, v{V_L}, v{T1}")
    e(f"v_mov_b32 v{T1}, v{V_L}")
    e(f"v_lshl_add_u32 v{VA}, v{V_N}, 4, v{VA}")
    e(f"v_lshrrev_b32 v{T0}, 1, v{V_WV}")
    e(f"v_permlane32_swap_b32 v{V_L}, v{T1}")
    e(f"v_lshl_add_u32 v{T0}, v{T0}, 2, v{V_G}")
    e(f"v_add_f32 v{V_L}, v{V_L}, v{T1}")
    e(f"v_mul_u32_u24 v{VB0}, 576, v{T0}")
    e(f"v_and_b32 v{T0}, 1, v{V_WV}")
    e(f"v_lshl_add_u32 v{VB0}, v{T0}, 7, v{VB0}")
    e(f"v_lshl_add_u32 v{VB0}, v{V_N}, 2, v{VB0}")
    e(f"v_add_u32 v{VB1}, 64, v{VB0}")
    e(f"v_lshlrev_b32 v{VY}, 3, v{V_H}")
    e(f"v_lshl_add_u32 v{T0}, v{V_WV}, 5, v{VY}")
    e("s_mov_b64 exec, 0xf")
    assert V_M % 2 == 0 and V_L == V_M + 1
    e(f"ds_write_b64 v{T0}, {vr(V_M,2)} offset:{L_ML}")
    e("s_mov_b64 exec, -1")
    for blk in range(8):
        for r in range(4):
            e(f"v_sub_f32 v{V_ACC+4*blk+r}, v{V_ACC+4*blk+r}, v{V_Z+r}")
    e("s_mov_b32 exec_lo, 0xffff")
    e("s_mov_b32 exec_hi, 0xffff")
    for blk in range(8):
        e(f"ds_write_b128 v{VA}, {vr(V_ACC+4*blk,4)} offset:{L_O+blk*576}")
    e("s_mov_b64 exec, -1")
    e("s_waitcnt lgkmcnt(0)")
    e("s_barrier")
    RB = V_BUF
    MB = V_BUF + 16
    for w in range(4):
        e(f"ds_read_b64 {vr(MB+2*w,2)}, v{VY} offset:{L_ML+w*32}")
    for p in range(2):
        for w in range(4):
            o0 = L_O // 256 + w * 18
            e(f"ds_read2st64_b32 {vr(RB+8*p+2*w,2)}, v{VB1 if p else VB0} offset0:{o0} offset1:{o0+1}")
    S_REC, S_RECE, S_OWN, S_OWNE = S_BKV, S_BVS, S_OFF, S_OFFS
    e(f"s_lshl_b32 s{S_T0}, s{S_KVH}, 2")
    e(f"s_add_u32 s{S_T0}, s{S_T0}, s{S_WAVE}")
    e(f"s_lshl_b32 s{S_REC}, s{S_T0}, 14")
    e(f"s_and_b32 s{S_T1}, s2, 31")
    e(f"s_lshl_b32 s{S_OWN}, s{S_T1}, 9")
    e(f"s_add_u32 s{S_OWN}, s{S_OWN}, s{S_REC}")
    e(f"s_lshl_b32 s{S_RECE}, s{S_T0}, 9")
    e(f"s_add_u32 s{S_RECE}, s{S_RECE}, {WS_E}")
    e(f"s_lshl_b32 s{S_OWNE}, s{S_T1}, 4")
    e(f"s_add_u32 s{S_OWNE}, s{S_OWNE}, s{S_RECE}")
    e(f"v_lshlrev_b32 v{VA}, 2, v{V_LANE}")
    e("s_waitcnt lgkmcnt(8)")
    VMX, VLs, VR = T0, T1, T6
    e(f"v_max3_f32 v{VMX}, v{MB}, v{MB+2}, v{MB+4}")
    e(f"v_max_f32 v{VMX}, v{VMX}, v{MB+6}")
    for w in range(4):
        e(f"v_sub_f32 v{MB+2*w}, v{MB+2*w}, v{VMX}")
    for w in range(4):
        e(f"v_exp_f32 v{MB+2*w}, v{MB+2*w}")
    g.nop(1)
    e(f"v_mul_f32 v{VLs}, v{MB}, v{MB+1}")
    for w in range(1, 4):
        e(f"v_fmac_f32 v{VLs}, v{MB+2*w}, v{MB+2*w+1}")
    e("s_waitcnt lgkmcnt(0)")
    e(f"v_rcp_f32 v{VR}, v{VLs}")
    e(f"v_log_f32 v{VLs}, v{VLs}")
    for x in range(8):
        e(f"v_add_f32 v{RB+2*x}, v{RB+2*x}, v{RB+2*x+1}")
    X = V_BUF + 32
    for p in range(2):
        e(f"v_mul_f32 v{X+4*p}, v{MB}, v{RB+8*p}")
        for w in range(1, 4):
            e(f"v_fmac_f32 v{X+4*p}, v{MB+2*w}, v{RB+8*p+2*w}")
    e(f"v_mul_f32 v{X}, v{X}, v{VR}")
    e(f"v_mul_f32 v{X+4}, v{X+4}, v{VR}")
    e(f"v_add_f32 v{X+8}, v{VMX}, v{VLs}")
    g.nop(1)
    for b in range(3):
        for k in range(1, 4):
            e(f"v_mov_b32_dpp v{X+4*b+k}, v{X+4*b} quad_perm:[{k},{k},{k},{k}] row_mask:0xf bank_mask:0xf")
    e("s_mov_b32 exec_lo, 0x11111111")
    e("s_mov_b32 exec_hi, 0x11111111")
    g.issued = 0
    g.known_done = 0
    g.vm(f"buffer_store_dwordx4 {vr(X,4)}, v{VA}, {sr(R_WS,4)}, s{S_OWN} offen sc1")
    g.vm(f"buffer_store_dwordx4 {vr(X+4,4)}, v{VA}, {sr(R_WS,4)}, s{S_OWN} offen offset:256 sc1")
    e("s_mov_b64 exec, 1")
    g.vm(f"buffer_store_dwordx4 {vr(X+8,4)}, v{VA}, {sr(R_WS,4)}, s{S_OWNE} offen sc1")
    e(f"v_mov_b32 v{T1}, 1")
    e(f"s_lshl_b32 s{S_T2}, s{S_KVH}, 5")
    e(f"s_add_u32 s{S_T2}, s{S_T2}, 8")
    e("s_waitcnt vmcnt(0)")
    g.known_done = g.issued
    e("s_barrier")
    e(f"s_cmp_lg_u32 s{S_WAVE}, 0")
    e("s_cbranch_scc1 L_skip_atomic")
    g.vm(f"buffer_atomic_add v{T1}, v{VA}, {sr(R_DBG,4)}, s{S_T2} offen sc0")
    e("s_waitcnt vmcnt(0)")
    g.known_done = g.issued
    e(f"ds_write_b32 v{VA}, v{T1} offset:{L_FLAG}")
    e("s_waitcnt lgkmcnt(0)")
    g.lab("L_skip_atomic")
    e("s_barrier")
    e(f"ds_read_b32 v{T1}, v{VA} offset:{L_FLAG}")
    e("s_waitcnt lgkmcnt(0)")
    e(f"v_readfirstlane_b32 s{S_T0}, v{T1}")
    e("s_mov_b64 exec, -1")
    g.nop(2)
    if stamp:
        e(f"s_memrealtime {sr(S_TS+4,2)}")
        e("s_waitcnt lgkmcnt(0)")
        e(f"s_lshl_b32 s{S_T1}, s2, 2")
        e(f"s_add_u32 s{S_T1}, s{S_T1}, s{S_WAVE}")
        e(f"s_lshl_b32 s{S_T1}, s{S_T1}, 5")
        e(f"s_add_u32 s{S_T1}, s{S_T1}, 0x100000")
        e(f"s_getreg_b32 s{S_TS+6}, hwreg(HW_REG_XCC_ID)")
        e(f"s_getreg_b32 s{S_TS+7}, hwreg(HW_REG_HW_ID)")
        e(f"s_and_b32 s{S_TS+6}, s{S_TS+6}, 15")
        e(f"s_lshl_b32 s{S_TS+7}, s{S_TS+7}, 4")
        e(f"s_or_b32 s{S_TS+6}, s{S_TS+6}, s{S_TS+7}")
        for k in range(4):
            e(f"v_mov_b32 v{X+k}, s{S_TS+2*k}")
        e(f"v_mov_b32 v{X+4}, s{S_R}")
        e(f"v_mov_b32 v{X+5}, s{S_TS}")
        e(f"v_mov_b32 v{X+6}, s{S_TS}")
        e(f"v_mov_b32 v{X+7}, s{S_TS}")
        e("s_mov_b64 exec, 1")
        g.vm(f"buffer_store_dwordx4 {vr(X,4)}, v{VA}, {sr(R_WS,4)}, s{S_T1} offen")
        g.vm(f"buffer_store_dwordx4 {vr(X+4,4)}, v{VA}, {sr(R_WS,4)}, s{S_T1} offen offset:16")
        e("s_mov_b64 exec, -1")
        e("s_waitcnt vmcnt(0)")
        g.known_done = g.issued
    e(f"s_cmp_lg_u32 s{S_T0}, 31")
    e("s_cbranch_scc1 L_end")

    g.c("final combine")
    OB = V_BUF
    EB = V_BUF + 64
    e(f"v_lshlrev_b32 v{VA}, 9, v{V_G}")
    e(f"v_lshl_add_u32 v{VA}, v{V_N}, 4, v{VA}")
    e(f"v_lshlrev_b32 v{VB0}, 4, v{V_G}")
    ie = []
    for k in range(8):
        ie.append(g.vm(f"buffer_load_dwordx4 {vr(EB+4*k,4)}, v{VB0}, {sr(R_WS,4)}, s{S_RECE} offen offset:{k*64} sc1"))
    io = []
    for k in range(8):
        if k and k % 2 == 0:
            e(f"s_add_u32 s{S_REC}, s{S_REC}, 4096")
        for p in range(2):
            io.append(g.vm(f"buffer_load_dwordx4 {vr(OB+8*k+4*p,4)}, v{VA}, {sr(R_WS,4)}, s{S_REC} offen offset:{(k&1)*2048+p*256} sc1"))
    VOUT = T7
    e(f"v_lshrrev_b32 v{T0}, 2, v{V_N}")
    e(f"v_lshl_add_u32 v{T0}, v{V_H}, 2, v{T0}")
    e(f"v_lshlrev_b32 v{VOUT}, 1, v{T0}")
    e(f"v_lshl_add_u32 v{VOUT}, v{V_G}, 8, v{VOUT}")
    e(f"s_lshl_b32 s{S_T0}, s{S_WAVE}, 6")
    e(f"s_add_u32 s{S_T0}, s{S_T0}, s{S_QO}")
    g.wait_vm(ie[-1])
    MX = V_ACC
    M2 = V_ACC + 4
    for h in range(4):
        e(f"v_max3_f32 v{MX+h}, v{EB+h}, v{EB+4+h}, v{EB+8+h}")
        e(f"v_max3_f32 v{MX+h}, v{MX+h}, v{EB+12+h}, v{EB+16+h}")
        e(f"v_max3_f32 v{MX+h}, v{MX+h}, v{EB+20+h}, v{EB+24+h}")
        e(f"v_max_f32 v{MX+h}, v{MX+h}, v{EB+28+h}")
    for h in range(4):
        e(f"v_mov_b32 v{M2+h}, v{MX+h}")
    g.nop(1)
    for h in range(4):
        e(f"v_permlane16_swap_b32 v{MX+h}, v{M2+h}")
    for h in range(4):
        e(f"v_max_f32 v{MX+h}, v{MX+h}, v{M2+h}")
    for h in range(4):
        e(f"v_mov_b32 v{M2+h}, v{MX+h}")
    g.nop(1)
    for h in range(4):
        e(f"v_permlane32_swap_b32 v{MX+h}, v{M2+h}")
    for h in range(4):
        e(f"v_max_f32 v{MX+h}, v{MX+h}, v{M2+h}")
    for k in range(8):
        for h in range(4):
            e(f"v_sub_f32 v{EB+4*k+h}, v{EB+4*k+h}, v{MX+h}")
    for k in range(32):
        e(f"v_exp_f32 v{EB+k}, v{EB+k}")
    DN = V_ACC + 8
    NU = V_ACC + 12
    g.nop(1)
    for h in range(4):
        e(f"v_add_f32 v{DN+h}, v{EB+h}, v{EB+4+h}")
    for k in range(2, 8):
        for h in range(4):
            e(f"v_add_f32 v{DN+h}, v{DN+h}, v{EB+4*k+h}")
    for k in range(8):
        for p in range(2):
            g.wait_vm(io[2 * k + p])
            for h in range(4):
                if k == 0:
                    e(f"v_mul_f32 v{NU+4*p+h}, v{EB+h}, v{OB+4*p+h}")
                else:
                    e(f"v_fmac_f32 v{NU+4*p+h}, v{EB+4*k+h}, v{OB+8*k+4*p+h}")
    g.nop(2)
    bases = (DN, NU, NU + 4)
    for base in bases:
        e(f"v_permlane16_swap_b32 v{base}, v{base+1}")
        e(f"v_permlane16_swap_b32 v{base+2}, v{base+3}")
    for base in bases:
        e(f"v_add_f32 v{base}, v{base}, v{base+1}")
        e(f"v_add_f32 v{base+2}, v{base+2}, v{base+3}")
    g.nop(2)
    for base in bases:
        e(f"v_permlane32_swap_b32 v{base}, v{base+2}")
    for base in bases:
        e(f"v_add_f32 v{base}, v{base}, v{base+2}")
    e(f"v_rcp_f32 v{DN}, v{DN}")
    g.nop(1)
    e(f"v_mul_f32 v{NU}, v{NU}, v{DN}")
    e(f"v_mul_f32 v{NU+4}, v{NU+4}, v{DN}")
    e(f"v_cvt_pk_bf16_f32 v{NU}, v{NU}, v{NU+4}")
    g.vm(f"buffer_store_short v{NU}, v{VOUT}, {sr(R_OUT,4)}, s{S_T0} offen")
    g.vm(f"buffer_store_short_d16_hi v{NU}, v{VOUT}, {sr(R_OUT,4)}, s{S_T0} offen offset:32")
    g.lab("L_end")
    e("s_endpgm")

    body_t = "\n".join(g.L)
    nv = (NV + 7) // 8 * 8
    acc_off = min(nv, 256)
    text = HEADER + f"; @launch grid=(256,1,1) block=(256,1,1) lds={LDS}\n"
    text += f""".amdgcn_target "amdgcn-amd-amdhsa--gfx950"
.text
.globl {NAME}_kernel
.p2align 8
.type {NAME}_kernel,@function
{NAME}_kernel:
{body_t}
.section .rodata,"a"
.p2align 6
.amdhsa_kernel {NAME}_kernel
  .amdhsa_next_free_vgpr {nv}
  .amdhsa_next_free_sgpr {NSGPR}
  .amdhsa_accum_offset {acc_off}
  .amdhsa_group_segment_fixed_size 0
  .amdhsa_kernarg_size 80
  .amdhsa_user_sgpr_count 2
  .amdhsa_user_sgpr_kernarg_segment_ptr 1
  .amdhsa_system_sgpr_workgroup_id_x 1
  .amdhsa_float_denorm_mode_32 3
.end_amdhsa_kernel
"""
    return text


if __name__ == "__main__":
    ap = argparse.ArgumentParser()
    ap.add_argument("-o", default=f"cdna_kernels/{NAME}.s")
    ap.add_argument("--pol", default="nt")
    ap.add_argument("--NS", type=int, default=10)
    ap.add_argument("--J2", type=int, default=0)
    ap.add_argument("--PHI", type=int, default=20)
    ap.add_argument("--stamp", action="store_true")
    ap.add_argument("--nv", type=int, default=0)
    ap.add_argument("--lds", type=int, default=0)
    a = ap.parse_args()
    open(a.o, "w").write(gen(pol=a.pol, NS=a.NS, J2=a.J2, PHI=a.PHI, stamp=a.stamp, nv_force=a.nv, lds_force=a.lds))
    print("wrote", a.o)
```

```python
import sys, math, argparse
from gen import G, vr, sr, NAME, HEADER, f32bits


def gen(pol="nt", NS=10, J2=0, PHI=20, stamp=False, nv_force=0, lds_force=0, ctr_stride=16, iod=-1):
    g = G()
    e = g.e
    pol = (" " + pol) if pol else ""
    C = (128.0 ** -0.5) * math.log2(math.e)
    NR = 256
    assert 2 <= NS <= 16

    S_Q, S_QK, S_QV, S_KS, S_KZ, S_VS, S_VZ, S_OUT, S_DBG, S_WS = 4, 6, 8, 10, 12, 14, 16, 18, 20, 22
    R_K, R_V, R_VS, R_VZ, R_Q, R_KS, R_KZ, R_OUT, R_WS, R_DBG = 24, 28, 32, 36, 40, 44, 48, 52, 56, 60
    S_STRM, S_WGI, S_KVH, S_WAVE, S_C, S_MASK = 64, 65, 66, 67, 68, 69
    S_BKV, S_BVS, S_PHI, S_OFF, S_OFFS, S_R, S_TK, S_NF = 70, 71, 72, 73, 74, 75, 76, 77
    S_T0, S_T1 = 78, 79
    S_ODD, S_VALID = 80, 82
    S_AL = 84
    S_CTR = 88
    S_FL = 89
    S_QO = 90
    S_T2 = 91
    S_TS = 92
    NSGPR = 102

    V_LANE, V_KO, V_VO, V_SO, V_WV, V_G, V_N, V_H = 1, 2, 3, 4, 5, 6, 7, 8
    V_SLOT = 9
    V_M, V_L = 10, 11
    V_T = 12
    V_QB = 20
    V_NC = 28
    V_D = 32
    V_S = 40
    V_PA = 44
    V_VS = 46
    V_VZ = 48
    V_VZ2 = 50
    V_PK = 52
    V_ACC = 68
    V_Z = 100
    V_BUF = 104
    NV = V_BUF + 96
    if nv_force:
        NV = max(NV, nv_force)

    L_QS = 0
    L_KZ = 2048
    L_ML = 2304
    L_FLAG = 2432
    L_SLOT = 2560
    L_O = 3840
    assert L_O % 256 == 0
    LDS = L_O + 4 * 4608
    if lds_force:
        LDS = max(LDS, lds_force)

    WS_E = 32 * 16384

    e("s_cmp_ge_u32 s2, 256")
    e("s_cbranch_scc1 L_end")
    e("s_load_dwordx16 s[4:19], s[0:1], 0")
    e("s_load_dwordx4 s[20:23], s[0:1], 64")
    if stamp:
        e(f"s_memrealtime {sr(S_TS,2)}")
    e(f"v_and_b32 v{V_LANE}, 63, v0")
    e(f"v_lshrrev_b32 v{V_WV}, 6, v0")
    e(f"v_lshrrev_b32 v{V_G}, 4, v{V_LANE}")
    e(f"v_and_b32 v{V_N}, 15, v{V_LANE}")
    e(f"v_and_b32 v{V_H}, 3, v{V_LANE}")
    e(f"v_readfirstlane_b32 s{S_WAVE}, v{V_WV}")
    T0, T1, T2, T3, T4, T5, T6, T7 = range(V_T, V_T + 8)
    WSH = 14 if iod >= 0 else 13
    e(f"v_lshlrev_b32 v{V_KO}, {WSH}, v{V_WV}")
    e(f"v_lshrrev_b32 v{T0}, 2, v{V_N}")
    e(f"v_lshl_add_u32 v{V_KO}, v{T0}, 11, v{V_KO}")
    e(f"v_bfe_u32 v{T0}, v{V_N}, 1, 1")
    e(f"v_lshl_add_u32 v{V_KO}, v{T0}, 9, v{V_KO}")
    e(f"v_and_b32 v{T7}, 1, v{V_N}")
    e(f"v_lshl_add_u32 v{V_KO}, v{T7}, 6, v{V_KO}")
    e(f"v_lshl_add_u32 v{V_KO}, v{V_G}, 4, v{V_KO}")
    e(f"v_lshlrev_b32 v{V_VO}, {WSH}, v{V_WV}")
    e(f"v_lshl_add_u32 v{V_VO}, v{V_G}, 11, v{V_VO}")
    e(f"v_lshl_add_u32 v{V_VO}, v{V_N}, 4, v{V_VO}")
    e(f"v_lshlrev_b32 v{V_SO}, {WSH-8}, v{V_WV}")
    e(f"v_lshl_add_u32 v{V_SO}, v{V_G}, 3, v{V_SO}")
    e(f"v_lshlrev_b32 v{T0}, 2, v0")
    e(f"v_lshlrev_b32 v{T1}, 2, v{V_LANE}")
    e(f"s_lshr_b32 s{S_STRM}, s2, 4")
    e(f"s_and_b32 s{S_WGI}, s2, 15")
    e(f"s_lshr_b32 s{S_KVH}, s2, 5")
    e(f"s_lshl_b32 s{S_BKV}, s{S_STRM}, 23")
    e(f"s_lshl_b32 s{S_BVS}, s{S_STRM}, 15")
    e(f"s_mul_i32 s{S_PHI}, s{S_STRM}, {PHI}")
    e(f"s_lshl_b32 s{S_QO}, s{S_KVH}, 10")
    e(f"s_lshl_b32 s{S_T1}, s{S_STRM}, 8")
    e(f"s_mul_i32 s{S_CTR}, s{S_STRM}, {ctr_stride}")
    e(f"s_mov_b32 s{S_C}, 0x{f32bits(C):08x}")
    e(f"s_mov_b32 s{S_MASK}, 0xffff0000")
    e(f"s_mov_b32 s{S_R}, 0")
    e(f"s_mov_b32 s{S_NF}, {NS}")

    S_IOD = S_T2 + 0
    def unit_offsets(sx):
        if iod >= 0:
            e(f"s_lshr_b32 s{S_T0}, s{sx}, 3")
            e(f"s_lshl_b32 s{S_T0}, s{S_T0}, 2")
            e(f"s_and_b32 s{S_OFF}, s{sx}, 3")
            e(f"s_add_u32 s{S_T0}, s{S_T0}, s{S_OFF}")
            e(f"s_add_u32 s{S_T0}, s{S_T0}, s{S_PHI}")
            e(f"s_and_b32 s{S_T0}, s{S_T0}, 127")
            e(f"s_lshr_b32 s{S_OFF}, s{S_T0}, 3")
            e(f"s_xor_b32 s{S_OFF}, s{S_OFF}, s{sx}")
            if iod:
                e(f"s_xor_b32 s{S_OFF}, s{S_OFF}, 4")
            e(f"s_and_b32 s{S_OFF}, s{S_OFF}, 4")
            e(f"s_lshl_b32 s{S_T0}, s{S_T0}, 5")
            e(f"s_add_u32 s{S_T0}, s{S_T0}, s{S_OFF}")
            e(f"s_lshl_b32 s{S_OFF}, s{S_T0}, 11")
            e(f"s_add_u32 s{S_OFF}, s{S_OFF}, s{S_BKV}")
            e(f"s_lshl_b32 s{S_OFFS}, s{S_T0}, 3")
            e(f"s_add_u32 s{S_OFFS}, s{S_OFFS}, s{S_BVS}")
            return
        e(f"s_add_u32 s{S_T0}, s{sx}, s{S_PHI}")
        e(f"s_and_b32 s{S_T0}, s{S_T0}, {NR-1}")
        e(f"s_lshl_b32 s{S_OFF}, s{S_T0}, 15")
        e(f"s_add_u32 s{S_OFF}, s{S_OFF}, s{S_BKV}")
        e(f"s_lshl_b32 s{S_OFFS}, s{S_T0}, 7")
        e(f"s_add_u32 s{S_OFFS}, s{S_OFFS}, s{S_BVS}")

    unit_offsets(S_WGI)
    for r, n in ((R_K, 1 << 27), (R_V, 1 << 27), (R_VS, 1 << 19), (R_VZ, 1 << 19), (R_Q, 8192),
                 (R_KS, 4096), (R_KZ, 4096), (R_OUT, 8192), (R_WS, 1 << 29), (R_DBG, 256)):
        e(f"s_mov_b32 s{r+2}, 0x{n:x}")
        e(f"s_mov_b32 s{r+3}, 0x00020000")
    e("s_waitcnt lgkmcnt(0)")
    for r, p in ((R_Q, S_Q), (R_KS, S_KS), (R_KZ, S_KZ), (R_K, S_QK)):
        e(f"s_mov_b32 s{r}, s{p}")
        e(f"s_mov_b32 s{r+1}, s{p+1}")
    g.vm(f"buffer_load_dword v{T2}, v{T0}, {sr(R_Q,4)}, s{S_QO} offen")
    g.vm(f"buffer_load_dword v{T3}, v{T1}, {sr(R_KS,4)}, s{S_T1} offen")
    i_kz = g.vm(f"buffer_load_dword v{T4}, v{T1}, {sr(R_KZ,4)}, s{S_T1} offen")

    def ldK(k):
        a, c = k >> 2, k & 3
        return g.vm(f"buffer_load_dwordx4 {vr(V_BUF+4*k,4)}, v{V_KO}, {sr(R_K,4)}, s{S_OFF} offen offset:{a*1024+c*128}{pol}")

    def ldV(k):
        hv, i = k >> 2, k & 3
        return g.vm(f"buffer_load_dwordx4 {vr(V_BUF+32+4*k,4)}, v{V_VO}, {sr(R_V,4)}, s{S_OFF} offen offset:{i*512+hv*256}{pol}")

    def ldVS():
        return g.vm(f"buffer_load_dwordx2 {vr(V_VS,2)}, v{V_SO}, {sr(R_VS,4)}, s{S_OFFS} offen")

    def ldVZ():
        return g.vm(f"buffer_load_dwordx2 {vr(V_VZ,2)}, v{V_SO}, {sr(R_VZ,4)}, s{S_OFFS} offen")

    for k in range(8):
        ldK(k)
    for r, p in ((R_V, S_QV), (R_VS, S_VS), (R_VZ, S_VZ), (R_OUT, S_OUT), (R_WS, S_WS), (R_DBG, S_DBG)):
        e(f"s_mov_b32 s{r}, s{p}")
        e(f"s_mov_b32 s{r+1}, s{p+1}")
    ldVS()
    ldVZ()
    for k in range(8):
        ldV(k)

    e(f"v_and_b32 v{T5}, 8, v{V_LANE}")
    e(f"v_cmp_ne_u32 {sr(S_ODD,2)}, 0, v{T5}")
    e(f"v_and_b32 v{T6}, 4, v{V_LANE}")
    e(f"v_cmp_eq_u32 {sr(S_VALID,2)}, 0, v{T6}")
    e(f"v_lshlrev_b32 v{V_SLOT}, 4, v0")
    e(f"v_add_u32 v{V_SLOT}, s{S_WGI}, v{V_SLOT}")
    e(f"v_cmp_gt_u32 vcc, {NS}, v0")
    e(f"v_mov_b32 v{V_M}, 0xff7fffff")
    e(f"v_mov_b32 v{V_L}, 0")
    e(f"v_cndmask_b32 v{V_SLOT}, -1, v{V_SLOT}, vcc")
    e(f"ds_write_b32 v{T0}, v{V_SLOT} offset:{L_SLOT}")
    for x in range(36):
        e(f"v_mov_b32 v{V_ACC+x}, 0")
    e(f"v_lshlrev_b32 v{T5}, 7, v{T5}")
    e(f"v_lshl_add_u32 v{T5}, v{V_H}, 8, v{T5}")
    e(f"v_lshl_add_u32 v{T5}, v{T6}, 3, v{T5}")
    e(f"v_lshl_add_u32 v{T5}, v{V_G}, 3, v{T5}")
    e(f"v_lshlrev_b32 v{T7}, 5, v{T7}")
    e(f"v_lshl_add_u32 v{T7}, v{V_G}, 3, v{T7}")
    e(f"s_mov_b32 s{S_T0}, 0x07060302")
    g.wait_vm(i_kz)
    A0, A1, B0, B1 = V_D, V_D + 1, V_D + 2, V_D + 3
    e(f"v_lshlrev_b32 v{A0}, 16, v{T2}")
    e(f"v_and_b32 v{A1}, s{S_MASK}, v{T2}")
    e(f"v_lshlrev_b32 v{B0}, 16, v{T3}")
    e(f"v_and_b32 v{B1}, s{S_MASK}, v{T3}")
    e(f"v_mul_f32 v{A0}, v{A0}, v{B0}")
    e(f"v_mul_f32 v{A1}, v{A1}, v{B1}")
    e(f"v_and_b32 v{B0}, s{S_MASK}, v{A0}")
    e(f"v_and_b32 v{B1}, s{S_MASK}, v{A1}")
    e(f"v_sub_f32 v{B0}, v{A0}, v{B0}")
    e(f"v_sub_f32 v{B1}, v{A1}, v{B1}")
    e(f"v_perm_b32 v{A0}, v{A1}, v{A0}, s{S_T0}")
    e(f"v_perm_b32 v{B0}, v{B1}, v{B0}, s{S_T0}")
    e(f"ds_write_b32 v{T0}, v{A0} offset:{L_QS}")
    e(f"ds_write_b32 v{T0}, v{B0} offset:{L_QS+1024}")
    e(f"ds_write_b32 v{T1}, v{T4} offset:{L_KZ}")
    e(f"v_mov_b32 v{V_SLOT}, {L_SLOT+4}")
    e("s_waitcnt lgkmcnt(0)")
    e("s_barrier")
    for c in range(4):
        e(f"ds_read_b64 {vr(V_QB+2*c,2)}, v{T5} offset:{L_QS+64*c}")
    for c in range(4):
        e(f"ds_read_b64 {vr(V_PK+2*c,2)}, v{T7} offset:{L_KZ+64*c}")
    e("s_waitcnt lgkmcnt(0)")
    for ee in range(2):
        e(f"v_mfma_f32_16x16x32_bf16 {vr(V_NC,4)}, {vr(V_PK+4*ee,4)}, {vr(V_QB+4*ee,4)}, {'0' if ee == 0 else vr(V_NC,4)}")
    g.nop(10)
    for r in range(4):
        e(f"v_xor_b32 v{V_NC+r}, 0x80000000, v{V_NC+r}")

    def body(issue, tag):
        g.issued = 18
        g.known_done = 0
        iK = list(range(8))
        iVS, iVZ = 8, 9
        iV = list(range(10, 18))
        for p in range(4):
            a, ee = p >> 1, p & 1
            k0, k1 = 2 * p, 2 * p + 1
            b0, b1 = V_BUF + 4 * k0, V_BUF + 4 * k1
            pk = V_PK + 4 * (p & 1)
            g.wait_vm(iK[k0])
            for k in range(4):
                e(f"v_cvt_f32_i32 v{b0+k}, v{b0+k}")
            g.wait_vm(iK[k1])
            for k in range(4):
                e(f"v_cvt_f32_i32 v{b1+k}, v{b1+k}")
            e(f"v_cvt_pk_bf16_f32 v{pk}, v{b0}, v{b0+1}")
            e(f"v_cvt_pk_bf16_f32 v{pk+1}, v{b0+2}, v{b0+3}")
            e(f"v_cvt_pk_bf16_f32 v{pk+2}, v{b1}, v{b1+1}")
            e(f"v_cvt_pk_bf16_f32 v{pk+3}, v{b1+2}, v{b1+3}")
            if issue:
                ldK(k0)
                ldK(k1)
            else:
                g.nop(2)
            e(f"v_mfma_f32_16x16x32_bf16 {vr(V_D+4*a,4)}, {vr(pk,4)}, {vr(V_QB+4*ee,4)}, {vr(V_NC,4) if ee == 0 else vr(V_D+4*a,4)}")
        g.wait_vm(iVZ)
        X0, X1, X2, X3 = T4, T5, T6, T7
        e(f"v_lshlrev_b32 v{X0}, 16, v{V_VS}")
        e(f"v_and_b32 v{X1}, s{S_MASK}, v{V_VS}")
        e(f"v_lshlrev_b32 v{X2}, 16, v{V_VS+1}")
        e(f"v_and_b32 v{X3}, s{S_MASK}, v{V_VS+1}")
        e(f"v_mov_b32 v{V_VZ2}, v{V_VZ}")
        e(f"v_mov_b32 v{V_VZ2+1}, v{V_VZ+1}")
        if issue:
            ldVS()
            ldVZ()
        else:
            g.nop(2)
        e(f"v_add_f32_dpp v{V_S}, v{V_D+1}, v{V_D} row_ror:4 row_mask:0xf bank_mask:0xf")
        e(f"v_add_f32_dpp v{V_S+1}, v{V_D+3}, v{V_D+2} row_ror:4 row_mask:0xf bank_mask:0xf")
        e(f"v_add_f32_dpp v{V_S+2}, v{V_D+5}, v{V_D+4} row_ror:4 row_mask:0xf bank_mask:0xf")
        e(f"v_add_f32_dpp v{V_S+3}, v{V_D+7}, v{V_D+6} row_ror:4 row_mask:0xf bank_mask:0xf")
        e(f"v_add_f32_dpp v{V_S}, v{V_S}, v{V_S} row_ror:8 row_mask:0xf bank_mask:0xf")
        e(f"v_add_f32_dpp v{V_S+1}, v{V_S+1}, v{V_S+1} row_ror:8 row_mask:0xf bank_mask:0xf")
        e(f"v_add_f32_dpp v{V_S+2}, v{V_S+2}, v{V_S+2} row_ror:8 row_mask:0xf bank_mask:0xf")
        e(f"v_add_f32_dpp v{V_S+3}, v{V_S+3}, v{V_S+3} row_ror:8 row_mask:0xf bank_mask:0xf")
        e(f"v_max3_f32 v{T0}, v{V_S}, v{V_S+1}, v{V_S+2}")
        e(f"v_max_f32 v{T0}, v{T0}, v{V_S+3}")
        e(f"v_mov_b32 v{T1}, v{T0}")
        g.nop(2)
        e(f"v_permlane16_swap_b32 v{T0}, v{T1}")
        e(f"v_max_f32 v{T0}, v{T0}, v{T1}")
        e(f"v_mov_b32 v{T1}, v{T0}")
        g.nop(2)
        e(f"v_permlane32_swap_b32 v{T0}, v{T1}")
        e(f"v_max_f32 v{T0}, v{T0}, v{T1}")
        e(f"v_mul_f32 v{T0}, s{S_C}, v{T0}")
        e(f"v_cmp_gt_f32 vcc, v{T0}, v{V_M}")
        e(f"v_max_f32 v{T0}, v{T0}, v{V_M}")
        g.nop(1)
        e(f"s_and_b64 vcc, vcc, {sr(S_VALID,2)}")
        e(f"s_cbranch_scc0 L_noresc_{tag}")
        e(f"v_sub_f32 v{T1}, v{V_M}, v{T0}")
        e(f"v_exp_f32 v{T1}, v{T1}")
        g.nop(1)
        e(f"v_mul_f32 v{V_L}, v{V_L}, v{T1}")
        for h in range(4):
            e(f"v_readlane_b32 s{S_AL+h}, v{T1}, {h}")
        g.nop(2)
        for x in range(0, 36, 2):
            e(f"v_pk_mul_f32 {vr(V_ACC+x,2)}, {vr(V_ACC+x,2)}, {sr(S_AL+(x&2),2)}")
        g.lab(f"L_noresc_{tag}")
        e(f"v_mov_b32 v{V_M}, v{T0}")
        for i in range(4):
            e(f"v_fma_f32 v{V_S+i}, v{V_S+i}, s{S_C}, -v{T0}")
        for i in range(4):
            e(f"v_exp_f32 v{V_S+i}, v{V_S+i}")
        e(f"v_add_f32 v{T0}, v{V_S}, v{V_S+1}")
        e(f"v_mul_f32 v{X0}, v{X0}, v{V_S}")
        e(f"v_add_f32 v{T1}, v{V_S+2}, v{V_S+3}")
        e(f"v_mul_f32 v{X1}, v{X1}, v{V_S+1}")
        e(f"v_mul_f32 v{X2}, v{X2}, v{V_S+2}")
        e(f"v_mul_f32 v{X3}, v{X3}, v{V_S+3}")
        e(f"v_add_f32 v{V_L}, v{V_L}, v{T0}")
        for i, X in enumerate((X0, X1, X2, X3)):
            e(f"v_and_b32 v{V_S+i}, s{S_MASK}, v{X}")
        e(f"v_add_f32 v{V_L}, v{V_L}, v{T1}")
        for i, X in enumerate((X0, X1, X2, X3)):
            e(f"v_sub_f32 v{X}, v{X}, v{V_S+i}")
        for i, X in enumerate((X0, X1, X2, X3)):
            e(f"v_cndmask_b32 v{X}, v{V_S+i}, v{X}, {sr(S_ODD,2)}")
        e(f"v_cvt_pk_bf16_f32 v{V_PA}, v{X0}, v{X1}")
        e(f"v_cvt_pk_bf16_f32 v{V_PA+1}, v{X2}, v{X3}")
        g.nop(2)
        e(f"v_mfma_f32_16x16x16_bf16 {vr(V_Z,4)}, {vr(V_PA,2)}, {vr(V_VZ2,2)}, {vr(V_Z,4)}")
        for p in range(4):
            hv, q = p >> 1, p & 1
            k0, k1 = 2 * p, 2 * p + 1
            b0, b1 = V_BUF + 32 + 4 * k0, V_BUF + 32 + 4 * k1
            pk = V_PK + 8 * hv
            g.wait_vm(iV[k0])
            for k in range(4):
                e(f"v_cvt_f32_i32 v{b0+k}, v{b0+k}")
            g.wait_vm(iV[k1])
            for k in range(4):
                e(f"v_cvt_f32_i32 v{b1+k}, v{b1+k}")
            for j in range(4):
                e(f"v_cvt_pk_bf16_f32 v{pk+2*j+q}, v{b0+j}, v{b1+j}")
            if issue:
                ldV(k0)
                ldV(k1)
            elif q == 1:
                g.nop(1)
            if q == 1:
                for j in range(4):
                    acc = V_ACC + 4 * (hv * 4 + j)
                    e(f"v_mfma_f32_16x16x16_bf16 {vr(acc,4)}, {vr(V_PA,2)}, {vr(pk+2*j,2)}, {vr(acc,4)}")

    g.lab("L_loop")
    e(f"ds_read_b32 v{T0}, v{V_SLOT}")
    e("s_waitcnt lgkmcnt(0)")
    e(f"v_readfirstlane_b32 s{S_T1}, v{T0}")
    g.nop(1)
    e(f"s_cmp_eq_u32 s{S_T1}, -1")
    e("s_cbranch_scc1 L_loop")
    e(f"s_cmp_ge_u32 s{S_T1}, {NR}")
    e("s_cbranch_scc1 L_last")
    unit_offsets(S_T1)
    e(f"s_add_u32 s{S_T0}, s{S_R}, 2")
    e(f"s_sub_u32 s{S_T0}, s{S_T0}, s{S_NF}")
    e(f"s_or_b32 s{S_FL}, s{S_T0}, s{S_WAVE}")
    e("s_cbranch_scc1 L_nofetch")
    e(f"s_mov_b32 s{S_TK}, 1")
    e(f"s_atomic_add s{S_TK}, {sr(S_DBG,2)}, s{S_CTR} glc")
    g.lab("L_nofetch")
    body(True, "a")
    e(f"s_cmp_lg_u32 s{S_FL}, 0")
    e("s_cbranch_scc1 L_nopost")
    e("s_waitcnt lgkmcnt(0)")
    if J2:
        e(f"s_min_u32 s{S_T0}, s{S_TK}, {J2}")
        e(f"s_add_u32 s{S_T0}, s{S_T0}, s{S_TK}")
        e(f"s_add_u32 s{S_T0}, s{S_T0}, {NS*16}")
        e(f"s_add_u32 s{S_T1}, s{S_T0}, 1")
        e(f"s_cmp_lt_u32 s{S_TK}, {J2}")
        e(f"s_cselect_b32 s{S_T1}, s{S_T1}, -1")
        e(f"s_cselect_b32 s{S_T2}, 2, 1")
        e(f"v_mov_b32 v{T0}, s{S_T0}")
        e(f"v_mov_b32 v{T1}, s{S_T1}")
        e(f"ds_write2_b32 v{V_SLOT}, v{T0}, v{T1} offset0:1 offset1:2")
        e(f"s_add_u32 s{S_NF}, s{S_NF}, s{S_T2}")
    else:
        e(f"s_add_u32 s{S_T0}, s{S_TK}, {NS*16}")
        e(f"v_mov_b32 v{T0}, s{S_T0}")
        e(f"ds_write_b32 v{V_SLOT}, v{T0} offset:4")
        e(f"s_add_u32 s{S_NF}, s{S_NF}, 1")
    g.lab("L_nopost")
    e(f"s_add_u32 s{S_R}, s{S_R}, 1")
    e(f"v_add_u32 v{V_SLOT}, 4, v{V_SLOT}")
    e("s_branch L_loop")
    g.lab("L_last")
    body(False, "b")

    g.c("WG combine")
    if stamp:
        e(f"s_memrealtime {sr(S_TS+2,2)}")
    e(f"v_mov_b32 v{T1}, v{V_L}")
    VA, VB0, VB1, VY = T2, T3, T4, T5
    e(f"v_mul_u32_u24 v{VA}, 4608, v{V_WV}")
    e(f"v_lshrrev_b32 v{T0}, 5, v{V_LANE}")
    e(f"v_permlane16_swap_b32 v{V_L}, v{T1}")
    e(f"v_lshl_add_u32 v{VA}, v{T0}, 8, v{VA}")
    e(f"v_add_f32 v{V_L}, v{V_L}, v{T1}")
    e(f"v_mov_b32 v{T1}, v{V_L}")
    e(f"v_lshl_add_u32 v{VA}, v{V_N}, 4, v{VA}")
    e(f"v_lshrrev_b32 v{T0}, 1, v{V_WV}")
    e(f"v_permlane32_swap_b32 v{V_L}, v{T1}")
    e(f"v_lshl_add_u32 v{T0}, v{T0}, 2, v{V_G}")
    e(f"v_add_f32 v{V_L}, v{V_L}, v{T1}")
    e(f"v_mul_u32_u24 v{VB0}, 576, v{T0}")
    e(f"v_and_b32 v{T0}, 1, v{V_WV}")
    e(f"v_lshl_add_u32 v{VB0}, v{T0}, 7, v{VB0}")
    e(f"v_lshl_add_u32 v{VB0}, v{V_N}, 2, v{VB0}")
    e(f"v_add_u32 v{VB1}, 64, v{VB0}")
    e(f"v_lshlrev_b32 v{VY}, 3, v{V_H}")
    e(f"v_lshl_add_u32 v{T0}, v{V_WV}, 5, v{VY}")
    e("s_mov_b64 exec, 0xf")
    assert V_M % 2 == 0 and V_L == V_M + 1
    e(f"ds_write_b64 v{T0}, {vr(V_M,2)} offset:{L_ML}")
    e("s_mov_b64 exec, -1")
    for blk in range(8):
        for r in range(4):
            e(f"v_sub_f32 v{V_ACC+4*blk+r}, v{V_ACC+4*blk+r}, v{V_Z+r}")
    e("s_mov_b32 exec_lo, 0xffff")
    e("s_mov_b32 exec_hi, 0xffff")
    for blk in range(8):
        e(f"ds_write_b128 v{VA}, {vr(V_ACC+4*blk,4)} offset:{L_O+blk*576}")
    e("s_mov_b64 exec, -1")
    e("s_waitcnt lgkmcnt(0)")
    e("s_barrier")
    RB = V_BUF
    MB = V_BUF + 16
    for w in range(4):
        e(f"ds_read_b64 {vr(MB+2*w,2)}, v{VY} offset:{L_ML+w*32}")
    for p in range(2):
        for w in range(4):
            o0 = L_O // 256 + w * 18
            e(f"ds_read2st64_b32 {vr(RB+8*p+2*w,2)}, v{VB1 if p else VB0} offset0:{o0} offset1:{o0+1}")
    S_REC, S_RECE, S_OWN, S_OWNE = S_BKV, S_BVS, S_OFF, S_OFFS
    e(f"s_lshl_b32 s{S_T0}, s{S_KVH}, 2")
    e(f"s_add_u32 s{S_T0}, s{S_T0}, s{S_WAVE}")
    e(f"s_lshl_b32 s{S_REC}, s{S_T0}, 14")
    e(f"s_and_b32 s{S_T1}, s2, 31")
    e(f"s_lshl_b32 s{S_OWN}, s{S_T1}, 9")
    e(f"s_add_u32 s{S_OWN}, s{S_OWN}, s{S_REC}")
    e(f"s_lshl_b32 s{S_RECE}, s{S_T0}, 9")
    e(f"s_add_u32 s{S_RECE}, s{S_RECE}, {WS_E}")
    e(f"s_lshl_b32 s{S_OWNE}, s{S_T1}, 4")
    e(f"s_add_u32 s{S_OWNE}, s{S_OWNE}, s{S_RECE}")
    e(f"v_lshlrev_b32 v{VA}, 2, v{V_LANE}")
    e("s_waitcnt lgkmcnt(8)")
    VMX, VLs, VR = T0, T1, T6
    e(f"v_max3_f32 v{VMX}, v{MB}, v{MB+2}, v{MB+4}")
    e(f"v_max_f32 v{VMX}, v{VMX}, v{MB+6}")
    for w in range(4):
        e(f"v_sub_f32 v{MB+2*w}, v{MB+2*w}, v{VMX}")
    for w in range(4):
        e(f"v_exp_f32 v{MB+2*w}, v{MB+2*w}")
    g.nop(1)
    e(f"v_mul_f32 v{VLs}, v{MB}, v{MB+1}")
    for w in range(1, 4):
        e(f"v_fmac_f32 v{VLs}, v{MB+2*w}, v{MB+2*w+1}")
    e("s_waitcnt lgkmcnt(0)")
    e(f"v_rcp_f32 v{VR}, v{VLs}")
    e(f"v_log_f32 v{VLs}, v{VLs}")
    for x in range(8):
        e(f"v_add_f32 v{RB+2*x}, v{RB+2*x}, v{RB+2*x+1}")
    X = V_BUF + 32
    for p in range(2):
        e(f"v_mul_f32 v{X+4*p}, v{MB}, v{RB+8*p}")
        for w in range(1, 4):
            e(f"v_fmac_f32 v{X+4*p}, v{MB+2*w}, v{RB+8*p+2*w}")
    e(f"v_mul_f32 v{X}, v{X}, v{VR}")
    e(f"v_mul_f32 v{X+4}, v{X+4}, v{VR}")
    e(f"v_add_f32 v{X+8}, v{VMX}, v{VLs}")
    g.nop(1)
    for b in range(3):
        for k in range(1, 4):
            e(f"v_mov_b32_dpp v{X+4*b+k}, v{X+4*b} quad_perm:[{k},{k},{k},{k}] row_mask:0xf bank_mask:0xf")
    e("s_mov_b32 exec_lo, 0x11111111")
    e("s_mov_b32 exec_hi, 0x11111111")
    g.issued = 0
    g.known_done = 0
    g.vm(f"buffer_store_dwordx4 {vr(X,4)}, v{VA}, {sr(R_WS,4)}, s{S_OWN} offen sc1")
    g.vm(f"buffer_store_dwordx4 {vr(X+4,4)}, v{VA}, {sr(R_WS,4)}, s{S_OWN} offen offset:256 sc1")
    e("s_mov_b64 exec, 1")
    g.vm(f"buffer_store_dwordx4 {vr(X+8,4)}, v{VA}, {sr(R_WS,4)}, s{S_OWNE} offen sc1")
    e(f"v_mov_b32 v{T1}, 1")
    e(f"s_lshl_b32 s{S_T2}, s{S_KVH}, 5")
    e(f"s_add_u32 s{S_T2}, s{S_T2}, 8")
    e("s_waitcnt vmcnt(0)")
    g.known_done = g.issued
    e("s_barrier")
    e(f"s_cmp_lg_u32 s{S_WAVE}, 0")
    e("s_cbranch_scc1 L_skip_atomic")
    g.vm(f"buffer_atomic_add v{T1}, v{VA}, {sr(R_DBG,4)}, s{S_T2} offen sc0")
    e("s_waitcnt vmcnt(0)")
    g.known_done = g.issued
    e(f"ds_write_b32 v{VA}, v{T1} offset:{L_FLAG}")
    e("s_waitcnt lgkmcnt(0)")
    g.lab("L_skip_atomic")
    e("s_barrier")
    e(f"ds_read_b32 v{T1}, v{VA} offset:{L_FLAG}")
    e("s_waitcnt lgkmcnt(0)")
    e(f"v_readfirstlane_b32 s{S_T0}, v{T1}")
    e("s_mov_b64 exec, -1")
    g.nop(2)
    if stamp:
        e(f"s_memrealtime {sr(S_TS+4,2)}")
        e("s_waitcnt lgkmcnt(0)")
        e(f"s_lshl_b32 s{S_T1}, s2, 2")
        e(f"s_add_u32 s{S_T1}, s{S_T1}, s{S_WAVE}")
        e(f"s_lshl_b32 s{S_T1}, s{S_T1}, 5")
        e(f"s_add_u32 s{S_T1}, s{S_T1}, 0x100000")
        e(f"s_getreg_b32 s{S_TS+6}, hwreg(HW_REG_XCC_ID)")
        e(f"s_getreg_b32 s{S_TS+7}, hwreg(HW_REG_HW_ID)")
        e(f"s_and_b32 s{S_TS+6}, s{S_TS+6}, 15")
        e(f"s_lshl_b32 s{S_TS+7}, s{S_TS+7}, 4")
        e(f"s_or_b32 s{S_TS+6}, s{S_TS+6}, s{S_TS+7}")
        for k in range(4):
            e(f"v_mov_b32 v{X+k}, s{S_TS+2*k}")
        e(f"v_mov_b32 v{X+4}, s{S_R}")
        e(f"v_mov_b32 v{X+5}, s{S_TS}")
        e(f"v_mov_b32 v{X+6}, s{S_TS}")
        e(f"v_mov_b32 v{X+7}, s{S_TS}")
        e("s_mov_b64 exec, 1")
        g.vm(f"buffer_store_dwordx4 {vr(X,4)}, v{VA}, {sr(R_WS,4)}, s{S_T1} offen")
        g.vm(f"buffer_store_dwordx4 {vr(X+4,4)}, v{VA}, {sr(R_WS,4)}, s{S_T1} offen offset:16")
        e("s_mov_b64 exec, -1")
        e("s_waitcnt vmcnt(0)")
        g.known_done = g.issued
    e(f"s_cmp_lg_u32 s{S_T0}, 31")
    e("s_cbranch_scc1 L_end")

    g.c("final combine")
    OB = V_BUF
    EB = V_BUF + 64
    e(f"v_lshlrev_b32 v{VA}, 9, v{V_G}")
    e(f"v_lshl_add_u32 v{VA}, v{V_N}, 4, v{VA}")
    e(f"v_lshlrev_b32 v{VB0}, 4, v{V_G}")
    ie = []
    for k in range(8):
        ie.append(g.vm(f"buffer_load_dwordx4 {vr(EB+4*k,4)}, v{VB0}, {sr(R_WS,4)}, s{S_RECE} offen offset:{k*64} sc1"))
    io = []
    for k in range(8):
        if k and k % 2 == 0:
            e(f"s_add_u32 s{S_REC}, s{S_REC}, 4096")
        for p in range(2):
            io.append(g.vm(f"buffer_load_dwordx4 {vr(OB+8*k+4*p,4)}, v{VA}, {sr(R_WS,4)}, s{S_REC} offen offset:{(k&1)*2048+p*256} sc1"))
    VOUT = T7
    e(f"v_lshrrev_b32 v{T0}, 2, v{V_N}")
    e(f"v_lshl_add_u32 v{T0}, v{V_H}, 2, v{T0}")
    e(f"v_lshlrev_b32 v{VOUT}, 1, v{T0}")
    e(f"v_lshl_add_u32 v{VOUT}, v{V_G}, 8, v{VOUT}")
    e(f"s_lshl_b32 s{S_T0}, s{S_WAVE}, 6")
    e(f"s_add_u32 s{S_T0}, s{S_T0}, s{S_QO}")
    g.wait_vm(ie[-1])
    MX = V_ACC
    M2 = V_ACC + 4
    for h in range(4):
        e(f"v_max3_f32 v{MX+h}, v{EB+h}, v{EB+4+h}, v{EB+8+h}")
        e(f"v_max3_f32 v{MX+h}, v{MX+h}, v{EB+12+h}, v{EB+16+h}")
        e(f"v_max3_f32 v{MX+h}, v{MX+h}, v{EB+20+h}, v{EB+24+h}")
        e(f"v_max_f32 v{MX+h}, v{MX+h}, v{EB+28+h}")
    for h in range(4):
        e(f"v_mov_b32 v{M2+h}, v{MX+h}")
    g.nop(1)
    for h in range(4):
        e(f"v_permlane16_swap_b32 v{MX+h}, v{M2+h}")
    for h in range(4):
        e(f"v_max_f32 v{MX+h}, v{MX+h}, v{M2+h}")
    for h in range(4):
        e(f"v_mov_b32 v{M2+h}, v{MX+h}")
    g.nop(1)
    for h in range(4):
        e(f"v_permlane32_swap_b32 v{MX+h}, v{M2+h}")
    for h in range(4):
        e(f"v_max_f32 v{MX+h}, v{MX+h}, v{M2+h}")
    for k in range(8):
        for h in range(4):
            e(f"v_sub_f32 v{EB+4*k+h}, v{EB+4*k+h}, v{MX+h}")
    for k in range(32):
        e(f"v_exp_f32 v{EB+k}, v{EB+k}")
    DN = V_ACC + 8
    NU = V_ACC + 12
    g.nop(1)
    for h in range(4):
        e(f"v_add_f32 v{DN+h}, v{EB+h}, v{EB+4+h}")
    for k in range(2, 8):
        for h in range(4):
            e(f"v_add_f32 v{DN+h}, v{DN+h}, v{EB+4*k+h}")
    for k in range(8):
        for p in range(2):
            g.wait_vm(io[2 * k + p])
            for h in range(4):
                if k == 0:
                    e(f"v_mul_f32 v{NU+4*p+h}, v{EB+h}, v{OB+4*p+h}")
                else:
                    e(f"v_fmac_f32 v{NU+4*p+h}, v{EB+4*k+h}, v{OB+8*k+4*p+h}")
    g.nop(2)
    bases = (DN, NU, NU + 4)
    for base in bases:
        e(f"v_permlane16_swap_b32 v{base}, v{base+1}")
        e(f"v_permlane16_swap_b32 v{base+2}, v{base+3}")
    for base in bases:
        e(f"v_add_f32 v{base}, v{base}, v{base+1}")
        e(f"v_add_f32 v{base+2}, v{base+2}, v{base+3}")
    g.nop(2)
    for base in bases:
        e(f"v_permlane32_swap_b32 v{base}, v{base+2}")
    for base in bases:
        e(f"v_add_f32 v{base}, v{base}, v{base+2}")
    e(f"v_rcp_f32 v{DN}, v{DN}")
    g.nop(1)
    e(f"v_mul_f32 v{NU}, v{NU}, v{DN}")
    e(f"v_mul_f32 v{NU+4}, v{NU+4}, v{DN}")
    e(f"v_cvt_pk_bf16_f32 v{NU}, v{NU}, v{NU+4}")
    g.vm(f"buffer_store_short v{NU}, v{VOUT}, {sr(R_OUT,4)}, s{S_T0} offen")
    g.vm(f"buffer_store_short_d16_hi v{NU}, v{VOUT}, {sr(R_OUT,4)}, s{S_T0} offen offset:32")
    g.lab("L_end")
    e("s_endpgm")

    body_t = "\n".join(g.L)
    nv = (NV + 7) // 8 * 8
    acc_off = min(nv, 256)
    text = HEADER + f"; @launch grid=(256,1,1) block=(256,1,1) lds={LDS}\n"
    text += f""".amdgcn_target "amdgcn-amd-amdhsa--gfx950"
.text
.globl {NAME}_kernel
.p2align 8
.type {NAME}_kernel,@function
{NAME}_kernel:
{body_t}
.section .rodata,"a"
.p2align 6
.amdhsa_kernel {NAME}_kernel
  .amdhsa_next_free_vgpr {nv}
  .amdhsa_next_free_sgpr {NSGPR}
  .amdhsa_accum_offset {acc_off}
  .amdhsa_group_segment_fixed_size 0
  .amdhsa_kernarg_size 80
  .amdhsa_user_sgpr_count 2
  .amdhsa_user_sgpr_kernarg_segment_ptr 1
  .amdhsa_system_sgpr_workgroup_id_x 1
  .amdhsa_float_denorm_mode_32 3
.end_amdhsa_kernel
"""
    return text


if __name__ == "__main__":
    ap = argparse.ArgumentParser()
    ap.add_argument("-o", default=f"cdna_kernels/{NAME}.s")
    ap.add_argument("--pol", default="nt")
    ap.add_argument("--NS", type=int, default=10)
    ap.add_argument("--J2", type=int, default=0)
    ap.add_argument("--PHI", type=int, default=20)
    ap.add_argument("--stamp", action="store_true")
    ap.add_argument("--nv", type=int, default=0)
    ap.add_argument("--lds", type=int, default=0)
    ap.add_argument("--iod", type=int, default=-1)
    a = ap.parse_args()
    open(a.o, "w").write(gen(pol=a.pol, NS=a.NS, J2=a.J2, PHI=a.PHI, stamp=a.stamp, nv_force=a.nv, lds_force=a.lds, iod=a.iod))
    print("wrote", a.o)
```

```python
import sys, math, argparse
from gen import G, vr, sr, NAME, HEADER, f32bits


def gen(pol="nt", NS=10, J2=0, PHI=20, stamp=False, nv_force=0, lds_force=0, ctr_stride=16, iod=-1, dbgtime=False):
    g = G()
    e = g.e
    pol = (" " + pol) if pol else ""
    C = (128.0 ** -0.5) * math.log2(math.e)
    NR = 256
    assert 2 <= NS <= 16

    S_Q, S_QK, S_QV, S_KS, S_KZ, S_VS, S_VZ, S_OUT, S_DBG, S_WS = 4, 6, 8, 10, 12, 14, 16, 18, 20, 22
    R_K, R_V, R_VS, R_VZ, R_Q, R_KS, R_KZ, R_OUT, R_WS, R_DBG = 24, 28, 32, 36, 40, 44, 48, 52, 56, 60
    S_STRM, S_WGI, S_KVH, S_WAVE, S_C, S_MASK = 64, 65, 66, 67, 68, 69
    S_BKV, S_BVS, S_PHI, S_OFF, S_OFFS, S_R, S_TK, S_NF = 70, 71, 72, 73, 74, 75, 76, 77
    S_T0, S_T1 = 78, 79
    S_ODD, S_VALID = 80, 82
    S_AL = 84
    S_CTR = 88
    S_FL = 89
    S_QO = 90
    S_T2 = 91
    S_TS = 92
    NSGPR = 102

    V_LANE, V_KO, V_VO, V_SO, V_WV, V_G, V_N, V_H = 1, 2, 3, 4, 5, 6, 7, 8
    V_SLOT = 9
    V_M, V_L = 10, 11
    V_T = 12
    V_QB = 20
    V_NC = 28
    V_D = 32
    V_S = 40
    V_PA = 44
    V_VS = 46
    V_VZ = 48
    V_VZ2 = 50
    V_PK = 52
    V_ACC = 68
    V_Z = 100
    V_BUF = 104
    NV = V_BUF + 96
    if nv_force:
        NV = max(NV, nv_force)

    L_QS = 0
    L_KZ = 2048
    L_ML = 2304
    L_FLAG = 2432
    L_SLOT = 2560
    L_O = 3840
    assert L_O % 256 == 0
    LDS = L_O + 4 * 4608
    if lds_force:
        LDS = max(LDS, lds_force)

    WS_E = 32 * 16384

    e("s_cmp_ge_u32 s2, 256")
    e("s_cbranch_scc1 L_end")
    e("s_load_dwordx16 s[4:19], s[0:1], 0")
    e("s_load_dwordx4 s[20:23], s[0:1], 64")
    if stamp or dbgtime:
        e(f"s_memrealtime {sr(S_TS,2)}")
    e(f"v_and_b32 v{V_LANE}, 63, v0")
    e(f"v_lshrrev_b32 v{V_WV}, 6, v0")
    e(f"v_lshrrev_b32 v{V_G}, 4, v{V_LANE}")
    e(f"v_and_b32 v{V_N}, 15, v{V_LANE}")
    e(f"v_and_b32 v{V_H}, 3, v{V_LANE}")
    e(f"v_readfirstlane_b32 s{S_WAVE}, v{V_WV}")
    T0, T1, T2, T3, T4, T5, T6, T7 = range(V_T, V_T + 8)
    WSH = 14 if iod >= 0 else 13
    e(f"v_lshlrev_b32 v{V_KO}, {WSH}, v{V_WV}")
    e(f"v_lshrrev_b32 v{T0}, 2, v{V_N}")
    e(f"v_lshl_add_u32 v{V_KO}, v{T0}, 11, v{V_KO}")
    e(f"v_bfe_u32 v{T0}, v{V_N}, 1, 1")
    e(f"v_lshl_add_u32 v{V_KO}, v{T0}, 9, v{V_KO}")
    e(f"v_and_b32 v{T7}, 1, v{V_N}")
    e(f"v_lshl_add_u32 v{V_KO}, v{T7}, 6, v{V_KO}")
    e(f"v_lshl_add_u32 v{V_KO}, v{V_G}, 4, v{V_KO}")
    e(f"v_lshlrev_b32 v{V_VO}, {WSH}, v{V_WV}")
    e(f"v_lshl_add_u32 v{V_VO}, v{V_G}, 11, v{V_VO}")
    e(f"v_lshl_add_u32 v{V_VO}, v{V_N}, 4, v{V_VO}")
    e(f"v_lshlrev_b32 v{V_SO}, {WSH-8}, v{V_WV}")
    e(f"v_lshl_add_u32 v{V_SO}, v{V_G}, 3, v{V_SO}")
    e(f"v_lshlrev_b32 v{T0}, 2, v0")
    e(f"v_lshlrev_b32 v{T1}, 2, v{V_LANE}")
    e(f"s_lshr_b32 s{S_STRM}, s2, 4")
    e(f"s_and_b32 s{S_WGI}, s2, 15")
    e(f"s_lshr_b32 s{S_KVH}, s2, 5")
    e(f"s_lshl_b32 s{S_BKV}, s{S_STRM}, 23")
    e(f"s_lshl_b32 s{S_BVS}, s{S_STRM}, 15")
    e(f"s_mul_i32 s{S_PHI}, s{S_STRM}, {PHI}")
    e(f"s_lshl_b32 s{S_QO}, s{S_KVH}, 10")
    e(f"s_lshl_b32 s{S_T1}, s{S_STRM}, 8")
    e(f"s_mul_i32 s{S_CTR}, s{S_STRM}, {ctr_stride}")
    e(f"s_mov_b32 s{S_C}, 0x{f32bits(C):08x}")
    e(f"s_mov_b32 s{S_MASK}, 0xffff0000")
    e(f"s_mov_b32 s{S_R}, 0")
    e(f"s_mov_b32 s{S_NF}, {NS}")

    S_IOD = S_T2 + 0
    def unit_offsets(sx):
        if iod >= 0:
            e(f"s_lshr_b32 s{S_T0}, s{sx}, 3")
            e(f"s_lshl_b32 s{S_T0}, s{S_T0}, 2")
            e(f"s_and_b32 s{S_OFF}, s{sx}, 3")
            e(f"s_add_u32 s{S_T0}, s{S_T0}, s{S_OFF}")
            e(f"s_add_u32 s{S_T0}, s{S_T0}, s{S_PHI}")
            e(f"s_and_b32 s{S_T0}, s{S_T0}, 127")
            e(f"s_lshr_b32 s{S_OFF}, s{S_T0}, 3")
            e(f"s_xor_b32 s{S_OFF}, s{S_OFF}, s{sx}")
            if iod:
                e(f"s_xor_b32 s{S_OFF}, s{S_OFF}, 4")
            e(f"s_and_b32 s{S_OFF}, s{S_OFF}, 4")
            e(f"s_lshl_b32 s{S_T0}, s{S_T0}, 5")
            e(f"s_add_u32 s{S_T0}, s{S_T0}, s{S_OFF}")
            e(f"s_lshl_b32 s{S_OFF}, s{S_T0}, 11")
            e(f"s_add_u32 s{S_OFF}, s{S_OFF}, s{S_BKV}")
            e(f"s_lshl_b32 s{S_OFFS}, s{S_T0}, 3")
            e(f"s_add_u32 s{S_OFFS}, s{S_OFFS}, s{S_BVS}")
            return
        e(f"s_add_u32 s{S_T0}, s{sx}, s{S_PHI}")
        e(f"s_and_b32 s{S_T0}, s{S_T0}, {NR-1}")
        e(f"s_lshl_b32 s{S_OFF}, s{S_T0}, 15")
        e(f"s_add_u32 s{S_OFF}, s{S_OFF}, s{S_BKV}")
        e(f"s_lshl_b32 s{S_OFFS}, s{S_T0}, 7")
        e(f"s_add_u32 s{S_OFFS}, s{S_OFFS}, s{S_BVS}")

    unit_offsets(S_WGI)
    for r, n in ((R_K, 1 << 27), (R_V, 1 << 27), (R_VS, 1 << 19), (R_VZ, 1 << 19), (R_Q, 8192),
                 (R_KS, 4096), (R_KZ, 4096), (R_OUT, 8192), (R_WS, 1 << 29), (R_DBG, 256)):
        e(f"s_mov_b32 s{r+2}, 0x{n:x}")
        e(f"s_mov_b32 s{r+3}, 0x00020000")
    e("s_waitcnt lgkmcnt(0)")
    for r, p in ((R_Q, S_Q), (R_KS, S_KS), (R_KZ, S_KZ), (R_K, S_QK)):
        e(f"s_mov_b32 s{r}, s{p}")
        e(f"s_mov_b32 s{r+1}, s{p+1}")
    g.vm(f"buffer_load_dword v{T2}, v{T0}, {sr(R_Q,4)}, s{S_QO} offen")
    g.vm(f"buffer_load_dword v{T3}, v{T1}, {sr(R_KS,4)}, s{S_T1} offen")
    i_kz = g.vm(f"buffer_load_dword v{T4}, v{T1}, {sr(R_KZ,4)}, s{S_T1} offen")

    def ldK(k):
        a, c = k >> 2, k & 3
        return g.vm(f"buffer_load_dwordx4 {vr(V_BUF+4*k,4)}, v{V_KO}, {sr(R_K,4)}, s{S_OFF} offen offset:{a*1024+c*128}{pol}")

    def ldV(k):
        hv, i = k >> 2, k & 3
        return g.vm(f"buffer_load_dwordx4 {vr(V_BUF+32+4*k,4)}, v{V_VO}, {sr(R_V,4)}, s{S_OFF} offen offset:{i*512+hv*256}{pol}")

    def ldVS():
        return g.vm(f"buffer_load_dwordx2 {vr(V_VS,2)}, v{V_SO}, {sr(R_VS,4)}, s{S_OFFS} offen")

    def ldVZ():
        return g.vm(f"buffer_load_dwordx2 {vr(V_VZ,2)}, v{V_SO}, {sr(R_VZ,4)}, s{S_OFFS} offen")

    for k in range(8):
        ldK(k)
    for r, p in ((R_V, S_QV), (R_VS, S_VS), (R_VZ, S_VZ), (R_OUT, S_OUT), (R_WS, S_WS), (R_DBG, S_DBG)):
        e(f"s_mov_b32 s{r}, s{p}")
        e(f"s_mov_b32 s{r+1}, s{p+1}")
    ldVS()
    ldVZ()
    for k in range(8):
        ldV(k)

    e(f"v_and_b32 v{T5}, 8, v{V_LANE}")
    e(f"v_cmp_ne_u32 {sr(S_ODD,2)}, 0, v{T5}")
    e(f"v_and_b32 v{T6}, 4, v{V_LANE}")
    e(f"v_cmp_eq_u32 {sr(S_VALID,2)}, 0, v{T6}")
    e(f"v_lshlrev_b32 v{V_SLOT}, 4, v0")
    e(f"v_add_u32 v{V_SLOT}, s{S_WGI}, v{V_SLOT}")
    e(f"v_cmp_gt_u32 vcc, {NS}, v0")
    e(f"v_mov_b32 v{V_M}, 0xff7fffff")
    e(f"v_mov_b32 v{V_L}, 0")
    e(f"v_cndmask_b32 v{V_SLOT}, -1, v{V_SLOT}, vcc")
    e(f"ds_write_b32 v{T0}, v{V_SLOT} offset:{L_SLOT}")
    for x in range(36):
        e(f"v_mov_b32 v{V_ACC+x}, 0")
    e(f"v_lshlrev_b32 v{T5}, 7, v{T5}")
    e(f"v_lshl_add_u32 v{T5}, v{V_H}, 8, v{T5}")
    e(f"v_lshl_add_u32 v{T5}, v{T6}, 3, v{T5}")
    e(f"v_lshl_add_u32 v{T5}, v{V_G}, 3, v{T5}")
    e(f"v_lshlrev_b32 v{T7}, 5, v{T7}")
    e(f"v_lshl_add_u32 v{T7}, v{V_G}, 3, v{T7}")
    e(f"s_mov_b32 s{S_T0}, 0x07060302")
    g.wait_vm(i_kz)
    A0, A1, B0, B1 = V_D, V_D + 1, V_D + 2, V_D + 3
    e(f"v_lshlrev_b32 v{A0}, 16, v{T2}")
    e(f"v_and_b32 v{A1}, s{S_MASK}, v{T2}")
    e(f"v_lshlrev_b32 v{B0}, 16, v{T3}")
    e(f"v_and_b32 v{B1}, s{S_MASK}, v{T3}")
    e(f"v_mul_f32 v{A0}, v{A0}, v{B0}")
    e(f"v_mul_f32 v{A1}, v{A1}, v{B1}")
    e(f"v_and_b32 v{B0}, s{S_MASK}, v{A0}")
    e(f"v_and_b32 v{B1}, s{S_MASK}, v{A1}")
    e(f"v_sub_f32 v{B0}, v{A0}, v{B0}")
    e(f"v_sub_f32 v{B1}, v{A1}, v{B1}")
    e(f"v_perm_b32 v{A0}, v{A1}, v{A0}, s{S_T0}")
    e(f"v_perm_b32 v{B0}, v{B1}, v{B0}, s{S_T0}")
    e(f"ds_write_b32 v{T0}, v{A0} offset:{L_QS}")
    e(f"ds_write_b32 v{T0}, v{B0} offset:{L_QS+1024}")
    e(f"ds_write_b32 v{T1}, v{T4} offset:{L_KZ}")
    e(f"v_mov_b32 v{V_SLOT}, {L_SLOT+4}")
    e("s_waitcnt lgkmcnt(0)")
    e("s_barrier")
    for c in range(4):
        e(f"ds_read_b64 {vr(V_QB+2*c,2)}, v{T5} offset:{L_QS+64*c}")
    for c in range(4):
        e(f"ds_read_b64 {vr(V_PK+2*c,2)}, v{T7} offset:{L_KZ+64*c}")
    e("s_waitcnt lgkmcnt(0)")
    for ee in range(2):
        e(f"v_mfma_f32_16x16x32_bf16 {vr(V_NC,4)}, {vr(V_PK+4*ee,4)}, {vr(V_QB+4*ee,4)}, {'0' if ee == 0 else vr(V_NC,4)}")
    g.nop(10)
    for r in range(4):
        e(f"v_xor_b32 v{V_NC+r}, 0x80000000, v{V_NC+r}")

    def body(issue, tag):
        g.issued = 18
        g.known_done = 0
        iK = list(range(8))
        iVS, iVZ = 8, 9
        iV = list(range(10, 18))
        for p in range(4):
            a, ee = p >> 1, p & 1
            k0, k1 = 2 * p, 2 * p + 1
            b0, b1 = V_BUF + 4 * k0, V_BUF + 4 * k1
            pk = V_PK + 4 * (p & 1)
            g.wait_vm(iK[k0])
            for k in range(4):
                e(f"v_cvt_f32_i32 v{b0+k}, v{b0+k}")
            g.wait_vm(iK[k1])
            for k in range(4):
                e(f"v_cvt_f32_i32 v{b1+k}, v{b1+k}")
            e(f"v_cvt_pk_bf16_f32 v{pk}, v{b0}, v{b0+1}")
            e(f"v_cvt_pk_bf16_f32 v{pk+1}, v{b0+2}, v{b0+3}")
            e(f"v_cvt_pk_bf16_f32 v{pk+2}, v{b1}, v{b1+1}")
            e(f"v_cvt_pk_bf16_f32 v{pk+3}, v{b1+2}, v{b1+3}")
            if issue:
                ldK(k0)
                ldK(k1)
            else:
                g.nop(2)
            e(f"v_mfma_f32_16x16x32_bf16 {vr(V_D+4*a,4)}, {vr(pk,4)}, {vr(V_QB+4*ee,4)}, {vr(V_NC,4) if ee == 0 else vr(V_D+4*a,4)}")
        g.wait_vm(iVZ)
        X0, X1, X2, X3 = T4, T5, T6, T7
        e(f"v_lshlrev_b32 v{X0}, 16, v{V_VS}")
        e(f"v_and_b32 v{X1}, s{S_MASK}, v{V_VS}")
        e(f"v_lshlrev_b32 v{X2}, 16, v{V_VS+1}")
        e(f"v_and_b32 v{X3}, s{S_MASK}, v{V_VS+1}")
        e(f"v_mov_b32 v{V_VZ2}, v{V_VZ}")
        e(f"v_mov_b32 v{V_VZ2+1}, v{V_VZ+1}")
        if issue:
            ldVS()
            ldVZ()
        else:
            g.nop(2)
        e(f"v_add_f32_dpp v{V_S}, v{V_D+1}, v{V_D} row_ror:4 row_mask:0xf bank_mask:0xf")
        e(f"v_add_f32_dpp v{V_S+1}, v{V_D+3}, v{V_D+2} row_ror:4 row_mask:0xf bank_mask:0xf")
        e(f"v_add_f32_dpp v{V_S+2}, v{V_D+5}, v{V_D+4} row_ror:4 row_mask:0xf bank_mask:0xf")
        e(f"v_add_f32_dpp v{V_S+3}, v{V_D+7}, v{V_D+6} row_ror:4 row_mask:0xf bank_mask:0xf")
        e(f"v_add_f32_dpp v{V_S}, v{V_S}, v{V_S} row_ror:8 row_mask:0xf bank_mask:0xf")
        e(f"v_add_f32_dpp v{V_S+1}, v{V_S+1}, v{V_S+1} row_ror:8 row_mask:0xf bank_mask:0xf")
        e(f"v_add_f32_dpp v{V_S+2}, v{V_S+2}, v{V_S+2} row_ror:8 row_mask:0xf bank_mask:0xf")
        e(f"v_add_f32_dpp v{V_S+3}, v{V_S+3}, v{V_S+3} row_ror:8 row_mask:0xf bank_mask:0xf")
        e(f"v_max3_f32 v{T0}, v{V_S}, v{V_S+1}, v{V_S+2}")
        e(f"v_max_f32 v{T0}, v{T0}, v{V_S+3}")
        e(f"v_mov_b32 v{T1}, v{T0}")
        g.nop(2)
        e(f"v_permlane16_swap_b32 v{T0}, v{T1}")
        e(f"v_max_f32 v{T0}, v{T0}, v{T1}")
        e(f"v_mov_b32 v{T1}, v{T0}")
        g.nop(2)
        e(f"v_permlane32_swap_b32 v{T0}, v{T1}")
        e(f"v_max_f32 v{T0}, v{T0}, v{T1}")
        e(f"v_mul_f32 v{T0}, s{S_C}, v{T0}")
        e(f"v_cmp_gt_f32 vcc, v{T0}, v{V_M}")
        e(f"v_max_f32 v{T0}, v{T0}, v{V_M}")
        g.nop(1)
        e(f"s_and_b64 vcc, vcc, {sr(S_VALID,2)}")
        e(f"s_cbranch_scc0 L_noresc_{tag}")
        e(f"v_sub_f32 v{T1}, v{V_M}, v{T0}")
        e(f"v_exp_f32 v{T1}, v{T1}")
        g.nop(1)
        e(f"v_mul_f32 v{V_L}, v{V_L}, v{T1}")
        for h in range(4):
            e(f"v_readlane_b32 s{S_AL+h}, v{T1}, {h}")
        g.nop(2)
        for x in range(0, 36, 2):
            e(f"v_pk_mul_f32 {vr(V_ACC+x,2)}, {vr(V_ACC+x,2)}, {sr(S_AL+(x&2),2)}")
        g.lab(f"L_noresc_{tag}")
        e(f"v_mov_b32 v{V_M}, v{T0}")
        for i in range(4):
            e(f"v_fma_f32 v{V_S+i}, v{V_S+i}, s{S_C}, -v{T0}")
        for i in range(4):
            e(f"v_exp_f32 v{V_S+i}, v{V_S+i}")
        e(f"v_add_f32 v{T0}, v{V_S}, v{V_S+1}")
        e(f"v_mul_f32 v{X0}, v{X0}, v{V_S}")
        e(f"v_add_f32 v{T1}, v{V_S+2}, v{V_S+3}")
        e(f"v_mul_f32 v{X1}, v{X1}, v{V_S+1}")
        e(f"v_mul_f32 v{X2}, v{X2}, v{V_S+2}")
        e(f"v_mul_f32 v{X3}, v{X3}, v{V_S+3}")
        e(f"v_add_f32 v{V_L}, v{V_L}, v{T0}")
        for i, X in enumerate((X0, X1, X2, X3)):
            e(f"v_and_b32 v{V_S+i}, s{S_MASK}, v{X}")
        e(f"v_add_f32 v{V_L}, v{V_L}, v{T1}")
        for i, X in enumerate((X0, X1, X2, X3)):
            e(f"v_sub_f32 v{X}, v{X}, v{V_S+i}")
        for i, X in enumerate((X0, X1, X2, X3)):
            e(f"v_cndmask_b32 v{X}, v{V_S+i}, v{X}, {sr(S_ODD,2)}")
        e(f"v_cvt_pk_bf16_f32 v{V_PA}, v{X0}, v{X1}")
        e(f"v_cvt_pk_bf16_f32 v{V_PA+1}, v{X2}, v{X3}")
        g.nop(2)
        e(f"v_mfma_f32_16x16x16_bf16 {vr(V_Z,4)}, {vr(V_PA,2)}, {vr(V_VZ2,2)}, {vr(V_Z,4)}")
        for p in range(4):
            hv, q = p >> 1, p & 1
            k0, k1 = 2 * p, 2 * p + 1
            b0, b1 = V_BUF + 32 + 4 * k0, V_BUF + 32 + 4 * k1
            pk = V_PK + 8 * hv
            g.wait_vm(iV[k0])
            for k in range(4):
                e(f"v_cvt_f32_i32 v{b0+k}, v{b0+k}")
            g.wait_vm(iV[k1])
            for k in range(4):
                e(f"v_cvt_f32_i32 v{b1+k}, v{b1+k}")
            for j in range(4):
                e(f"v_cvt_pk_bf16_f32 v{pk+2*j+q}, v{b0+j}, v{b1+j}")
            if issue:
                ldV(k0)
                ldV(k1)
            elif q == 1:
                g.nop(1)
            if q == 1:
                for j in range(4):
                    acc = V_ACC + 4 * (hv * 4 + j)
                    e(f"v_mfma_f32_16x16x16_bf16 {vr(acc,4)}, {vr(V_PA,2)}, {vr(pk+2*j,2)}, {vr(acc,4)}")

    g.lab("L_loop")
    e(f"ds_read_b32 v{T0}, v{V_SLOT}")
    e("s_waitcnt lgkmcnt(0)")
    e(f"v_readfirstlane_b32 s{S_T1}, v{T0}")
    g.nop(1)
    e(f"s_cmp_eq_u32 s{S_T1}, -1")
    e("s_cbranch_scc1 L_loop")
    e(f"s_cmp_ge_u32 s{S_T1}, {NR}")
    e("s_cbranch_scc1 L_last")
    unit_offsets(S_T1)
    e(f"s_add_u32 s{S_T0}, s{S_R}, 2")
    e(f"s_sub_u32 s{S_T0}, s{S_T0}, s{S_NF}")
    e(f"s_or_b32 s{S_FL}, s{S_T0}, s{S_WAVE}")
    e("s_cbranch_scc1 L_nofetch")
    e(f"s_mov_b32 s{S_TK}, 1")
    e(f"s_atomic_add s{S_TK}, {sr(S_DBG,2)}, s{S_CTR} glc")
    g.lab("L_nofetch")
    body(True, "a")
    e(f"s_cmp_lg_u32 s{S_FL}, 0")
    e("s_cbranch_scc1 L_nopost")
    e("s_waitcnt lgkmcnt(0)")
    if J2:
        e(f"s_min_u32 s{S_T0}, s{S_TK}, {J2}")
        e(f"s_add_u32 s{S_T0}, s{S_T0}, s{S_TK}")
        e(f"s_add_u32 s{S_T0}, s{S_T0}, {NS*16}")
        e(f"s_add_u32 s{S_T1}, s{S_T0}, 1")
        e(f"s_cmp_lt_u32 s{S_TK}, {J2}")
        e(f"s_cselect_b32 s{S_T1}, s{S_T1}, -1")
        e(f"s_cselect_b32 s{S_T2}, 2, 1")
        e(f"v_mov_b32 v{T0}, s{S_T0}")
        e(f"v_mov_b32 v{T1}, s{S_T1}")
        e(f"ds_write2_b32 v{V_SLOT}, v{T0}, v{T1} offset0:1 offset1:2")
        e(f"s_add_u32 s{S_NF}, s{S_NF}, s{S_T2}")
    else:
        e(f"s_add_u32 s{S_T0}, s{S_TK}, {NS*16}")
        e(f"v_mov_b32 v{T0}, s{S_T0}")
        e(f"ds_write_b32 v{V_SLOT}, v{T0} offset:4")
        e(f"s_add_u32 s{S_NF}, s{S_NF}, 1")
    g.lab("L_nopost")
    e(f"s_add_u32 s{S_R}, s{S_R}, 1")
    e(f"v_add_u32 v{V_SLOT}, 4, v{V_SLOT}")
    e("s_branch L_loop")
    g.lab("L_last")
    body(False, "b")

    g.c("WG combine")
    if stamp:
        e(f"s_memrealtime {sr(S_TS+2,2)}")
    e(f"v_mov_b32 v{T1}, v{V_L}")
    VA, VB0, VB1, VY = T2, T3, T4, T5
    e(f"v_mul_u32_u24 v{VA}, 4608, v{V_WV}")
    e(f"v_lshrrev_b32 v{T0}, 5, v{V_LANE}")
    e(f"v_permlane16_swap_b32 v{V_L}, v{T1}")
    e(f"v_lshl_add_u32 v{VA}, v{T0}, 8, v{VA}")
    e(f"v_add_f32 v{V_L}, v{V_L}, v{T1}")
    e(f"v_mov_b32 v{T1}, v{V_L}")
    e(f"v_lshl_add_u32 v{VA}, v{V_N}, 4, v{VA}")
    e(f"v_lshrrev_b32 v{T0}, 1, v{V_WV}")
    e(f"v_permlane32_swap_b32 v{V_L}, v{T1}")
    e(f"v_lshl_add_u32 v{T0}, v{T0}, 2, v{V_G}")
    e(f"v_add_f32 v{V_L}, v{V_L}, v{T1}")
    e(f"v_mul_u32_u24 v{VB0}, 576, v{T0}")
    e(f"v_and_b32 v{T0}, 1, v{V_WV}")
    e(f"v_lshl_add_u32 v{VB0}, v{T0}, 7, v{VB0}")
    e(f"v_lshl_add_u32 v{VB0}, v{V_N}, 2, v{VB0}")
    e(f"v_add_u32 v{VB1}, 64, v{VB0}")
    e(f"v_lshlrev_b32 v{VY}, 3, v{V_H}")
    e(f"v_lshl_add_u32 v{T0}, v{V_WV}, 5, v{VY}")
    e("s_mov_b64 exec, 0xf")
    assert V_M % 2 == 0 and V_L == V_M + 1
    e(f"ds_write_b64 v{T0}, {vr(V_M,2)} offset:{L_ML}")
    e("s_mov_b64 exec, -1")
    for blk in range(8):
        for r in range(4):
            e(f"v_sub_f32 v{V_ACC+4*blk+r}, v{V_ACC+4*blk+r}, v{V_Z+r}")
    e("s_mov_b32 exec_lo, 0xffff")
    e("s_mov_b32 exec_hi, 0xffff")
    for blk in range(8):
        e(f"ds_write_b128 v{VA}, {vr(V_ACC+4*blk,4)} offset:{L_O+blk*576}")
    e("s_mov_b64 exec, -1")
    e("s_waitcnt lgkmcnt(0)")
    e("s_barrier")
    RB = V_BUF
    MB = V_BUF + 16
    for w in range(4):
        e(f"ds_read_b64 {vr(MB+2*w,2)}, v{VY} offset:{L_ML+w*32}")
    for p in range(2):
        for w in range(4):
            o0 = L_O // 256 + w * 18
            e(f"ds_read2st64_b32 {vr(RB+8*p+2*w,2)}, v{VB1 if p else VB0} offset0:{o0} offset1:{o0+1}")
    S_REC, S_RECE, S_OWN, S_OWNE = S_BKV, S_BVS, S_OFF, S_OFFS
    e(f"s_lshl_b32 s{S_T0}, s{S_KVH}, 2")
    e(f"s_add_u32 s{S_T0}, s{S_T0}, s{S_WAVE}")
    e(f"s_lshl_b32 s{S_REC}, s{S_T0}, 14")
    e(f"s_and_b32 s{S_T1}, s2, 31")
    e(f"s_lshl_b32 s{S_OWN}, s{S_T1}, 9")
    e(f"s_add_u32 s{S_OWN}, s{S_OWN}, s{S_REC}")
    e(f"s_lshl_b32 s{S_RECE}, s{S_T0}, 9")
    e(f"s_add_u32 s{S_RECE}, s{S_RECE}, {WS_E}")
    e(f"s_lshl_b32 s{S_OWNE}, s{S_T1}, 4")
    e(f"s_add_u32 s{S_OWNE}, s{S_OWNE}, s{S_RECE}")
    e(f"v_lshlrev_b32 v{VA}, 2, v{V_LANE}")
    e("s_waitcnt lgkmcnt(8)")
    VMX, VLs, VR = T0, T1, T6
    e(f"v_max3_f32 v{VMX}, v{MB}, v{MB+2}, v{MB+4}")
    e(f"v_max_f32 v{VMX}, v{VMX}, v{MB+6}")
    for w in range(4):
        e(f"v_sub_f32 v{MB+2*w}, v{MB+2*w}, v{VMX}")
    for w in range(4):
        e(f"v_exp_f32 v{MB+2*w}, v{MB+2*w}")
    g.nop(1)
    e(f"v_mul_f32 v{VLs}, v{MB}, v{MB+1}")
    for w in range(1, 4):
        e(f"v_fmac_f32 v{VLs}, v{MB+2*w}, v{MB+2*w+1}")
    e("s_waitcnt lgkmcnt(0)")
    e(f"v_rcp_f32 v{VR}, v{VLs}")
    e(f"v_log_f32 v{VLs}, v{VLs}")
    for x in range(8):
        e(f"v_add_f32 v{RB+2*x}, v{RB+2*x}, v{RB+2*x+1}")
    X = V_BUF + 32
    for p in range(2):
        e(f"v_mul_f32 v{X+4*p}, v{MB}, v{RB+8*p}")
        for w in range(1, 4):
            e(f"v_fmac_f32 v{X+4*p}, v{MB+2*w}, v{RB+8*p+2*w}")
    e(f"v_mul_f32 v{X}, v{X}, v{VR}")
    e(f"v_mul_f32 v{X+4}, v{X+4}, v{VR}")
    e(f"v_add_f32 v{X+8}, v{VMX}, v{VLs}")
    g.nop(1)
    for b in range(3):
        for k in range(1, 4):
            e(f"v_mov_b32_dpp v{X+4*b+k}, v{X+4*b} quad_perm:[{k},{k},{k},{k}] row_mask:0xf bank_mask:0xf")
    e("s_mov_b32 exec_lo, 0x11111111")
    e("s_mov_b32 exec_hi, 0x11111111")
    g.issued = 0
    g.known_done = 0
    g.vm(f"buffer_store_dwordx4 {vr(X,4)}, v{VA}, {sr(R_WS,4)}, s{S_OWN} offen sc1")
    g.vm(f"buffer_store_dwordx4 {vr(X+4,4)}, v{VA}, {sr(R_WS,4)}, s{S_OWN} offen offset:256 sc1")
    e("s_mov_b64 exec, 1")
    g.vm(f"buffer_store_dwordx4 {vr(X+8,4)}, v{VA}, {sr(R_WS,4)}, s{S_OWNE} offen sc1")
    e(f"v_mov_b32 v{T1}, 1")
    e(f"s_lshl_b32 s{S_T2}, s{S_KVH}, 5")
    e(f"s_add_u32 s{S_T2}, s{S_T2}, 8")
    e("s_waitcnt vmcnt(0)")
    g.known_done = g.issued
    e("s_barrier")
    e(f"s_cmp_lg_u32 s{S_WAVE}, 0")
    e("s_cbranch_scc1 L_skip_atomic")
    g.vm(f"buffer_atomic_add v{T1}, v{VA}, {sr(R_DBG,4)}, s{S_T2} offen sc0")
    e("s_waitcnt vmcnt(0)")
    g.known_done = g.issued
    e(f"ds_write_b32 v{VA}, v{T1} offset:{L_FLAG}")
    e("s_waitcnt lgkmcnt(0)")
    g.lab("L_skip_atomic")
    e("s_barrier")
    e(f"ds_read_b32 v{T1}, v{VA} offset:{L_FLAG}")
    e("s_waitcnt lgkmcnt(0)")
    e(f"v_readfirstlane_b32 s{S_T0}, v{T1}")
    e("s_mov_b64 exec, -1")
    g.nop(2)
    if stamp:
        e(f"s_memrealtime {sr(S_TS+4,2)}")
        e("s_waitcnt lgkmcnt(0)")
        e(f"s_lshl_b32 s{S_T1}, s2, 2")
        e(f"s_add_u32 s{S_T1}, s{S_T1}, s{S_WAVE}")
        e(f"s_lshl_b32 s{S_T1}, s{S_T1}, 5")
        e(f"s_add_u32 s{S_T1}, s{S_T1}, 0x100000")
        e(f"s_getreg_b32 s{S_TS+6}, hwreg(HW_REG_XCC_ID)")
        e(f"s_getreg_b32 s{S_TS+7}, hwreg(HW_REG_HW_ID)")
        e(f"s_and_b32 s{S_TS+6}, s{S_TS+6}, 15")
        e(f"s_lshl_b32 s{S_TS+7}, s{S_TS+7}, 4")
        e(f"s_or_b32 s{S_TS+6}, s{S_TS+6}, s{S_TS+7}")
        for k in range(4):
            e(f"v_mov_b32 v{X+k}, s{S_TS+2*k}")
        e(f"v_mov_b32 v{X+4}, s{S_R}")
        e(f"v_mov_b32 v{X+5}, s{S_TS}")
        e(f"v_mov_b32 v{X+6}, s{S_TS}")
        e(f"v_mov_b32 v{X+7}, s{S_TS}")
        e("s_mov_b64 exec, 1")
        g.vm(f"buffer_store_dwordx4 {vr(X,4)}, v{VA}, {sr(R_WS,4)}, s{S_T1} offen")
        g.vm(f"buffer_store_dwordx4 {vr(X+4,4)}, v{VA}, {sr(R_WS,4)}, s{S_T1} offen offset:16")
        e("s_mov_b64 exec, -1")
        e("s_waitcnt vmcnt(0)")
        g.known_done = g.issued
    e(f"s_cmp_lg_u32 s{S_T0}, 31")
    e("s_cbranch_scc1 L_end")

    g.c("final combine")
    OB = V_BUF
    EB = V_BUF + 64
    e(f"v_lshlrev_b32 v{VA}, 9, v{V_G}")
    e(f"v_lshl_add_u32 v{VA}, v{V_N}, 4, v{VA}")
    e(f"v_lshlrev_b32 v{VB0}, 4, v{V_G}")
    ie = []
    for k in range(8):
        ie.append(g.vm(f"buffer_load_dwordx4 {vr(EB+4*k,4)}, v{VB0}, {sr(R_WS,4)}, s{S_RECE} offen offset:{k*64} sc1"))
    io = []
    for k in range(8):
        if k and k % 2 == 0:
            e(f"s_add_u32 s{S_REC}, s{S_REC}, 4096")
        for p in range(2):
            io.append(g.vm(f"buffer_load_dwordx4 {vr(OB+8*k+4*p,4)}, v{VA}, {sr(R_WS,4)}, s{S_REC} offen offset:{(k&1)*2048+p*256} sc1"))
    VOUT = T7
    e(f"v_lshrrev_b32 v{T0}, 2, v{V_N}")
    e(f"v_lshl_add_u32 v{T0}, v{V_H}, 2, v{T0}")
    e(f"v_lshlrev_b32 v{VOUT}, 1, v{T0}")
    e(f"v_lshl_add_u32 v{VOUT}, v{V_G}, 8, v{VOUT}")
    e(f"s_lshl_b32 s{S_T0}, s{S_WAVE}, 6")
    e(f"s_add_u32 s{S_T0}, s{S_T0}, s{S_QO}")
    g.wait_vm(ie[-1])
    MX = V_ACC
    M2 = V_ACC + 4
    for h in range(4):
        e(f"v_max3_f32 v{MX+h}, v{EB+h}, v{EB+4+h}, v{EB+8+h}")
        e(f"v_max3_f32 v{MX+h}, v{MX+h}, v{EB+12+h}, v{EB+16+h}")
        e(f"v_max3_f32 v{MX+h}, v{MX+h}, v{EB+20+h}, v{EB+24+h}")
        e(f"v_max_f32 v{MX+h}, v{MX+h}, v{EB+28+h}")
    for h in range(4):
        e(f"v_mov_b32 v{M2+h}, v{MX+h}")
    g.nop(1)
    for h in range(4):
        e(f"v_permlane16_swap_b32 v{MX+h}, v{M2+h}")
    for h in range(4):
        e(f"v_max_f32 v{MX+h}, v{MX+h}, v{M2+h}")
    for h in range(4):
        e(f"v_mov_b32 v{M2+h}, v{MX+h}")
    g.nop(1)
    for h in range(4):
        e(f"v_permlane32_swap_b32 v{MX+h}, v{M2+h}")
    for h in range(4):
        e(f"v_max_f32 v{MX+h}, v{MX+h}, v{M2+h}")
    for k in range(8):
        for h in range(4):
            e(f"v_sub_f32 v{EB+4*k+h}, v{EB+4*k+h}, v{MX+h}")
    for k in range(32):
        e(f"v_exp_f32 v{EB+k}, v{EB+k}")
    DN = V_ACC + 8
    NU = V_ACC + 12
    g.nop(1)
    for h in range(4):
        e(f"v_add_f32 v{DN+h}, v{EB+h}, v{EB+4+h}")
    for k in range(2, 8):
        for h in range(4):
            e(f"v_add_f32 v{DN+h}, v{DN+h}, v{EB+4*k+h}")
    for k in range(8):
        for p in range(2):
            g.wait_vm(io[2 * k + p])
            for h in range(4):
                if k == 0:
                    e(f"v_mul_f32 v{NU+4*p+h}, v{EB+h}, v{OB+4*p+h}")
                else:
                    e(f"v_fmac_f32 v{NU+4*p+h}, v{EB+4*k+h}, v{OB+8*k+4*p+h}")
    g.nop(2)
    bases = (DN, NU, NU + 4)
    for base in bases:
        e(f"v_permlane16_swap_b32 v{base}, v{base+1}")
        e(f"v_permlane16_swap_b32 v{base+2}, v{base+3}")
    for base in bases:
        e(f"v_add_f32 v{base}, v{base}, v{base+1}")
        e(f"v_add_f32 v{base+2}, v{base+2}, v{base+3}")
    g.nop(2)
    for base in bases:
        e(f"v_permlane32_swap_b32 v{base}, v{base+2}")
    for base in bases:
        e(f"v_add_f32 v{base}, v{base}, v{base+2}")
    e(f"v_rcp_f32 v{DN}, v{DN}")
    g.nop(1)
    e(f"v_mul_f32 v{NU}, v{NU}, v{DN}")
    e(f"v_mul_f32 v{NU+4}, v{NU+4}, v{DN}")
    e(f"v_cvt_pk_bf16_f32 v{NU}, v{NU}, v{NU+4}")
    g.vm(f"buffer_store_short v{NU}, v{VOUT}, {sr(R_OUT,4)}, s{S_T0} offen")
    g.vm(f"buffer_store_short_d16_hi v{NU}, v{VOUT}, {sr(R_OUT,4)}, s{S_T0} offen offset:32")
    if dbgtime:
        e(f"s_memrealtime {sr(S_TS+2,2)}")
        e("s_waitcnt lgkmcnt(0)")
        e(f"s_sub_u32 s{S_T1}, s{S_TS+2}, s{S_TS}")
        e(f"v_mov_b32 v{T0}, s{S_T1}")
        e(f"v_mov_b32 v{T1}, 0")
        e(f"s_lshl_b32 s{S_T2}, s{S_KVH}, 3")
        e(f"s_add_u32 s{S_T2}, s{S_T2}, 4")
        e("s_mov_b64 exec, 1")
        e(f"buffer_store_dword v{T0}, v{T1}, {sr(R_DBG,4)}, s{S_T2} offen")
    g.lab("L_end")
    e("s_endpgm")

    body_t = "\n".join(g.L)
    nv = (NV + 7) // 8 * 8
    acc_off = min(nv, 256)
    text = HEADER + f"; @launch grid=(256,1,1) block=(256,1,1) lds={LDS}\n"
    text += f""".amdgcn_target "amdgcn-amd-amdhsa--gfx950"
.text
.globl {NAME}_kernel
.p2align 8
.type {NAME}_kernel,@function
{NAME}_kernel:
{body_t}
.section .rodata,"a"
.p2align 6
.amdhsa_kernel {NAME}_kernel
  .amdhsa_next_free_vgpr {nv}
  .amdhsa_next_free_sgpr {NSGPR}
  .amdhsa_accum_offset {acc_off}
  .amdhsa_group_segment_fixed_size 0
  .amdhsa_kernarg_size 80
  .amdhsa_user_sgpr_count 2
  .amdhsa_user_sgpr_kernarg_segment_ptr 1
  .amdhsa_system_sgpr_workgroup_id_x 1
  .amdhsa_float_denorm_mode_32 3
.end_amdhsa_kernel
"""
    return text


if __name__ == "__main__":
    ap = argparse.ArgumentParser()
    ap.add_argument("-o", default=f"cdna_kernels/{NAME}.s")
    ap.add_argument("--pol", default="nt")
    ap.add_argument("--NS", type=int, default=10)
    ap.add_argument("--J2", type=int, default=0)
    ap.add_argument("--PHI", type=int, default=20)
    ap.add_argument("--stamp", action="store_true")
    ap.add_argument("--nv", type=int, default=0)
    ap.add_argument("--lds", type=int, default=0)
    ap.add_argument("--iod", type=int, default=-1)
    ap.add_argument("--dbgtime", action="store_true")
    a = ap.parse_args()
    open(a.o, "w").write(gen(pol=a.pol, NS=a.NS, J2=a.J2, PHI=a.PHI, stamp=a.stamp, nv_force=a.nv, lds_force=a.lds, iod=a.iod, dbgtime=a.dbgtime))
    print("wrote", a.o)
```

```python
import sys, math, argparse
from gen import G, vr, sr, NAME, HEADER, f32bits


def gen(pol="nt", NS=10, J2=0, PHI=20, stamp=False, nv_force=0, lds_force=0, ctr_stride=16, iod=-1, dbgtime=False, NO=0, atlat=False):
    g = G()
    e = g.e
    pol = (" " + pol) if pol else ""
    C = (128.0 ** -0.5) * math.log2(math.e)
    NR = 256
    assert 2 <= NS <= 16

    S_Q, S_QK, S_QV, S_KS, S_KZ, S_VS, S_VZ, S_OUT, S_DBG, S_WS = 4, 6, 8, 10, 12, 14, 16, 18, 20, 22
    R_K, R_V, R_VS, R_VZ, R_Q, R_KS, R_KZ, R_OUT, R_WS, R_DBG = 24, 28, 32, 36, 40, 44, 48, 52, 56, 60
    S_STRM, S_WGI, S_KVH, S_WAVE, S_C, S_MASK = 64, 65, 66, 67, 68, 69
    S_BKV, S_BVS, S_PHI, S_OFF, S_OFFS, S_R, S_TK, S_NF = 70, 71, 72, 73, 74, 75, 76, 77
    S_T0, S_T1 = 78, 79
    S_ODD, S_VALID = 80, 82
    S_AL = 84
    S_CTR = 88
    S_FL = 89
    S_QO = 90
    S_T2 = 91
    S_TS = 92
    NSGPR = 102

    V_LANE, V_KO, V_VO, V_SO, V_WV, V_G, V_N, V_H = 1, 2, 3, 4, 5, 6, 7, 8
    V_SLOT = 9
    V_M, V_L = 10, 11
    V_T = 12
    V_QB = 20
    V_NC = 28
    V_D = 32
    V_S = 40
    V_PA = 44
    V_VS = 46
    V_VZ = 48
    V_VZ2 = 50
    V_PK = 52
    V_ACC = 68
    V_Z = 100
    V_BUF = 104
    NV = V_BUF + 96
    if nv_force:
        NV = max(NV, nv_force)

    L_QS = 0
    L_KZ = 2048
    L_ML = 2304
    L_FLAG = 2432
    L_SLOT = 2560
    L_O = 3840
    assert L_O % 256 == 0
    LDS = L_O + 4 * 4608
    if lds_force:
        LDS = max(LDS, lds_force)

    WS_E = 32 * 16384

    e("s_cmp_ge_u32 s2, 256")
    e("s_cbranch_scc1 L_end")
    e("s_load_dwordx16 s[4:19], s[0:1], 0")
    e("s_load_dwordx4 s[20:23], s[0:1], 64")
    if stamp or dbgtime:
        e(f"s_memrealtime {sr(S_TS,2)}")
    e(f"v_and_b32 v{V_LANE}, 63, v0")
    e(f"v_lshrrev_b32 v{V_WV}, 6, v0")
    e(f"v_lshrrev_b32 v{V_G}, 4, v{V_LANE}")
    e(f"v_and_b32 v{V_N}, 15, v{V_LANE}")
    e(f"v_and_b32 v{V_H}, 3, v{V_LANE}")
    e(f"v_readfirstlane_b32 s{S_WAVE}, v{V_WV}")
    T0, T1, T2, T3, T4, T5, T6, T7 = range(V_T, V_T + 8)
    WSH = 14 if iod >= 0 else 13
    e(f"v_lshlrev_b32 v{V_KO}, {WSH}, v{V_WV}")
    e(f"v_lshrrev_b32 v{T0}, 2, v{V_N}")
    e(f"v_lshl_add_u32 v{V_KO}, v{T0}, 11, v{V_KO}")
    e(f"v_bfe_u32 v{T0}, v{V_N}, 1, 1")
    e(f"v_lshl_add_u32 v{V_KO}, v{T0}, 9, v{V_KO}")
    e(f"v_and_b32 v{T7}, 1, v{V_N}")
    e(f"v_lshl_add_u32 v{V_KO}, v{T7}, 6, v{V_KO}")
    e(f"v_lshl_add_u32 v{V_KO}, v{V_G}, 4, v{V_KO}")
    e(f"v_lshlrev_b32 v{V_VO}, {WSH}, v{V_WV}")
    e(f"v_lshl_add_u32 v{V_VO}, v{V_G}, 11, v{V_VO}")
    e(f"v_lshl_add_u32 v{V_VO}, v{V_N}, 4, v{V_VO}")
    e(f"v_lshlrev_b32 v{V_SO}, {WSH-8}, v{V_WV}")
    e(f"v_lshl_add_u32 v{V_SO}, v{V_G}, 3, v{V_SO}")
    e(f"v_lshlrev_b32 v{T0}, 2, v0")
    e(f"v_lshlrev_b32 v{T1}, 2, v{V_LANE}")
    e(f"s_lshr_b32 s{S_STRM}, s2, 4")
    e(f"s_and_b32 s{S_WGI}, s2, 15")
    e(f"s_lshr_b32 s{S_KVH}, s2, 5")
    e(f"s_lshl_b32 s{S_BKV}, s{S_STRM}, 23")
    e(f"s_lshl_b32 s{S_BVS}, s{S_STRM}, 15")
    e(f"s_mul_i32 s{S_PHI}, s{S_STRM}, {PHI}")
    e(f"s_lshl_b32 s{S_QO}, s{S_KVH}, 10")
    e(f"s_lshl_b32 s{S_T1}, s{S_STRM}, 8")
    e(f"s_mul_i32 s{S_CTR}, s{S_STRM}, {ctr_stride}")
    e(f"s_mov_b32 s{S_C}, 0x{f32bits(C):08x}")
    e(f"s_mov_b32 s{S_MASK}, 0xffff0000")
    e(f"s_mov_b32 s{S_R}, 0")
    e(f"s_mov_b32 s{S_TS+8}, 0")
    e(f"s_mov_b32 s{S_TS+9}, 0")
    e(f"s_mov_b32 s{S_NF}, {1000 if NO else NS}")

    S_IOD = S_T2 + 0
    def unit_offsets(sx):
        if iod >= 0:
            e(f"s_lshr_b32 s{S_T0}, s{sx}, 3")
            e(f"s_lshl_b32 s{S_T0}, s{S_T0}, 2")
            e(f"s_and_b32 s{S_OFF}, s{sx}, 3")
            e(f"s_add_u32 s{S_T0}, s{S_T0}, s{S_OFF}")
            e(f"s_add_u32 s{S_T0}, s{S_T0}, s{S_PHI}")
            e(f"s_and_b32 s{S_T0}, s{S_T0}, 127")
            e(f"s_lshr_b32 s{S_OFF}, s{S_T0}, 3")
            e(f"s_xor_b32 s{S_OFF}, s{S_OFF}, s{sx}")
            if iod:
                e(f"s_xor_b32 s{S_OFF}, s{S_OFF}, 4")
            e(f"s_and_b32 s{S_OFF}, s{S_OFF}, 4")
            e(f"s_lshl_b32 s{S_T0}, s{S_T0}, 5")
            e(f"s_add_u32 s{S_T0}, s{S_T0}, s{S_OFF}")
            e(f"s_lshl_b32 s{S_OFF}, s{S_T0}, 11")
            e(f"s_add_u32 s{S_OFF}, s{S_OFF}, s{S_BKV}")
            e(f"s_lshl_b32 s{S_OFFS}, s{S_T0}, 3")
            e(f"s_add_u32 s{S_OFFS}, s{S_OFFS}, s{S_BVS}")
            return
        e(f"s_add_u32 s{S_T0}, s{sx}, s{S_PHI}")
        e(f"s_and_b32 s{S_T0}, s{S_T0}, {NR-1}")
        e(f"s_lshl_b32 s{S_OFF}, s{S_T0}, 15")
        e(f"s_add_u32 s{S_OFF}, s{S_OFF}, s{S_BKV}")
        e(f"s_lshl_b32 s{S_OFFS}, s{S_T0}, 7")
        e(f"s_add_u32 s{S_OFFS}, s{S_OFFS}, s{S_BVS}")

    unit_offsets(S_WGI)
    for r, n in ((R_K, 1 << 27), (R_V, 1 << 27), (R_VS, 1 << 19), (R_VZ, 1 << 19), (R_Q, 8192),
                 (R_KS, 4096), (R_KZ, 4096), (R_OUT, 8192), (R_WS, 1 << 29), (R_DBG, 256)):
        e(f"s_mov_b32 s{r+2}, 0x{n:x}")
        e(f"s_mov_b32 s{r+3}, 0x00020000")
    e("s_waitcnt lgkmcnt(0)")
    for r, p in ((R_Q, S_Q), (R_KS, S_KS), (R_KZ, S_KZ), (R_K, S_QK)):
        e(f"s_mov_b32 s{r}, s{p}")
        e(f"s_mov_b32 s{r+1}, s{p+1}")
    g.vm(f"buffer_load_dword v{T2}, v{T0}, {sr(R_Q,4)}, s{S_QO} offen")
    g.vm(f"buffer_load_dword v{T3}, v{T1}, {sr(R_KS,4)}, s{S_T1} offen")
    i_kz = g.vm(f"buffer_load_dword v{T4}, v{T1}, {sr(R_KZ,4)}, s{S_T1} offen")

    def ldK(k):
        a, c = k >> 2, k & 3
        return g.vm(f"buffer_load_dwordx4 {vr(V_BUF+4*k,4)}, v{V_KO}, {sr(R_K,4)}, s{S_OFF} offen offset:{a*1024+c*128}{pol}")

    def ldV(k):
        hv, i = k >> 2, k & 3
        return g.vm(f"buffer_load_dwordx4 {vr(V_BUF+32+4*k,4)}, v{V_VO}, {sr(R_V,4)}, s{S_OFF} offen offset:{i*512+hv*256}{pol}")

    def ldVS():
        return g.vm(f"buffer_load_dwordx2 {vr(V_VS,2)}, v{V_SO}, {sr(R_VS,4)}, s{S_OFFS} offen")

    def ldVZ():
        return g.vm(f"buffer_load_dwordx2 {vr(V_VZ,2)}, v{V_SO}, {sr(R_VZ,4)}, s{S_OFFS} offen")

    for k in range(8):
        ldK(k)
    for r, p in ((R_V, S_QV), (R_VS, S_VS), (R_VZ, S_VZ), (R_OUT, S_OUT), (R_WS, S_WS), (R_DBG, S_DBG)):
        e(f"s_mov_b32 s{r}, s{p}")
        e(f"s_mov_b32 s{r+1}, s{p+1}")
    ldVS()
    ldVZ()
    for k in range(8):
        ldV(k)

    e(f"v_and_b32 v{T5}, 8, v{V_LANE}")
    e(f"v_cmp_ne_u32 {sr(S_ODD,2)}, 0, v{T5}")
    e(f"v_and_b32 v{T6}, 4, v{V_LANE}")
    e(f"v_cmp_eq_u32 {sr(S_VALID,2)}, 0, v{T6}")
    e(f"v_lshlrev_b32 v{V_SLOT}, 4, v0")
    e(f"v_add_u32 v{V_SLOT}, s{S_WGI}, v{V_SLOT}")
    e(f"v_mov_b32 v{V_M}, 0xff7fffff")
    e(f"v_mov_b32 v{V_L}, 0")
    if NO:
        e(f"s_lshr_b32 s{S_T0}, s{S_WGI}, 1")
        e(f"s_add_u32 s{S_T0}, s{S_T0}, {NO*8}")
        e(f"s_and_b32 s{S_T2}, s{S_WGI}, 1")
        e(f"s_lshl_b32 s{S_T2}, s{S_T2}, 12")
        e(f"s_add_u32 s{S_T0}, s{S_T0}, s{S_T2}")
        e(f"v_lshlrev_b32 v{V_D}, 3, v0")
        e(f"v_add_u32 v{V_D}, s{S_T0}, v{V_D}")
        e(f"v_cmp_gt_u32 vcc, {NO}, v0")
        g.nop(2)
        e(f"v_cndmask_b32 v{V_SLOT}, v{V_D}, v{V_SLOT}, vcc")
    else:
        e(f"v_cmp_gt_u32 vcc, {NS}, v0")
        g.nop(2)
        e(f"v_cndmask_b32 v{V_SLOT}, -1, v{V_SLOT}, vcc")
    e(f"ds_write_b32 v{T0}, v{V_SLOT} offset:{L_SLOT}")
    for x in range(36):
        e(f"v_mov_b32 v{V_ACC+x}, 0")
    e(f"v_lshlrev_b32 v{T5}, 7, v{T5}")
    e(f"v_lshl_add_u32 v{T5}, v{V_H}, 8, v{T5}")
    e(f"v_lshl_add_u32 v{T5}, v{T6}, 3, v{T5}")
    e(f"v_lshl_add_u32 v{T5}, v{V_G}, 3, v{T5}")
    e(f"v_lshlrev_b32 v{T7}, 5, v{T7}")
    e(f"v_lshl_add_u32 v{T7}, v{V_G}, 3, v{T7}")
    e(f"s_mov_b32 s{S_T0}, 0x07060302")
    g.wait_vm(i_kz)
    A0, A1, B0, B1 = V_D, V_D + 1, V_D + 2, V_D + 3
    e(f"v_lshlrev_b32 v{A0}, 16, v{T2}")
    e(f"v_and_b32 v{A1}, s{S_MASK}, v{T2}")
    e(f"v_lshlrev_b32 v{B0}, 16, v{T3}")
    e(f"v_and_b32 v{B1}, s{S_MASK}, v{T3}")
    e(f"v_mul_f32 v{A0}, v{A0}, v{B0}")
    e(f"v_mul_f32 v{A1}, v{A1}, v{B1}")
    e(f"v_and_b32 v{B0}, s{S_MASK}, v{A0}")
    e(f"v_and_b32 v{B1}, s{S_MASK}, v{A1}")
    e(f"v_sub_f32 v{B0}, v{A0}, v{B0}")
    e(f"v_sub_f32 v{B1}, v{A1}, v{B1}")
    e(f"v_perm_b32 v{A0}, v{A1}, v{A0}, s{S_T0}")
    e(f"v_perm_b32 v{B0}, v{B1}, v{B0}, s{S_T0}")
    e(f"ds_write_b32 v{T0}, v{A0} offset:{L_QS}")
    e(f"ds_write_b32 v{T0}, v{B0} offset:{L_QS+1024}")
    e(f"ds_write_b32 v{T1}, v{T4} offset:{L_KZ}")
    e(f"v_mov_b32 v{V_SLOT}, {L_SLOT+4}")
    e("s_waitcnt lgkmcnt(0)")
    e("s_barrier")
    for c in range(4):
        e(f"ds_read_b64 {vr(V_QB+2*c,2)}, v{T5} offset:{L_QS+64*c}")
    for c in range(4):
        e(f"ds_read_b64 {vr(V_PK+2*c,2)}, v{T7} offset:{L_KZ+64*c}")
    e("s_waitcnt lgkmcnt(0)")
    for ee in range(2):
        e(f"v_mfma_f32_16x16x32_bf16 {vr(V_NC,4)}, {vr(V_PK+4*ee,4)}, {vr(V_QB+4*ee,4)}, {'0' if ee == 0 else vr(V_NC,4)}")
    g.nop(10)
    for r in range(4):
        e(f"v_xor_b32 v{V_NC+r}, 0x80000000, v{V_NC+r}")

    def body(issue, tag):
        g.issued = 18
        g.known_done = 0
        iK = list(range(8))
        iVS, iVZ = 8, 9
        iV = list(range(10, 18))
        for p in range(4):
            a, ee = p >> 1, p & 1
            k0, k1 = 2 * p, 2 * p + 1
            b0, b1 = V_BUF + 4 * k0, V_BUF + 4 * k1
            pk = V_PK + 4 * (p & 1)
            g.wait_vm(iK[k0])
            for k in range(4):
                e(f"v_cvt_f32_i32 v{b0+k}, v{b0+k}")
            g.wait_vm(iK[k1])
            for k in range(4):
                e(f"v_cvt_f32_i32 v{b1+k}, v{b1+k}")
            e(f"v_cvt_pk_bf16_f32 v{pk}, v{b0}, v{b0+1}")
            e(f"v_cvt_pk_bf16_f32 v{pk+1}, v{b0+2}, v{b0+3}")
            e(f"v_cvt_pk_bf16_f32 v{pk+2}, v{b1}, v{b1+1}")
            e(f"v_cvt_pk_bf16_f32 v{pk+3}, v{b1+2}, v{b1+3}")
            if issue:
                ldK(k0)
                ldK(k1)
            else:
                g.nop(2)
            e(f"v_mfma_f32_16x16x32_bf16 {vr(V_D+4*a,4)}, {vr(pk,4)}, {vr(V_QB+4*ee,4)}, {vr(V_NC,4) if ee == 0 else vr(V_D+4*a,4)}")
        g.wait_vm(iVZ)
        X0, X1, X2, X3 = T4, T5, T6, T7
        e(f"v_lshlrev_b32 v{X0}, 16, v{V_VS}")
        e(f"v_and_b32 v{X1}, s{S_MASK}, v{V_VS}")
        e(f"v_lshlrev_b32 v{X2}, 16, v{V_VS+1}")
        e(f"v_and_b32 v{X3}, s{S_MASK}, v{V_VS+1}")
        e(f"v_mov_b32 v{V_VZ2}, v{V_VZ}")
        e(f"v_mov_b32 v{V_VZ2+1}, v{V_VZ+1}")
        if issue:
            ldVS()
            ldVZ()
        else:
            g.nop(2)
        e(f"v_add_f32_dpp v{V_S}, v{V_D+1}, v{V_D} row_ror:4 row_mask:0xf bank_mask:0xf")
        e(f"v_add_f32_dpp v{V_S+1}, v{V_D+3}, v{V_D+2} row_ror:4 row_mask:0xf bank_mask:0xf")
        e(f"v_add_f32_dpp v{V_S+2}, v{V_D+5}, v{V_D+4} row_ror:4 row_mask:0xf bank_mask:0xf")
        e(f"v_add_f32_dpp v{V_S+3}, v{V_D+7}, v{V_D+6} row_ror:4 row_mask:0xf bank_mask:0xf")
        e(f"v_add_f32_dpp v{V_S}, v{V_S}, v{V_S} row_ror:8 row_mask:0xf bank_mask:0xf")
        e(f"v_add_f32_dpp v{V_S+1}, v{V_S+1}, v{V_S+1} row_ror:8 row_mask:0xf bank_mask:0xf")
        e(f"v_add_f32_dpp v{V_S+2}, v{V_S+2}, v{V_S+2} row_ror:8 row_mask:0xf bank_mask:0xf")
        e(f"v_add_f32_dpp v{V_S+3}, v{V_S+3}, v{V_S+3} row_ror:8 row_mask:0xf bank_mask:0xf")
        e(f"v_max3_f32 v{T0}, v{V_S}, v{V_S+1}, v{V_S+2}")
        e(f"v_max_f32 v{T0}, v{T0}, v{V_S+3}")
        e(f"v_mov_b32 v{T1}, v{T0}")
        g.nop(2)
        e(f"v_permlane16_swap_b32 v{T0}, v{T1}")
        e(f"v_max_f32 v{T0}, v{T0}, v{T1}")
        e(f"v_mov_b32 v{T1}, v{T0}")
        g.nop(2)
        e(f"v_permlane32_swap_b32 v{T0}, v{T1}")
        e(f"v_max_f32 v{T0}, v{T0}, v{T1}")
        e(f"v_mul_f32 v{T0}, s{S_C}, v{T0}")
        e(f"v_cmp_gt_f32 vcc, v{T0}, v{V_M}")
        e(f"v_max_f32 v{T0}, v{T0}, v{V_M}")
        g.nop(1)
        e(f"s_and_b64 vcc, vcc, {sr(S_VALID,2)}")
        e(f"s_cbranch_scc0 L_noresc_{tag}")
        e(f"v_sub_f32 v{T1}, v{V_M}, v{T0}")
        e(f"v_exp_f32 v{T1}, v{T1}")
        g.nop(1)
        e(f"v_mul_f32 v{V_L}, v{V_L}, v{T1}")
        for h in range(4):
            e(f"v_readlane_b32 s{S_AL+h}, v{T1}, {h}")
        g.nop(2)
        for x in range(0, 36, 2):
            e(f"v_pk_mul_f32 {vr(V_ACC+x,2)}, {vr(V_ACC+x,2)}, {sr(S_AL+(x&2),2)}")
        g.lab(f"L_noresc_{tag}")
        e(f"v_mov_b32 v{V_M}, v{T0}")
        for i in range(4):
            e(f"v_fma_f32 v{V_S+i}, v{V_S+i}, s{S_C}, -v{T0}")
        for i in range(4):
            e(f"v_exp_f32 v{V_S+i}, v{V_S+i}")
        e(f"v_add_f32 v{T0}, v{V_S}, v{V_S+1}")
        e(f"v_mul_f32 v{X0}, v{X0}, v{V_S}")
        e(f"v_add_f32 v{T1}, v{V_S+2}, v{V_S+3}")
        e(f"v_mul_f32 v{X1}, v{X1}, v{V_S+1}")
        e(f"v_mul_f32 v{X2}, v{X2}, v{V_S+2}")
        e(f"v_mul_f32 v{X3}, v{X3}, v{V_S+3}")
        e(f"v_add_f32 v{V_L}, v{V_L}, v{T0}")
        for i, X in enumerate((X0, X1, X2, X3)):
            e(f"v_and_b32 v{V_S+i}, s{S_MASK}, v{X}")
        e(f"v_add_f32 v{V_L}, v{V_L}, v{T1}")
        for i, X in enumerate((X0, X1, X2, X3)):
            e(f"v_sub_f32 v{X}, v{X}, v{V_S+i}")
        for i, X in enumerate((X0, X1, X2, X3)):
            e(f"v_cndmask_b32 v{X}, v{V_S+i}, v{X}, {sr(S_ODD,2)}")
        e(f"v_cvt_pk_bf16_f32 v{V_PA}, v{X0}, v{X1}")
        e(f"v_cvt_pk_bf16_f32 v{V_PA+1}, v{X2}, v{X3}")
        g.nop(2)
        e(f"v_mfma_f32_16x16x16_bf16 {vr(V_Z,4)}, {vr(V_PA,2)}, {vr(V_VZ2,2)}, {vr(V_Z,4)}")
        for p in range(4):
            hv, q = p >> 1, p & 1
            k0, k1 = 2 * p, 2 * p + 1
            b0, b1 = V_BUF + 32 + 4 * k0, V_BUF + 32 + 4 * k1
            pk = V_PK + 8 * hv
            g.wait_vm(iV[k0])
            for k in range(4):
                e(f"v_cvt_f32_i32 v{b0+k}, v{b0+k}")
            g.wait_vm(iV[k1])
            for k in range(4):
                e(f"v_cvt_f32_i32 v{b1+k}, v{b1+k}")
            for j in range(4):
                e(f"v_cvt_pk_bf16_f32 v{pk+2*j+q}, v{b0+j}, v{b1+j}")
            if issue:
                ldV(k0)
                ldV(k1)
            elif q == 1:
                g.nop(1)
            if q == 1:
                for j in range(4):
                    acc = V_ACC + 4 * (hv * 4 + j)
                    e(f"v_mfma_f32_16x16x16_bf16 {vr(acc,4)}, {vr(V_PA,2)}, {vr(pk+2*j,2)}, {vr(acc,4)}")

    g.lab("L_loop")
    e(f"ds_read_b32 v{T0}, v{V_SLOT}")
    e("s_waitcnt lgkmcnt(0)")
    e(f"v_readfirstlane_b32 s{S_T1}, v{T0}")
    g.nop(1)
    e(f"s_cmp_eq_u32 s{S_T1}, -1")
    e("s_cbranch_scc1 L_loop")
    e(f"s_cmp_ge_u32 s{S_T1}, {NR}")
    e("s_cbranch_scc1 L_last")
    unit_offsets(S_T1)
    e(f"s_add_u32 s{S_T0}, s{S_R}, 2")
    e(f"s_sub_u32 s{S_T0}, s{S_T0}, s{S_NF}")
    e(f"s_or_b32 s{S_FL}, s{S_T0}, s{S_WAVE}")
    e("s_cbranch_scc1 L_nofetch")
    e(f"s_mov_b32 s{S_TK}, 1")
    if atlat:
        e(f"s_memrealtime {sr(S_TS+2,2)}")
        e("s_waitcnt lgkmcnt(0)")
    e(f"s_atomic_add s{S_TK}, {sr(S_DBG,2)}, s{S_CTR} glc")
    if atlat:
        e("s_waitcnt lgkmcnt(0)")
        e(f"s_memrealtime {sr(S_TS+4,2)}")
        e("s_waitcnt lgkmcnt(0)")
        e(f"s_sub_u32 s{S_T0}, s{S_TS+4}, s{S_TS+2}")
        e(f"s_add_u32 s{S_TS+8}, s{S_TS+8}, s{S_T0}")
        e(f"s_max_u32 s{S_TS+9}, s{S_TS+9}, s{S_T0}")
    g.lab("L_nofetch")
    body(True, "a")
    e(f"s_cmp_lg_u32 s{S_FL}, 0")
    e("s_cbranch_scc1 L_nopost")
    e("s_waitcnt lgkmcnt(0)")
    if J2:
        e(f"s_min_u32 s{S_T0}, s{S_TK}, {J2}")
        e(f"s_add_u32 s{S_T0}, s{S_T0}, s{S_TK}")
        e(f"s_add_u32 s{S_T0}, s{S_T0}, {NS*16}")
        e(f"s_add_u32 s{S_T1}, s{S_T0}, 1")
        e(f"s_cmp_lt_u32 s{S_TK}, {J2}")
        e(f"s_cselect_b32 s{S_T1}, s{S_T1}, -1")
        e(f"s_cselect_b32 s{S_T2}, 2, 1")
        e(f"v_mov_b32 v{T0}, s{S_T0}")
        e(f"v_mov_b32 v{T1}, s{S_T1}")
        e(f"ds_write2_b32 v{V_SLOT}, v{T0}, v{T1} offset0:1 offset1:2")
        e(f"s_add_u32 s{S_NF}, s{S_NF}, s{S_T2}")
    else:
        e(f"s_add_u32 s{S_T0}, s{S_TK}, {NS*16}")
        e(f"v_mov_b32 v{T0}, s{S_T0}")
        e(f"ds_write_b32 v{V_SLOT}, v{T0} offset:4")
        e(f"s_add_u32 s{S_NF}, s{S_NF}, 1")
    g.lab("L_nopost")
    e(f"s_add_u32 s{S_R}, s{S_R}, 1")
    e(f"v_add_u32 v{V_SLOT}, 4, v{V_SLOT}")
    e("s_branch L_loop")
    g.lab("L_last")
    body(False, "b")

    g.c("WG combine")
    if stamp:
        e(f"s_memrealtime {sr(S_TS+2,2)}")
    e(f"v_mov_b32 v{T1}, v{V_L}")
    VA, VB0, VB1, VY = T2, T3, T4, T5
    e(f"v_mul_u32_u24 v{VA}, 4608, v{V_WV}")
    e(f"v_lshrrev_b32 v{T0}, 5, v{V_LANE}")
    e(f"v_permlane16_swap_b32 v{V_L}, v{T1}")
    e(f"v_lshl_add_u32 v{VA}, v{T0}, 8, v{VA}")
    e(f"v_add_f32 v{V_L}, v{V_L}, v{T1}")
    e(f"v_mov_b32 v{T1}, v{V_L}")
    e(f"v_lshl_add_u32 v{VA}, v{V_N}, 4, v{VA}")
    e(f"v_lshrrev_b32 v{T0}, 1, v{V_WV}")
    e(f"v_permlane32_swap_b32 v{V_L}, v{T1}")
    e(f"v_lshl_add_u32 v{T0}, v{T0}, 2, v{V_G}")
    e(f"v_add_f32 v{V_L}, v{V_L}, v{T1}")
    e(f"v_mul_u32_u24 v{VB0}, 576, v{T0}")
    e(f"v_and_b32 v{T0}, 1, v{V_WV}")
    e(f"v_lshl_add_u32 v{VB0}, v{T0}, 7, v{VB0}")
    e(f"v_lshl_add_u32 v{VB0}, v{V_N}, 2, v{VB0}")
    e(f"v_add_u32 v{VB1}, 64, v{VB0}")
    e(f"v_lshlrev_b32 v{VY}, 3, v{V_H}")
    e(f"v_lshl_add_u32 v{T0}, v{V_WV}, 5, v{VY}")
    e("s_mov_b64 exec, 0xf")
    assert V_M % 2 == 0 and V_L == V_M + 1
    e(f"ds_write_b64 v{T0}, {vr(V_M,2)} offset:{L_ML}")
    e("s_mov_b64 exec, -1")
    for blk in range(8):
        for r in range(4):
            e(f"v_sub_f32 v{V_ACC+4*blk+r}, v{V_ACC+4*blk+r}, v{V_Z+r}")
    e("s_mov_b32 exec_lo, 0xffff")
    e("s_mov_b32 exec_hi, 0xffff")
    for blk in range(8):
        e(f"ds_write_b128 v{VA}, {vr(V_ACC+4*blk,4)} offset:{L_O+blk*576}")
    e("s_mov_b64 exec, -1")
    e("s_waitcnt lgkmcnt(0)")
    e("s_barrier")
    RB = V_BUF
    MB = V_BUF + 16
    for w in range(4):
        e(f"ds_read_b64 {vr(MB+2*w,2)}, v{VY} offset:{L_ML+w*32}")
    for p in range(2):
        for w in range(4):
            o0 = L_O // 256 + w * 18
            e(f"ds_read2st64_b32 {vr(RB+8*p+2*w,2)}, v{VB1 if p else VB0} offset0:{o0} offset1:{o0+1}")
    S_REC, S_RECE, S_OWN, S_OWNE = S_BKV, S_BVS, S_OFF, S_OFFS
    e(f"s_lshl_b32 s{S_T0}, s{S_KVH}, 2")
    e(f"s_add_u32 s{S_T0}, s{S_T0}, s{S_WAVE}")
    e(f"s_lshl_b32 s{S_REC}, s{S_T0}, 14")
    e(f"s_and_b32 s{S_T1}, s2, 31")
    e(f"s_lshl_b32 s{S_OWN}, s{S_T1}, 9")
    e(f"s_add_u32 s{S_OWN}, s{S_OWN}, s{S_REC}")
    e(f"s_lshl_b32 s{S_RECE}, s{S_T0}, 9")
    e(f"s_add_u32 s{S_RECE}, s{S_RECE}, {WS_E}")
    e(f"s_lshl_b32 s{S_OWNE}, s{S_T1}, 4")
    e(f"s_add_u32 s{S_OWNE}, s{S_OWNE}, s{S_RECE}")
    e(f"v_lshlrev_b32 v{VA}, 2, v{V_LANE}")
    e("s_waitcnt lgkmcnt(8)")
    VMX, VLs, VR = T0, T1, T6
    e(f"v_max3_f32 v{VMX}, v{MB}, v{MB+2}, v{MB+4}")
    e(f"v_max_f32 v{VMX}, v{VMX}, v{MB+6}")
    for w in range(4):
        e(f"v_sub_f32 v{MB+2*w}, v{MB+2*w}, v{VMX}")
    for w in range(4):
        e(f"v_exp_f32 v{MB+2*w}, v{MB+2*w}")
    g.nop(1)
    e(f"v_mul_f32 v{VLs}, v{MB}, v{MB+1}")
    for w in range(1, 4):
        e(f"v_fmac_f32 v{VLs}, v{MB+2*w}, v{MB+2*w+1}")
    e("s_waitcnt lgkmcnt(0)")
    e(f"v_rcp_f32 v{VR}, v{VLs}")
    e(f"v_log_f32 v{VLs}, v{VLs}")
    for x in range(8):
        e(f"v_add_f32 v{RB+2*x}, v{RB+2*x}, v{RB+2*x+1}")
    X = V_BUF + 32
    for p in range(2):
        e(f"v_mul_f32 v{X+4*p}, v{MB}, v{RB+8*p}")
        for w in range(1, 4):
            e(f"v_fmac_f32 v{X+4*p}, v{MB+2*w}, v{RB+8*p+2*w}")
    e(f"v_mul_f32 v{X}, v{X}, v{VR}")
    e(f"v_mul_f32 v{X+4}, v{X+4}, v{VR}")
    e(f"v_add_f32 v{X+8}, v{VMX}, v{VLs}")
    g.nop(1)
    for b in range(3):
        for k in range(1, 4):
            e(f"v_mov_b32_dpp v{X+4*b+k}, v{X+4*b} quad_perm:[{k},{k},{k},{k}] row_mask:0xf bank_mask:0xf")
    e("s_mov_b32 exec_lo, 0x11111111")
    e("s_mov_b32 exec_hi, 0x11111111")
    g.issued = 0
    g.known_done = 0
    g.vm(f"buffer_store_dwordx4 {vr(X,4)}, v{VA}, {sr(R_WS,4)}, s{S_OWN} offen sc1")
    g.vm(f"buffer_store_dwordx4 {vr(X+4,4)}, v{VA}, {sr(R_WS,4)}, s{S_OWN} offen offset:256 sc1")
    e("s_mov_b64 exec, 1")
    g.vm(f"buffer_store_dwordx4 {vr(X+8,4)}, v{VA}, {sr(R_WS,4)}, s{S_OWNE} offen sc1")
    e(f"v_mov_b32 v{T1}, 1")
    e(f"s_lshl_b32 s{S_T2}, s{S_KVH}, 5")
    e(f"s_add_u32 s{S_T2}, s{S_T2}, 8")
    e("s_waitcnt vmcnt(0)")
    g.known_done = g.issued
    e("s_barrier")
    e(f"s_cmp_lg_u32 s{S_WAVE}, 0")
    e("s_cbranch_scc1 L_skip_atomic")
    g.vm(f"buffer_atomic_add v{T1}, v{VA}, {sr(R_DBG,4)}, s{S_T2} offen sc0")
    e("s_waitcnt vmcnt(0)")
    g.known_done = g.issued
    e(f"ds_write_b32 v{VA}, v{T1} offset:{L_FLAG}")
    e("s_waitcnt lgkmcnt(0)")
    g.lab("L_skip_atomic")
    e("s_barrier")
    e(f"ds_read_b32 v{T1}, v{VA} offset:{L_FLAG}")
    e("s_waitcnt lgkmcnt(0)")
    e(f"v_readfirstlane_b32 s{S_T0}, v{T1}")
    e("s_mov_b64 exec, -1")
    g.nop(2)
    if stamp:
        e(f"s_memrealtime {sr(S_TS+4,2)}")
        e("s_waitcnt lgkmcnt(0)")
        e(f"s_lshl_b32 s{S_T1}, s2, 2")
        e(f"s_add_u32 s{S_T1}, s{S_T1}, s{S_WAVE}")
        e(f"s_lshl_b32 s{S_T1}, s{S_T1}, 5")
        e(f"s_add_u32 s{S_T1}, s{S_T1}, 0x100000")
        e(f"s_getreg_b32 s{S_TS+6}, hwreg(HW_REG_XCC_ID)")
        e(f"s_getreg_b32 s{S_TS+7}, hwreg(HW_REG_HW_ID)")
        e(f"s_and_b32 s{S_TS+6}, s{S_TS+6}, 15")
        e(f"s_lshl_b32 s{S_TS+7}, s{S_TS+7}, 4")
        e(f"s_or_b32 s{S_TS+6}, s{S_TS+6}, s{S_TS+7}")
        for k in range(4):
            e(f"v_mov_b32 v{X+k}, s{S_TS+2*k}")
        e(f"v_mov_b32 v{X+4}, s{S_R}")
        e(f"v_mov_b32 v{X+5}, s{S_TS+8}")
        e(f"v_mov_b32 v{X+6}, s{S_TS}")
        e(f"v_mov_b32 v{X+7}, s{S_TS+9}")
        e("s_mov_b64 exec, 1")
        g.vm(f"buffer_store_dwordx4 {vr(X,4)}, v{VA}, {sr(R_WS,4)}, s{S_T1} offen")
        g.vm(f"buffer_store_dwordx4 {vr(X+4,4)}, v{VA}, {sr(R_WS,4)}, s{S_T1} offen offset:16")
        e("s_mov_b64 exec, -1")
        e("s_waitcnt vmcnt(0)")
        g.known_done = g.issued
    e(f"s_cmp_lg_u32 s{S_T0}, 31")
    e("s_cbranch_scc1 L_end")

    g.c("final combine")
    OB = V_BUF
    EB = V_BUF + 64
    e(f"v_lshlrev_b32 v{VA}, 9, v{V_G}")
    e(f"v_lshl_add_u32 v{VA}, v{V_N}, 4, v{VA}")
    e(f"v_lshlrev_b32 v{VB0}, 4, v{V_G}")
    ie = []
    for k in range(8):
        ie.append(g.vm(f"buffer_load_dwordx4 {vr(EB+4*k,4)}, v{VB0}, {sr(R_WS,4)}, s{S_RECE} offen offset:{k*64} sc1"))
    io = []
    for k in range(8):
        if k and k % 2 == 0:
            e(f"s_add_u32 s{S_REC}, s{S_REC}, 4096")
        for p in range(2):
            io.append(g.vm(f"buffer_load_dwordx4 {vr(OB+8*k+4*p,4)}, v{VA}, {sr(R_WS,4)}, s{S_REC} offen offset:{(k&1)*2048+p*256} sc1"))
    VOUT = T7
    e(f"v_lshrrev_b32 v{T0}, 2, v{V_N}")
    e(f"v_lshl_add_u32 v{T0}, v{V_H}, 2, v{T0}")
    e(f"v_lshlrev_b32 v{VOUT}, 1, v{T0}")
    e(f"v_lshl_add_u32 v{VOUT}, v{V_G}, 8, v{VOUT}")
    e(f"s_lshl_b32 s{S_T0}, s{S_WAVE}, 6")
    e(f"s_add_u32 s{S_T0}, s{S_T0}, s{S_QO}")
    g.wait_vm(ie[-1])
    MX = V_ACC
    M2 = V_ACC + 4
    for h in range(4):
        e(f"v_max3_f32 v{MX+h}, v{EB+h}, v{EB+4+h}, v{EB+8+h}")
        e(f"v_max3_f32 v{MX+h}, v{MX+h}, v{EB+12+h}, v{EB+16+h}")
        e(f"v_max3_f32 v{MX+h}, v{MX+h}, v{EB+20+h}, v{EB+24+h}")
        e(f"v_max_f32 v{MX+h}, v{MX+h}, v{EB+28+h}")
    for h in range(4):
        e(f"v_mov_b32 v{M2+h}, v{MX+h}")
    g.nop(1)
    for h in range(4):
        e(f"v_permlane16_swap_b32 v{MX+h}, v{M2+h}")
    for h in range(4):
        e(f"v_max_f32 v{MX+h}, v{MX+h}, v{M2+h}")
    for h in range(4):
        e(f"v_mov_b32 v{M2+h}, v{MX+h}")
    g.nop(1)
    for h in range(4):
        e(f"v_permlane32_swap_b32 v{MX+h}, v{M2+h}")
    for h in range(4):
        e(f"v_max_f32 v{MX+h}, v{MX+h}, v{M2+h}")
    for k in range(8):
        for h in range(4):
            e(f"v_sub_f32 v{EB+4*k+h}, v{EB+4*k+h}, v{MX+h}")
    for k in range(32):
        e(f"v_exp_f32 v{EB+k}, v{EB+k}")
    DN = V_ACC + 8
    NU = V_ACC + 12
    g.nop(1)
    for h in range(4):
        e(f"v_add_f32 v{DN+h}, v{EB+h}, v{EB+4+h}")
    for k in range(2, 8):
        for h in range(4):
            e(f"v_add_f32 v{DN+h}, v{DN+h}, v{EB+4*k+h}")
    for k in range(8):
        for p in range(2):
            g.wait_vm(io[2 * k + p])
            for h in range(4):
                if k == 0:
                    e(f"v_mul_f32 v{NU+4*p+h}, v{EB+h}, v{OB+4*p+h}")
                else:
                    e(f"v_fmac_f32 v{NU+4*p+h}, v{EB+4*k+h}, v{OB+8*k+4*p+h}")
    g.nop(2)
    bases = (DN, NU, NU + 4)
    for base in bases:
        e(f"v_permlane16_swap_b32 v{base}, v{base+1}")
        e(f"v_permlane16_swap_b32 v{base+2}, v{base+3}")
    for base in bases:
        e(f"v_add_f32 v{base}, v{base}, v{base+1}")
        e(f"v_add_f32 v{base+2}, v{base+2}, v{base+3}")
    g.nop(2)
    for base in bases:
        e(f"v_permlane32_swap_b32 v{base}, v{base+2}")
    for base in bases:
        e(f"v_add_f32 v{base}, v{base}, v{base+2}")
    e(f"v_rcp_f32 v{DN}, v{DN}")
    g.nop(1)
    e(f"v_mul_f32 v{NU}, v{NU}, v{DN}")
    e(f"v_mul_f32 v{NU+4}, v{NU+4}, v{DN}")
    e(f"v_cvt_pk_bf16_f32 v{NU}, v{NU}, v{NU+4}")
    g.vm(f"buffer_store_short v{NU}, v{VOUT}, {sr(R_OUT,4)}, s{S_T0} offen")
    g.vm(f"buffer_store_short_d16_hi v{NU}, v{VOUT}, {sr(R_OUT,4)}, s{S_T0} offen offset:32")
    if dbgtime:
        e(f"s_memrealtime {sr(S_TS+2,2)}")
        e("s_waitcnt lgkmcnt(0)")
        e(f"s_sub_u32 s{S_T1}, s{S_TS+2}, s{S_TS}")
        e(f"v_mov_b32 v{T0}, s{S_T1}")
        e(f"v_mov_b32 v{T1}, 0")
        e(f"s_lshl_b32 s{S_T2}, s{S_KVH}, 3")
        e(f"s_add_u32 s{S_T2}, s{S_T2}, 4")
        e("s_mov_b64 exec, 1")
        e(f"buffer_store_dword v{T0}, v{T1}, {sr(R_DBG,4)}, s{S_T2} offen")
    g.lab("L_end")
    e("s_endpgm")

    body_t = "\n".join(g.L)
    nv = (NV + 7) // 8 * 8
    acc_off = min(nv, 256)
    text = HEADER + f"; @launch grid=(256,1,1) block=(256,1,1) lds={LDS}\n"
    text += f""".amdgcn_target "amdgcn-amd-amdhsa--gfx950"
.text
.globl {NAME}_kernel
.p2align 8
.type {NAME}_kernel,@function
{NAME}_kernel:
{body_t}
.section .rodata,"a"
.p2align 6
.amdhsa_kernel {NAME}_kernel
  .amdhsa_next_free_vgpr {nv}
  .amdhsa_next_free_sgpr {NSGPR}
  .amdhsa_accum_offset {acc_off}
  .amdhsa_group_segment_fixed_size 0
  .amdhsa_kernarg_size 80
  .amdhsa_user_sgpr_count 2
  .amdhsa_user_sgpr_kernarg_segment_ptr 1
  .amdhsa_system_sgpr_workgroup_id_x 1
  .amdhsa_float_denorm_mode_32 3
.end_amdhsa_kernel
"""
    return text


if __name__ == "__main__":
    ap = argparse.ArgumentParser()
    ap.add_argument("-o", default=f"cdna_kernels/{NAME}.s")
    ap.add_argument("--pol", default="nt")
    ap.add_argument("--NS", type=int, default=10)
    ap.add_argument("--J2", type=int, default=0)
    ap.add_argument("--PHI", type=int, default=20)
    ap.add_argument("--stamp", action="store_true")
    ap.add_argument("--nv", type=int, default=0)
    ap.add_argument("--lds", type=int, default=0)
    ap.add_argument("--iod", type=int, default=-1)
    ap.add_argument("--dbgtime", action="store_true")
    ap.add_argument("--NO", type=int, default=0)
    ap.add_argument("--atlat", action="store_true")
    a = ap.parse_args()
    open(a.o, "w").write(gen(pol=a.pol, NS=a.NS, J2=a.J2, PHI=a.PHI, stamp=a.stamp, nv_force=a.nv, lds_force=a.lds, iod=a.iod, dbgtime=a.dbgtime, NO=a.NO, atlat=a.atlat))
    print("wrote", a.o)
```

```python
import sys, math, argparse
from gen import G, vr, sr, NAME, HEADER, f32bits


def gen(pol="nt", NO=15, PHI=19, stamp=False, lds_force=90000, dbgtime=False, PHIV=0):
    g = G()
    e = g.e
    pol = (" " + pol) if pol else ""
    C = (128.0 ** -0.5) * math.log2(math.e)
    NE = 32 - NO
    assert NO % 2 == 1 and NO >= 3

    S_Q, S_QK, S_QV, S_KS, S_KZ, S_VS, S_VZ, S_OUT, S_DBG, S_WS = 4, 6, 8, 10, 12, 14, 16, 18, 20, 22
    R_K, R_V, R_VS, R_VZ, R_Q, R_KS, R_KZ, R_OUT, R_WS, R_DBG = 24, 28, 32, 36, 40, 44, 48, 52, 56, 60
    S_STRM, S_WGI, S_KVH, S_WAVE, S_C, S_MASK = 64, 65, 66, 67, 68, 69
    S_BKV, S_BVS, S_PHI, S_OFF, S_OFFS, S_R, S_N, S_X2 = 70, 71, 72, 73, 74, 75, 76, 77
    S_T0, S_T1 = 78, 79
    S_ODD = 80
    S_QO = 82
    S_T2 = 83
    S_TS = 84
    NSGPR = 96

    V_LANE, V_KO, V_VO, V_SO, V_WV, V_G, V_N, V_H = 1, 2, 3, 4, 5, 6, 7, 8
    V_LS = 9
    V_M, V_L = 10, 11
    V_T = 12
    V_QB = 20
    V_NC = 28
    V_D = 32
    V_S = 40
    V_PA = 44
    V_VZ2 = 46
    V_VSZ = 48
    V_PK = 56
    V_ACC = 72
    V_Z = 104
    V_BUF = 108
    NV = V_BUF + 96

    L_QS = 0
    L_KZ = 2048
    L_ML = 2304
    L_FLAG = 2432
    L_O = 2560
    assert L_O % 256 == 0
    L_S = L_O + 4 * 4608
    LDS = max(L_S + 4 * NE * 1024, lds_force)
    assert LDS <= 160 * 1024

    WS_E = 32 * 16384

    T0, T1, T2, T3, T4, T5, T6, T7 = range(V_T, V_T + 8)

    e("s_cmp_ge_u32 s2, 256")
    e("s_cbranch_scc1 L_end")
    e("s_load_dwordx16 s[4:19], s[0:1], 0")
    e("s_load_dwordx4 s[20:23], s[0:1], 64")
    if stamp or dbgtime:
        e(f"s_memrealtime {sr(S_TS,2)}")
    e(f"v_and_b32 v{V_LANE}, 63, v0")
    e(f"v_lshrrev_b32 v{V_WV}, 6, v0")
    e(f"v_lshrrev_b32 v{V_G}, 4, v{V_LANE}")
    e(f"v_and_b32 v{V_N}, 15, v{V_LANE}")
    e(f"v_and_b32 v{V_H}, 3, v{V_LANE}")
    e(f"v_readfirstlane_b32 s{S_WAVE}, v{V_WV}")
    e(f"v_lshlrev_b32 v{V_KO}, 13, v{V_WV}")
    e(f"v_lshrrev_b32 v{T0}, 2, v{V_N}")
    e(f"v_lshl_add_u32 v{V_KO}, v{T0}, 11, v{V_KO}")
    e(f"v_bfe_u32 v{T0}, v{V_N}, 1, 1")
    e(f"v_lshl_add_u32 v{V_KO}, v{T0}, 9, v{V_KO}")
    e(f"v_and_b32 v{T7}, 1, v{V_N}")
    e(f"v_lshl_add_u32 v{V_KO}, v{T7}, 6, v{V_KO}")
    e(f"v_lshl_add_u32 v{V_KO}, v{V_G}, 4, v{V_KO}")
    e(f"v_lshlrev_b32 v{T0}, 2, v0")
    e(f"v_lshlrev_b32 v{T1}, 2, v{V_LANE}")
    e(f"s_lshr_b32 s{S_STRM}, s2, 4")
    e(f"s_and_b32 s{S_WGI}, s2, 15")
    e(f"s_lshr_b32 s{S_KVH}, s2, 5")
    e(f"s_lshl_b32 s{S_BKV}, s{S_STRM}, 23")
    e(f"s_lshl_b32 s{S_BVS}, s{S_STRM}, 15")
    e(f"s_mul_i32 s{S_PHI}, s{S_STRM}, {PHI}")
    e(f"s_lshr_b32 s{S_X2}, s{S_WGI}, 1")
    e(f"s_add_u32 s{S_X2}, s{S_X2}, {NO*8}")
    e(f"s_add_u32 s{S_X2}, s{S_X2}, s{S_PHI}")
    e(f"s_add_u32 s{S_PHI}, s{S_PHI}, s{S_WGI}")
    e(f"s_and_b32 s{S_T0}, s2, 1")
    e(f"s_cselect_b32 s{S_N}, {NO}, {NE}")
    e(f"s_lshl_b32 s{S_QO}, s{S_KVH}, 10")
    e(f"s_lshl_b32 s{S_T2}, s{S_STRM}, 8")

    def offsets(withvs):
        e(f"s_lshl_b32 s{S_T0}, s{S_R}, 4")
        e(f"s_add_u32 s{S_T0}, s{S_T0}, s{S_PHI}")
        e(f"s_lshl_b32 s{S_T1}, s{S_R}, 3")
        e(f"s_add_u32 s{S_T1}, s{S_T1}, s{S_X2}")
        e(f"s_cmp_lt_u32 s{S_R}, {NO}")
        e(f"s_cselect_b32 s{S_T0}, s{S_T0}, s{S_T1}")
        e(f"s_and_b32 s{S_T0}, s{S_T0}, 255")
        e(f"s_lshl_b32 s{S_OFF}, s{S_T0}, 15")
        e(f"s_add_u32 s{S_OFF}, s{S_OFF}, s{S_BKV}")
        if withvs:
            e(f"s_lshl_b32 s{S_OFFS}, s{S_T0}, 7")
            e(f"s_add_u32 s{S_OFFS}, s{S_OFFS}, s{S_BVS}")
        e(f"s_add_u32 s{S_R}, s{S_R}, 1")

    e(f"s_mov_b32 s{S_R}, 0")
    offsets(False)
    for r, n in ((R_K, 1 << 27), (R_Q, 8192), (R_KS, 4096), (R_KZ, 4096)):
        e(f"s_mov_b32 s{r+2}, 0x{n:x}")
        e(f"s_mov_b32 s{r+3}, 0x00020000")
    e("s_waitcnt lgkmcnt(0)")
    for r, p in ((R_K, S_QK), (R_Q, S_Q), (R_KS, S_KS), (R_KZ, S_KZ)):
        e(f"s_mov_b32 s{r}, s{p}")
        e(f"s_mov_b32 s{r+1}, s{p+1}")

    def ldK(buf, k):
        a, c = k >> 2, k & 3
        return g.vm(f"buffer_load_dwordx4 {vr(V_BUF+32*buf+4*k,4)}, v{V_KO}, {sr(R_K,4)}, s{S_OFF} offen offset:{a*1024+c*128}{pol}")

    def ldV(buf, k):
        hv, i = k >> 2, k & 3
        return g.vm(f"buffer_load_dwordx4 {vr(V_BUF+32*buf+4*k,4)}, v{V_VO}, {sr(R_V,4)}, s{S_OFF} offen offset:{i*512+hv*256}{pol}")

    def ldVSZ(buf):
        g.vm(f"buffer_load_dwordx2 {vr(V_VSZ+4*buf,2)}, v{V_SO}, {sr(R_VS,4)}, s{S_OFFS} offen")
        return g.vm(f"buffer_load_dwordx2 {vr(V_VSZ+4*buf+2,2)}, v{V_SO}, {sr(R_VZ,4)}, s{S_OFFS} offen")

    g.vm(f"buffer_load_dword v{T2}, v{T0}, {sr(R_Q,4)}, s{S_QO} offen")
    g.vm(f"buffer_load_dword v{T3}, v{T1}, {sr(R_KS,4)}, s{S_T2} offen")
    i_kz = g.vm(f"buffer_load_dword v{T4}, v{T1}, {sr(R_KZ,4)}, s{S_T2} offen")
    for k in range(8):
        ldK(0, k)
    offsets(False)
    for k in range(8):
        ldK(1, k)

    for r, n in ((R_V, 1 << 27), (R_VS, 1 << 19), (R_VZ, 1 << 19), (R_OUT, 8192), (R_WS, 1 << 29), (R_DBG, 256)):
        e(f"s_mov_b32 s{r+2}, 0x{n:x}")
        e(f"s_mov_b32 s{r+3}, 0x00020000")
    for r, p in ((R_V, S_QV), (R_VS, S_VS), (R_VZ, S_VZ), (R_OUT, S_OUT), (R_WS, S_WS), (R_DBG, S_DBG)):
        e(f"s_mov_b32 s{r}, s{p}")
        e(f"s_mov_b32 s{r+1}, s{p+1}")
    e(f"s_mov_b32 s{S_C}, 0x{f32bits(C):08x}")
    e(f"s_mov_b32 s{S_MASK}, 0xffff0000")
    e(f"v_lshlrev_b32 v{V_VO}, 13, v{V_WV}")
    e(f"v_lshl_add_u32 v{V_VO}, v{V_G}, 11, v{V_VO}")
    e(f"v_lshl_add_u32 v{V_VO}, v{V_N}, 4, v{V_VO}")
    e(f"v_lshlrev_b32 v{V_SO}, 5, v{V_WV}")
    e(f"v_lshl_add_u32 v{V_SO}, v{V_G}, 3, v{V_SO}")
    e(f"v_and_b32 v{T5}, 8, v{V_LANE}")
    e(f"v_cmp_ne_u32 {sr(S_ODD,2)}, 0, v{T5}")
    e(f"v_and_b32 v{T6}, 4, v{V_LANE}")
    e(f"v_mov_b32 v{V_M}, 0xff7fffff")
    e(f"v_mov_b32 v{V_L}, 0")
    for x in range(36):
        e(f"v_mov_b32 v{V_ACC+x}, 0")
    e(f"v_mul_u32_u24 v{V_LS}, {NE*1024}, v{V_WV}")
    e(f"v_lshl_add_u32 v{V_LS}, v{V_LANE}, 4, v{V_LS}")
    e(f"v_lshlrev_b32 v{T5}, 7, v{T5}")
    e(f"v_lshl_add_u32 v{T5}, v{V_H}, 8, v{T5}")
    e(f"v_lshl_add_u32 v{T5}, v{T6}, 3, v{T5}")
    e(f"v_lshl_add_u32 v{T5}, v{V_G}, 3, v{T5}")
    e(f"v_lshlrev_b32 v{T7}, 5, v{T7}")
    e(f"v_lshl_add_u32 v{T7}, v{V_G}, 3, v{T7}")
    e(f"s_mov_b32 s{S_T0}, 0x07060302")
    g.wait_vm(i_kz)
    A0, A1, B0, B1 = V_D, V_D + 1, V_D + 2, V_D + 3
    e(f"v_lshlrev_b32 v{A0}, 16, v{T2}")
    e(f"v_and_b32 v{A1}, s{S_MASK}, v{T2}")
    e(f"v_lshlrev_b32 v{B0}, 16, v{T3}")
    e(f"v_and_b32 v{B1}, s{S_MASK}, v{T3}")
    e(f"v_mul_f32 v{A0}, v{A0}, v{B0}")
    e(f"v_mul_f32 v{A1}, v{A1}, v{B1}")
    e(f"v_and_b32 v{B0}, s{S_MASK}, v{A0}")
    e(f"v_and_b32 v{B1}, s{S_MASK}, v{A1}")
    e(f"v_sub_f32 v{B0}, v{A0}, v{B0}")
    e(f"v_sub_f32 v{B1}, v{A1}, v{B1}")
    e(f"v_perm_b32 v{A0}, v{A1}, v{A0}, s{S_T0}")
    e(f"v_perm_b32 v{B0}, v{B1}, v{B0}, s{S_T0}")
    e(f"ds_write_b32 v{T0}, v{A0} offset:{L_QS}")
    e(f"ds_write_b32 v{T0}, v{B0} offset:{L_QS+1024}")
    e(f"ds_write_b32 v{T1}, v{T4} offset:{L_KZ}")
    e("s_waitcnt lgkmcnt(0)")
    e("s_barrier")
    for c in range(4):
        e(f"ds_read_b64 {vr(V_QB+2*c,2)}, v{T5} offset:{L_QS+64*c}")
    for c in range(4):
        e(f"ds_read_b64 {vr(V_PK+2*c,2)}, v{T7} offset:{L_KZ+64*c}")
    e("s_waitcnt lgkmcnt(0)")
    for ee in range(2):
        e(f"v_mfma_f32_16x16x32_bf16 {vr(V_NC,4)}, {vr(V_PK+4*ee,4)}, {vr(V_QB+4*ee,4)}, {'0' if ee == 0 else vr(V_NC,4)}")
    g.nop(10)
    for r in range(4):
        e(f"v_xor_b32 v{V_NC+r}, 0x80000000, v{V_NC+r}")

    NOPS = {"K": 8, "V": 10, None: 0}

    def issue_pair(buf, nxt, k0):
        if nxt == "K":
            ldK(buf, k0)
            ldK(buf, k0 + 1)
        elif nxt == "V":
            ldV(buf, k0)
            ldV(buf, k0 + 1)

    def bodyK(buf, other, nxt):
        g.issued = 8 + NOPS[other]
        g.known_done = 0
        offsets(nxt == "V")
        if nxt == "V":
            ldVSZ(buf)
        B = V_BUF + 32 * buf
        for p in range(4):
            a, ee = p >> 1, p & 1
            k0, k1 = 2 * p, 2 * p + 1
            b0, b1 = B + 4 * k0, B + 4 * k1
            pk = V_PK + 4 * (p & 1)
            g.wait_vm(k0)
            for k in range(4):
                e(f"v_cvt_f32_i32 v{b0+k}, v{b0+k}")
            g.wait_vm(k1)
            for k in range(4):
                e(f"v_cvt_f32_i32 v{b1+k}, v{b1+k}")
            e(f"v_cvt_pk_bf16_f32 v{pk}, v{b0}, v{b0+1}")
            e(f"v_cvt_pk_bf16_f32 v{pk+1}, v{b0+2}, v{b0+3}")
            e(f"v_cvt_pk_bf16_f32 v{pk+2}, v{b1}, v{b1+1}")
            e(f"v_cvt_pk_bf16_f32 v{pk+3}, v{b1+2}, v{b1+3}")
            issue_pair(buf, nxt, k0)
            e(f"v_mfma_f32_16x16x32_bf16 {vr(V_D+4*a,4)}, {vr(pk,4)}, {vr(V_QB+4*ee,4)}, {vr(V_NC,4) if ee == 0 else vr(V_D+4*a,4)}")
        e(f"v_add_f32_dpp v{V_S}, v{V_D+1}, v{V_D} row_ror:4 row_mask:0xf bank_mask:0xf")
        e(f"v_add_f32_dpp v{V_S+1}, v{V_D+3}, v{V_D+2} row_ror:4 row_mask:0xf bank_mask:0xf")
        g.nop(1)
        e(f"v_add_f32_dpp v{V_S}, v{V_S}, v{V_S} row_ror:8 row_mask:0xf bank_mask:0xf")
        e(f"v_add_f32_dpp v{V_S+1}, v{V_S+1}, v{V_S+1} row_ror:8 row_mask:0xf bank_mask:0xf")
        e(f"v_max3_f32 v{V_M}, v{V_M}, v{V_S}, v{V_S+1}")
        g.nop(3)
        e(f"v_add_f32_dpp v{V_S+2}, v{V_D+5}, v{V_D+4} row_ror:4 row_mask:0xf bank_mask:0xf")
        e(f"v_add_f32_dpp v{V_S+3}, v{V_D+7}, v{V_D+6} row_ror:4 row_mask:0xf bank_mask:0xf")
        g.nop(1)
        e(f"v_add_f32_dpp v{V_S+2}, v{V_S+2}, v{V_S+2} row_ror:8 row_mask:0xf bank_mask:0xf")
        e(f"v_add_f32_dpp v{V_S+3}, v{V_S+3}, v{V_S+3} row_ror:8 row_mask:0xf bank_mask:0xf")
        e(f"ds_write_b128 v{V_LS}, {vr(V_S,4)} offset:{L_S}")
        e(f"v_max3_f32 v{V_M}, v{V_M}, v{V_S+2}, v{V_S+3}")
        e(f"v_add_u32 v{V_LS}, 1024, v{V_LS}")

    def bodyV(buf, other, nxt):
        g.issued = 10 + NOPS[other]
        g.known_done = 0
        B = V_BUF + 32 * buf
        VS, VZ = V_VSZ + 4 * buf, V_VSZ + 4 * buf + 2
        e(f"ds_read_b128 {vr(V_S,4)}, v{V_LS} offset:{L_S}")
        if nxt:
            offsets(True)
        e(f"v_add_u32 v{V_LS}, 1024, v{V_LS}")
        X0, X1, X2, X3 = T4, T5, T6, T7
        g.wait_vm(1)
        e(f"v_lshlrev_b32 v{X0}, 16, v{VS}")
        e(f"v_and_b32 v{X1}, s{S_MASK}, v{VS}")
        e(f"v_lshlrev_b32 v{X2}, 16, v{VS+1}")
        e(f"v_and_b32 v{X3}, s{S_MASK}, v{VS+1}")
        e(f"v_mov_b32 v{V_VZ2}, v{VZ}")
        e(f"v_mov_b32 v{V_VZ2+1}, v{VZ+1}")
        if nxt:
            ldVSZ(buf)
        e("s_waitcnt lgkmcnt(0)")
        for i in range(4):
            e(f"v_fma_f32 v{V_S+i}, v{V_S+i}, s{S_C}, -v{V_M}")
        for i in range(4):
            e(f"v_exp_f32 v{V_S+i}, v{V_S+i}")
        e(f"v_add_f32 v{T0}, v{V_S}, v{V_S+1}")
        e(f"v_mul_f32 v{X0}, v{X0}, v{V_S}")
        e(f"v_add_f32 v{T1}, v{V_S+2}, v{V_S+3}")
        e(f"v_mul_f32 v{X1}, v{X1}, v{V_S+1}")
        e(f"v_mul_f32 v{X2}, v{X2}, v{V_S+2}")
        e(f"v_mul_f32 v{X3}, v{X3}, v{V_S+3}")
        e(f"v_add_f32 v{V_L}, v{V_L}, v{T0}")
        for i, X in enumerate((X0, X1, X2, X3)):
            e(f"v_and_b32 v{V_S+i}, s{S_MASK}, v{X}")
        e(f"v_add_f32 v{V_L}, v{V_L}, v{T1}")
        for i, X in enumerate((X0, X1, X2, X3)):
            e(f"v_sub_f32 v{X}, v{X}, v{V_S+i}")
        for i, X in enumerate((X0, X1, X2, X3)):
            e(f"v_cndmask_b32 v{X}, v{V_S+i}, v{X}, {sr(S_ODD,2)}")
        e(f"v_cvt_pk_bf16_f32 v{V_PA}, v{X0}, v{X1}")
        e(f"v_cvt_pk_bf16_f32 v{V_PA+1}, v{X2}, v{X3}")
        g.nop(2)
        e(f"v_mfma_f32_16x16x16_bf16 {vr(V_Z,4)}, {vr(V_PA,2)}, {vr(V_VZ2,2)}, {vr(V_Z,4)}")
        for p in range(4):
            hv, q = p >> 1, p & 1
            k0, k1 = 2 * p, 2 * p + 1
            b0, b1 = B + 4 * k0, B + 4 * k1
            pk = V_PK + 8 * hv
            g.wait_vm(2 + k0)
            for k in range(4):
                e(f"v_cvt_f32_i32 v{b0+k}, v{b0+k}")
            g.wait_vm(2 + k1)
            for k in range(4):
                e(f"v_cvt_f32_i32 v{b1+k}, v{b1+k}")
            for j in range(4):
                e(f"v_cvt_pk_bf16_f32 v{pk+2*j+q}, v{b0+j}, v{b1+j}")
            issue_pair(buf, nxt, k0)
            if q == 1:
                if not nxt:
                    g.nop(1)
                for j in range(4):
                    acc = V_ACC + 4 * (hv * 4 + j)
                    e(f"v_mfma_f32_16x16x16_bf16 {vr(acc,4)}, {vr(V_PA,2)}, {vr(pk+2*j,2)}, {vr(acc,4)}")

    g.lab("L_k")
    bodyK(0, "K", "K")
    e(f"s_cmp_ge_u32 s{S_R}, s{S_N}")
    e("s_cbranch_scc1 L_kt")
    bodyK(1, "K", "K")
    e("s_branch L_k")
    g.lab("L_kt")
    e(f"s_mov_b32 s{S_R}, 0")
    bodyK(1, "K", "V")
    bodyK(0, "V", "V")
    if stamp:
        e(f"s_memrealtime {sr(S_TS+8,2)}")
    g.c("max exchange")
    e(f"v_mov_b32 v{T1}, v{V_M}")
    e(f"v_lshlrev_b32 v{T2}, 2, v{V_WV}")
    e(f"v_lshl_add_u32 v{T2}, v{V_H}, 4, v{T2}")
    e(f"v_permlane16_swap_b32 v{V_M}, v{T1}")
    e(f"v_max_f32 v{V_M}, v{V_M}, v{T1}")
    e(f"v_mov_b32 v{T1}, v{V_M}")
    e(f"v_lshlrev_b32 v{T3}, 4, v{V_H}")
    e(f"v_mul_u32_u24 v{V_LS}, {NE*1024}, v{V_WV}")
    e(f"v_permlane32_swap_b32 v{V_M}, v{T1}")
    e(f"v_max_f32 v{V_M}, v{V_M}, v{T1}")
    e(f"v_lshl_add_u32 v{V_LS}, v{V_LANE}, 4, v{V_LS}")
    e("s_mov_b64 exec, 0xf")
    e(f"ds_write_b32 v{T2}, v{V_M} offset:{L_ML}")
    e("s_mov_b64 exec, -1")
    e("s_waitcnt lgkmcnt(0)")
    e("s_barrier")
    e(f"ds_read_b128 {vr(V_D,4)}, v{T3} offset:{L_ML}")
    e("s_waitcnt lgkmcnt(0)")
    e(f"v_max3_f32 v{V_M}, v{V_M}, v{V_D}, v{V_D+1}")
    e(f"v_max3_f32 v{V_M}, v{V_M}, v{V_D+2}, v{V_D+3}")
    e(f"v_mul_f32 v{V_M}, s{S_C}, v{V_M}")

    g.lab("L_v")
    bodyV(1, "V", "V")
    e(f"s_cmp_ge_u32 s{S_R}, s{S_N}")
    e("s_cbranch_scc1 L_vt")
    bodyV(0, "V", "V")
    e("s_branch L_v")
    g.lab("L_vt")
    bodyV(0, "V", None)
    VA, VB0, VB1, VY, VW = V_QB, V_QB + 1, V_QB + 2, V_QB + 3, V_QB + 4
    e(f"v_mul_u32_u24 v{VA}, 4608, v{V_WV}")
    e(f"v_lshrrev_b32 v{T0}, 5, v{V_LANE}")
    e(f"v_lshl_add_u32 v{VA}, v{T0}, 8, v{VA}")
    e(f"v_lshl_add_u32 v{VA}, v{V_N}, 4, v{VA}")
    e(f"v_lshrrev_b32 v{T0}, 1, v{V_WV}")
    e(f"v_lshl_add_u32 v{T0}, v{T0}, 2, v{V_G}")
    e(f"v_mul_u32_u24 v{VB0}, 576, v{T0}")
    e(f"v_and_b32 v{T0}, 1, v{V_WV}")
    e(f"v_lshl_add_u32 v{VB0}, v{T0}, 7, v{VB0}")
    e(f"v_lshl_add_u32 v{VB0}, v{V_N}, 2, v{VB0}")
    e(f"v_add_u32 v{VB1}, 64, v{VB0}")
    e(f"v_lshlrev_b32 v{VY}, 4, v{V_H}")
    e(f"v_lshl_add_u32 v{VW}, v{V_WV}, 2, v{VY}")
    VAW = VA
    VA = V_QB + 5
    e(f"v_lshlrev_b32 v{VA}, 2, v{V_LANE}")
    S_REC, S_RECE, S_OWN, S_OWNE = S_BKV, S_BVS, S_OFF, S_OFFS
    e(f"s_lshl_b32 s{S_T0}, s{S_KVH}, 2")
    e(f"s_add_u32 s{S_T0}, s{S_T0}, s{S_WAVE}")
    e(f"s_lshl_b32 s{S_REC}, s{S_T0}, 14")
    e(f"s_and_b32 s{S_T1}, s2, 31")
    e(f"s_lshl_b32 s{S_OWN}, s{S_T1}, 9")
    e(f"s_add_u32 s{S_OWN}, s{S_OWN}, s{S_REC}")
    e(f"s_lshl_b32 s{S_RECE}, s{S_T0}, 9")
    e(f"s_add_u32 s{S_RECE}, s{S_RECE}, {WS_E}")
    e(f"s_lshl_b32 s{S_OWNE}, s{S_T1}, 4")
    e(f"s_add_u32 s{S_OWNE}, s{S_OWNE}, s{S_RECE}")
    e(f"s_lshl_b32 s{S_T2}, s{S_KVH}, 5")
    bodyV(1, None, None)

    g.c("WG combine")
    if stamp:
        e(f"s_memrealtime {sr(S_TS+2,2)}")
    e(f"v_mov_b32 v{T1}, v{V_L}")
    for blk in range(4):
        for r in range(4):
            e(f"v_sub_f32 v{V_ACC+4*blk+r}, v{V_ACC+4*blk+r}, v{V_Z+r}")
        if blk == 0:
            e(f"v_permlane16_swap_b32 v{V_L}, v{T1}")
            e(f"v_add_f32 v{V_L}, v{V_L}, v{T1}")
            e(f"v_mov_b32 v{T1}, v{V_L}")
        if blk == 1:
            e(f"v_permlane32_swap_b32 v{V_L}, v{T1}")
            e(f"v_add_f32 v{V_L}, v{V_L}, v{T1}")
    e("s_mov_b64 exec, 0xf")
    e(f"ds_write_b32 v{VW}, v{V_L} offset:{L_ML+64}")
    e("s_mov_b32 exec_lo, 0xffff")
    e("s_mov_b32 exec_hi, 0xffff")
    for blk in range(4):
        e(f"ds_write_b128 v{VAW}, {vr(V_ACC+4*blk,4)} offset:{L_O+blk*576}")
    for blk in range(4, 8):
        for r in range(4):
            e(f"v_sub_f32 v{V_ACC+4*blk+r}, v{V_ACC+4*blk+r}, v{V_Z+r}")
        e(f"ds_write_b128 v{VAW}, {vr(V_ACC+4*blk,4)} offset:{L_O+blk*576}")
    e("s_mov_b64 exec, -1")
    e("s_waitcnt lgkmcnt(0)")
    e("s_barrier")
    RB = V_BUF
    LB = V_BUF + 16
    MB = V_BUF + 20
    e(f"ds_read_b128 {vr(LB,4)}, v{VY} offset:{L_ML+64}")
    e(f"ds_read_b128 {vr(MB,4)}, v{VY} offset:{L_ML}")
    for p in range(2):
        for w in range(4):
            o0 = L_O // 256 + w * 18
            e(f"ds_read2st64_b32 {vr(RB+8*p+2*w,2)}, v{VB1 if p else VB0} offset0:{o0} offset1:{o0+1}")
    e("s_waitcnt lgkmcnt(8)")
    VMX, VLs, VR = T0, T1, T6
    e(f"v_add_f32 v{VLs}, v{LB}, v{LB+1}")
    e(f"v_add_f32 v{LB+2}, v{LB+2}, v{LB+3}")
    e(f"v_max3_f32 v{VMX}, v{MB}, v{MB+1}, v{MB+2}")
    e(f"v_add_f32 v{VLs}, v{VLs}, v{LB+2}")
    e(f"v_max_f32 v{VMX}, v{VMX}, v{MB+3}")
    e(f"v_rcp_f32 v{VR}, v{VLs}")
    e(f"v_log_f32 v{VLs}, v{VLs}")
    e(f"v_mul_f32 v{VMX}, s{S_C}, v{VMX}")
    X = V_BUF + 32
    e(f"v_add_f32 v{X+8}, v{VMX}, v{VLs}")
    for p in range(2):
        e(f"s_waitcnt lgkmcnt({4 if p == 0 else 0})")
        R = RB + 8 * p
        e(f"v_add_f32 v{R}, v{R}, v{R+1}")
        e(f"v_add_f32 v{R+2}, v{R+2}, v{R+3}")
        e(f"v_add_f32 v{R+4}, v{R+4}, v{R+5}")
        e(f"v_add_f32 v{R+6}, v{R+6}, v{R+7}")
        e(f"v_add_f32 v{R}, v{R}, v{R+2}")
        e(f"v_add_f32 v{R+4}, v{R+4}, v{R+6}")
        e(f"v_add_f32 v{R}, v{R}, v{R+4}")
        e(f"v_mul_f32 v{X+4*p}, v{R}, v{VR}")
        if p == 0:
            for k in range(1, 4):
                e(f"v_mov_b32_dpp v{X+8+k}, v{X+8} quad_perm:[{k},{k},{k},{k}] row_mask:0xf bank_mask:0xf")
    for b in range(2):
        for k in range(1, 4):
            e(f"v_mov_b32_dpp v{X+4*b+k}, v{X+4*b} quad_perm:[{k},{k},{k},{k}] row_mask:0xf bank_mask:0xf")
    e("s_mov_b32 exec_lo, 0x11111111")
    e("s_mov_b32 exec_hi, 0x11111111")
    g.issued = 0
    g.known_done = 0
    g.vm(f"buffer_store_dwordx4 {vr(X,4)}, v{VA}, {sr(R_WS,4)}, s{S_OWN} offen sc1")
    g.vm(f"buffer_store_dwordx4 {vr(X+4,4)}, v{VA}, {sr(R_WS,4)}, s{S_OWN} offen offset:256 sc1")
    e("s_mov_b64 exec, 1")
    g.vm(f"buffer_store_dwordx4 {vr(X+8,4)}, v{VA}, {sr(R_WS,4)}, s{S_OWNE} offen sc1")
    e(f"v_mov_b32 v{T1}, 1")
    e("s_waitcnt vmcnt(0)")
    g.known_done = g.issued
    e("s_barrier")
    e(f"s_cmp_lg_u32 s{S_WAVE}, 0")
    e("s_cbranch_scc1 L_skip_atomic")
    g.vm(f"buffer_atomic_add v{T1}, v{VA}, {sr(R_DBG,4)}, s{S_T2} offen sc0")
    e("s_waitcnt vmcnt(0)")
    g.known_done = g.issued
    e(f"ds_write_b32 v{VA}, v{T1} offset:{L_FLAG}")
    e("s_waitcnt lgkmcnt(0)")
    g.lab("L_skip_atomic")
    e("s_barrier")
    e(f"ds_read_b32 v{T1}, v{VA} offset:{L_FLAG}")
    e("s_waitcnt lgkmcnt(0)")
    e(f"v_readfirstlane_b32 s{S_T0}, v{T1}")
    e("s_mov_b64 exec, -1")
    g.nop(2)
    if stamp:
        e(f"s_memrealtime {sr(S_TS+4,2)}")
        e("s_waitcnt lgkmcnt(0)")
        e(f"s_lshl_b32 s{S_T1}, s2, 2")
        e(f"s_add_u32 s{S_T1}, s{S_T1}, s{S_WAVE}")
        e(f"s_lshl_b32 s{S_T1}, s{S_T1}, 5")
        e(f"s_add_u32 s{S_T1}, s{S_T1}, 0x100000")
        e(f"s_getreg_b32 s{S_TS+6}, hwreg(HW_REG_XCC_ID)")
        e(f"s_getreg_b32 s{S_TS+7}, hwreg(HW_REG_HW_ID)")
        e(f"s_and_b32 s{S_TS+6}, s{S_TS+6}, 15")
        e(f"s_lshl_b32 s{S_TS+7}, s{S_TS+7}, 4")
        e(f"s_or_b32 s{S_TS+6}, s{S_TS+6}, s{S_TS+7}")
        for k in range(4):
            e(f"v_mov_b32 v{X+k}, s{S_TS+2*k}")
        e(f"v_mov_b32 v{X+4}, s{S_R}")
        e(f"v_mov_b32 v{X+5}, s{S_TS+8}")
        e(f"v_mov_b32 v{X+6}, s{S_TS}")
        e(f"v_mov_b32 v{X+7}, s{S_TS}")
        e("s_mov_b64 exec, 1")
        g.vm(f"buffer_store_dwordx4 {vr(X,4)}, v{VA}, {sr(R_WS,4)}, s{S_T1} offen")
        g.vm(f"buffer_store_dwordx4 {vr(X+4,4)}, v{VA}, {sr(R_WS,4)}, s{S_T1} offen offset:16")
        e("s_mov_b64 exec, -1")
        e("s_waitcnt vmcnt(0)")
        g.known_done = g.issued
    e(f"s_cmp_lg_u32 s{S_T0}, 31")
    e("s_cbranch_scc1 L_end")

    g.c("final combine")
    OB = V_BUF
    EB = V_BUF + 64
    e(f"v_lshlrev_b32 v{VA}, 9, v{V_G}")
    e(f"v_lshl_add_u32 v{VA}, v{V_N}, 4, v{VA}")
    e(f"v_lshlrev_b32 v{VB0}, 4, v{V_G}")
    ie = []
    for k in range(8):
        ie.append(g.vm(f"buffer_load_dwordx4 {vr(EB+4*k,4)}, v{VB0}, {sr(R_WS,4)}, s{S_RECE} offen offset:{k*64} sc1"))
    io = []
    for k in range(8):
        if k and k % 2 == 0:
            e(f"s_add_u32 s{S_REC}, s{S_REC}, 4096")
        for p in range(2):
            io.append(g.vm(f"buffer_load_dwordx4 {vr(OB+8*k+4*p,4)}, v{VA}, {sr(R_WS,4)}, s{S_REC} offen offset:{(k&1)*2048+p*256} sc1"))
    VOUT = T7
    e(f"v_lshrrev_b32 v{T0}, 2, v{V_N}")
    e(f"v_lshl_add_u32 v{T0}, v{V_H}, 2, v{T0}")
    e(f"v_lshlrev_b32 v{VOUT}, 1, v{T0}")
    e(f"v_lshl_add_u32 v{VOUT}, v{V_G}, 8, v{VOUT}")
    e(f"s_lshl_b32 s{S_T0}, s{S_WAVE}, 6")
    e(f"s_add_u32 s{S_T0}, s{S_T0}, s{S_QO}")
    g.wait_vm(ie[-1])
    MX = V_ACC
    M2 = V_ACC + 4
    for h in range(4):
        e(f"v_max3_f32 v{MX+h}, v{EB+h}, v{EB+4+h}, v{EB+8+h}")
        e(f"v_max3_f32 v{MX+h}, v{MX+h}, v{EB+12+h}, v{EB+16+h}")
        e(f"v_max3_f32 v{MX+h}, v{MX+h}, v{EB+20+h}, v{EB+24+h}")
        e(f"v_max_f32 v{MX+h}, v{MX+h}, v{EB+28+h}")
    for h in range(4):
        e(f"v_mov_b32 v{M2+h}, v{MX+h}")
    g.nop(1)
    for h in range(4):
        e(f"v_permlane16_swap_b32 v{MX+h}, v{M2+h}")
    for h in range(4):
        e(f"v_max_f32 v{MX+h}, v{MX+h}, v{M2+h}")
    for h in range(4):
        e(f"v_mov_b32 v{M2+h}, v{MX+h}")
    g.nop(1)
    for h in range(4):
        e(f"v_permlane32_swap_b32 v{MX+h}, v{M2+h}")
    for h in range(4):
        e(f"v_max_f32 v{MX+h}, v{MX+h}, v{M2+h}")
    for k in range(8):
        for h in range(4):
            e(f"v_sub_f32 v{EB+4*k+h}, v{EB+4*k+h}, v{MX+h}")
    for k in range(32):
        e(f"v_exp_f32 v{EB+k}, v{EB+k}")
    DN = V_ACC + 8
    NU = V_ACC + 12
    g.nop(1)
    for h in range(4):
        e(f"v_add_f32 v{DN+h}, v{EB+h}, v{EB+4+h}")
    for k in range(2, 8):
        for h in range(4):
            e(f"v_add_f32 v{DN+h}, v{DN+h}, v{EB+4*k+h}")
    for k in range(8):
        for p in range(2):
            g.wait_vm(io[2 * k + p])
            for h in range(4):
                if k == 0:
                    e(f"v_mul_f32 v{NU+4*p+h}, v{EB+h}, v{OB+4*p+h}")
                else:
                    e(f"v_fmac_f32 v{NU+4*p+h}, v{EB+4*k+h}, v{OB+8*k+4*p+h}")
    g.nop(2)
    bases = (DN, NU, NU + 4)
    for base in bases:
        e(f"v_permlane16_swap_b32 v{base}, v{base+1}")
        e(f"v_permlane16_swap_b32 v{base+2}, v{base+3}")
    for base in bases:
        e(f"v_add_f32 v{base}, v{base}, v{base+1}")
        e(f"v_add_f32 v{base+2}, v{base+2}, v{base+3}")
    g.nop(2)
    for base in bases:
        e(f"v_permlane32_swap_b32 v{base}, v{base+2}")
    for base in bases:
        e(f"v_add_f32 v{base}, v{base}, v{base+2}")
    e(f"v_rcp_f32 v{DN}, v{DN}")
    g.nop(1)
    e(f"v_mul_f32 v{NU}, v{NU}, v{DN}")
    e(f"v_mul_f32 v{NU+4}, v{NU+4}, v{DN}")
    e(f"v_cvt_pk_bf16_f32 v{NU}, v{NU}, v{NU+4}")
    g.vm(f"buffer_store_short v{NU}, v{VOUT}, {sr(R_OUT,4)}, s{S_T0} offen")
    g.vm(f"buffer_store_short_d16_hi v{NU}, v{VOUT}, {sr(R_OUT,4)}, s{S_T0} offen offset:32")
    if dbgtime or stamp:
        e(f"s_memrealtime {sr(S_TS+2,2)}")
        e("s_waitcnt lgkmcnt(0)")
        if dbgtime:
            e(f"s_sub_u32 s{S_T1}, s{S_TS+2}, s{S_TS}")
        else:
            e(f"s_mov_b32 s{S_T1}, s{S_TS+2}")
        e(f"v_mov_b32 v{T0}, s{S_T1}")
        e(f"v_mov_b32 v{T1}, 0")
        e(f"s_lshl_b32 s{S_T2}, s{S_KVH}, 3")
        e(f"s_add_u32 s{S_T2}, s{S_T2}, 4")
        e("s_mov_b64 exec, 1")
        e(f"buffer_store_dword v{T0}, v{T1}, {sr(R_DBG,4)}, s{S_T2} offen")
    g.lab("L_end")
    e("s_endpgm")

    body_t = "\n".join(g.L)
    nv = (NV + 7) // 8 * 8
    text = HEADER + f"; @launch grid=(256,1,1) block=(256,1,1) lds={LDS}\n"
    text += f""".amdgcn_target "amdgcn-amd-amdhsa--gfx950"
.text
.globl {NAME}_kernel
.p2align 8
.type {NAME}_kernel,@function
{NAME}_kernel:
{body_t}
.section .rodata,"a"
.p2align 6
.amdhsa_kernel {NAME}_kernel
  .amdhsa_next_free_vgpr {nv}
  .amdhsa_next_free_sgpr {NSGPR}
  .amdhsa_accum_offset {nv}
  .amdhsa_group_segment_fixed_size 0
  .amdhsa_kernarg_size 80
  .amdhsa_user_sgpr_count 2
  .amdhsa_user_sgpr_kernarg_segment_ptr 1
  .amdhsa_system_sgpr_workgroup_id_x 1
  .amdhsa_float_denorm_mode_32 3
.end_amdhsa_kernel
"""
    return text


if __name__ == "__main__":
    ap = argparse.ArgumentParser()
    ap.add_argument("-o", default=f"cdna_kernels/{NAME}.s")
    ap.add_argument("--pol", default="nt")
    ap.add_argument("--NO", type=int, default=15)
    ap.add_argument("--PHI", type=int, default=19)
    ap.add_argument("--stamp", action="store_true")
    ap.add_argument("--dbgtime", action="store_true")
    ap.add_argument("--lds", type=int, default=90000)
    a = ap.parse_args()
    open(a.o, "w").write(gen(pol=a.pol, NO=a.NO, PHI=a.PHI, stamp=a.stamp, lds_force=a.lds, dbgtime=a.dbgtime))
    print("wrote", a.o)
```

```python
import sys, math, argparse
from gen import G, vr, sr, NAME, HEADER, f32bits


def gen(pol="nt", NO=15, PHI=19, stamp=False, lds_force=90000, dbgtime=False, PHIV=0, polv=None, tail=False, NFIRST=10, wmap=0, PHIB=0):
    g = G()
    e = g.e
    if polv is None: polv = pol
    pol = (" " + pol) if pol else ""
    polv = (" " + polv) if polv else ""
    C = (128.0 ** -0.5) * math.log2(math.e)
    NE = 32 - NO
    assert NO % 2 == 1 and NO >= 3

    S_Q, S_QK, S_QV, S_KS, S_KZ, S_VS, S_VZ, S_OUT, S_DBG, S_WS = 4, 6, 8, 10, 12, 14, 16, 18, 20, 22
    R_K, R_V, R_VS, R_VZ, R_Q, R_KS, R_KZ, R_OUT, R_WS, R_DBG = 24, 28, 32, 36, 40, 44, 48, 52, 56, 60
    S_STRM, S_WGI, S_KVH, S_WAVE, S_C, S_MASK = 64, 65, 66, 67, 68, 69
    S_BKV, S_BVS, S_PHI, S_OFF, S_OFFS, S_R, S_N, S_X2 = 70, 71, 72, 73, 74, 75, 76, 77
    S_T0, S_T1 = 78, 79
    S_ODD = 80
    S_QO = 82
    S_T2 = 83
    S_TS = 84
    NSGPR = 102
    tcount = [0]
    def tst():
        if tail:
            k = tcount[0]; tcount[0] += 1
            e(f"s_memtime s[100:101]")
            e("s_waitcnt lgkmcnt(0)")
            e(f"v_mov_b32 v{V_TSV+k}, s100")

    V_LANE, V_KO, V_VO, V_SO, V_WV, V_G, V_N, V_H = 1, 2, 3, 4, 5, 6, 7, 8
    V_LS = 9
    V_M, V_L = 10, 11
    V_T = 12
    V_QB = 20
    V_NC = 28
    V_D = 32
    V_S = 40
    V_PA = 44
    V_VZ2 = 46
    V_VSZ = 48
    V_PK = 56
    V_ACC = 72
    V_Z = 104
    V_BUF = 108
    V_TSV = V_BUF + 96
    NV = V_BUF + 96 + (16 if tail else 0)

    L_QS = 0
    L_KZ = 2048
    L_ML = 2304
    L_FLAG = 2368
    L_ST = 2432
    L_W = 2560
    L_O = 4608
    L_S = L_O + 4 * 6144
    LDS = max(L_S + 4 * NE * 1024, lds_force)
    assert LDS <= 160 * 1024 and L_S < 65536

    WS_E = 32 * 16384

    T0, T1, T2, T3, T4, T5, T6, T7 = range(V_T, V_T + 8)

    e("s_cmp_ge_u32 s2, 256")
    e("s_cbranch_scc1 L_end")
    e("s_load_dwordx16 s[4:19], s[0:1], 0")
    e("s_load_dwordx4 s[20:23], s[0:1], 64")
    if stamp or dbgtime:
        e(f"s_memrealtime {sr(S_TS,2)}")
    e(f"v_and_b32 v{V_LANE}, 63, v0")
    e(f"v_lshrrev_b32 v{V_WV}, 6, v0")
    e(f"v_lshrrev_b32 v{V_G}, 4, v{V_LANE}")
    e(f"v_and_b32 v{V_N}, 15, v{V_LANE}")
    e(f"v_and_b32 v{V_H}, 3, v{V_LANE}")
    e(f"v_readfirstlane_b32 s{S_WAVE}, v{V_WV}")
    e(f"v_lshlrev_b32 v{V_KO}, 13, v{V_WV}")
    e(f"v_lshrrev_b32 v{T0}, 2, v{V_N}")
    e(f"v_lshl_add_u32 v{V_KO}, v{T0}, 11, v{V_KO}")
    e(f"v_bfe_u32 v{T0}, v{V_N}, 1, 1")
    e(f"v_lshl_add_u32 v{V_KO}, v{T0}, 9, v{V_KO}")
    e(f"v_and_b32 v{T7}, 1, v{V_N}")
    e(f"v_lshl_add_u32 v{V_KO}, v{T7}, 6, v{V_KO}")
    e(f"v_lshl_add_u32 v{V_KO}, v{V_G}, 4, v{V_KO}")
    e(f"v_lshlrev_b32 v{T0}, 2, v0")
    e(f"v_lshlrev_b32 v{T1}, 2, v{V_LANE}")
    S_SPLIT = 99
    if wmap == 0:
        e(f"s_lshr_b32 s{S_STRM}, s2, 4")
        e(f"s_and_b32 s{S_WGI}, s2, 15")
        e(f"s_lshr_b32 s{S_X2}, s{S_WGI}, 1")
    else:
        e(f"s_bfe_u32 s{S_STRM}, s2, 0x20001")
        e(f"s_lshr_b32 s{S_T0}, s2, 6")
        if wmap in (1, 3):
            e(f"s_lshl_b32 s{S_STRM}, s{S_STRM}, 2")
            e(f"s_add_u32 s{S_STRM}, s{S_STRM}, s{S_T0}")
        else:
            e(f"s_lshl_b32 s{S_T0}, s{S_T0}, 2")
            e(f"s_add_u32 s{S_STRM}, s{S_STRM}, s{S_T0}")
        e(f"s_bfe_u32 s{S_X2}, s2, 0x30003")
        e(f"s_and_b32 s{S_T0}, s2, 1")
        e(f"s_lshl_b32 s{S_WGI}, s{S_T0}, 3")
        e(f"s_add_u32 s{S_WGI}, s{S_WGI}, s{S_X2}")
    e(f"s_lshr_b32 s{S_KVH}, s{S_STRM}, 1")
    e(f"s_and_b32 s{S_SPLIT}, s{S_STRM}, 1")
    e(f"s_lshl_b32 s{S_SPLIT}, s{S_SPLIT}, 4")
    e(f"s_add_u32 s{S_SPLIT}, s{S_SPLIT}, s{S_WGI}")
    e(f"s_lshl_b32 s{S_BKV}, s{S_STRM}, 23")
    e(f"s_lshl_b32 s{S_BVS}, s{S_STRM}, 15")
    if wmap == 3:
        e(f"s_mul_i32 s{S_PHI}, s{S_KVH}, {PHI}")
        e(f"s_add_u32 s{S_X2}, s{S_X2}, s{S_PHI}")
        e(f"s_and_b32 s{S_T0}, s{S_STRM}, 1")
        e(f"s_mul_i32 s{S_T0}, s{S_T0}, {PHIB}")
        e(f"s_add_u32 s{S_X2}, s{S_X2}, s{S_T0}")
        e(f"s_and_b32 s{S_T0}, s2, 1")
        e(f"s_mul_i32 s{S_T0}, s{S_T0}, {NE*8}")
        e(f"s_add_u32 s{S_X2}, s{S_X2}, s{S_T0}")
    else:
        e(f"s_mul_i32 s{S_PHI}, s{S_STRM}, {PHI}")
        e(f"s_add_u32 s{S_X2}, s{S_X2}, {NO*8}")
        e(f"s_add_u32 s{S_X2}, s{S_X2}, s{S_PHI}")
        e(f"s_add_u32 s{S_PHI}, s{S_PHI}, s{S_WGI}")
    e(f"s_and_b32 s{S_T0}, s2, 1")
    e(f"s_cselect_b32 s{S_N}, {NO}, {NE}")
    e(f"s_lshl_b32 s{S_QO}, s{S_KVH}, 10")
    e(f"s_lshl_b32 s{S_T2}, s{S_STRM}, 8")

    def offsets(withvs):
        if wmap == 3:
            e(f"s_lshl_b32 s{S_T0}, s{S_R}, 3")
            e(f"s_add_u32 s{S_T0}, s{S_T0}, s{S_X2}")
        else:
            e(f"s_lshl_b32 s{S_T0}, s{S_R}, 4")
            e(f"s_add_u32 s{S_T0}, s{S_T0}, s{S_PHI}")
            e(f"s_lshl_b32 s{S_T1}, s{S_R}, 3")
            e(f"s_add_u32 s{S_T1}, s{S_T1}, s{S_X2}")
            e(f"s_cmp_lt_u32 s{S_R}, {NO}")
            e(f"s_cselect_b32 s{S_T0}, s{S_T0}, s{S_T1}")
        e(f"s_and_b32 s{S_T0}, s{S_T0}, 255")
        e(f"s_lshl_b32 s{S_OFF}, s{S_T0}, 15")
        e(f"s_add_u32 s{S_OFF}, s{S_OFF}, s{S_BKV}")
        if withvs:
            e(f"s_lshl_b32 s{S_OFFS}, s{S_T0}, 7")
            e(f"s_add_u32 s{S_OFFS}, s{S_OFFS}, s{S_BVS}")
        e(f"s_add_u32 s{S_R}, s{S_R}, 1")

    e(f"s_mov_b32 s{S_R}, 0")
    offsets(False)
    for r, n in ((R_K, 1 << 27), (R_Q, 8192), (R_KS, 4096), (R_KZ, 4096)):
        e(f"s_mov_b32 s{r+2}, 0x{n:x}")
        e(f"s_mov_b32 s{r+3}, 0x00020000")
    e("s_waitcnt lgkmcnt(0)")
    for r, p in ((R_K, S_QK), (R_Q, S_Q), (R_KS, S_KS), (R_KZ, S_KZ)):
        e(f"s_mov_b32 s{r}, s{p}")
        e(f"s_mov_b32 s{r+1}, s{p+1}")

    def ldK(buf, k):
        a, c = k >> 2, k & 3
        return g.vm(f"buffer_load_dwordx4 {vr(V_BUF+32*buf+4*k,4)}, v{V_KO}, {sr(R_K,4)}, s{S_OFF} offen offset:{a*1024+c*128}{pol}")

    def ldV(buf, k):
        hv, i = k >> 2, k & 3
        return g.vm(f"buffer_load_dwordx4 {vr(V_BUF+32*buf+4*k,4)}, v{V_VO}, {sr(R_V,4)}, s{S_OFF} offen offset:{i*512+hv*256}{polv}")

    def ldVSZ(buf):
        g.vm(f"buffer_load_dwordx2 {vr(V_VSZ+4*buf,2)}, v{V_SO}, {sr(R_VS,4)}, s{S_OFFS} offen")
        return g.vm(f"buffer_load_dwordx2 {vr(V_VSZ+4*buf+2,2)}, v{V_SO}, {sr(R_VZ,4)}, s{S_OFFS} offen")

    g.vm(f"buffer_load_dword v{T2}, v{T0}, {sr(R_Q,4)}, s{S_QO} offen")
    g.vm(f"buffer_load_dword v{T3}, v{T1}, {sr(R_KS,4)}, s{S_T2} offen")
    i_kz = g.vm(f"buffer_load_dword v{T4}, v{T1}, {sr(R_KZ,4)}, s{S_T2} offen")
    for k in range(8):
        ldK(0, k)
    offsets(False)
    for k in range(8):
        ldK(1, k)

    for r, n in ((R_V, 1 << 27), (R_VS, 1 << 19), (R_VZ, 1 << 19), (R_OUT, 8192), (R_WS, 1 << 29), (R_DBG, 256)):
        e(f"s_mov_b32 s{r+2}, 0x{n:x}")
        e(f"s_mov_b32 s{r+3}, 0x00020000")
    for r, p in ((R_V, S_QV), (R_VS, S_VS), (R_VZ, S_VZ), (R_OUT, S_OUT), (R_WS, S_WS), (R_DBG, S_DBG)):
        e(f"s_mov_b32 s{r}, s{p}")
        e(f"s_mov_b32 s{r+1}, s{p+1}")
    e(f"s_mov_b32 s{S_C}, 0x{f32bits(C):08x}")
    e(f"s_mov_b32 s{S_MASK}, 0xffff0000")
    e(f"v_lshlrev_b32 v{V_VO}, 13, v{V_WV}")
    e(f"v_lshl_add_u32 v{V_VO}, v{V_G}, 11, v{V_VO}")
    e(f"v_lshl_add_u32 v{V_VO}, v{V_N}, 4, v{V_VO}")
    e(f"v_lshlrev_b32 v{V_SO}, 5, v{V_WV}")
    e(f"v_lshl_add_u32 v{V_SO}, v{V_G}, 3, v{V_SO}")
    e(f"v_and_b32 v{T5}, 8, v{V_LANE}")
    e(f"v_cmp_ne_u32 {sr(S_ODD,2)}, 0, v{T5}")
    e(f"v_and_b32 v{T6}, 4, v{V_LANE}")
    e(f"v_mov_b32 v{V_M}, 0xff7fffff")
    e(f"v_mov_b32 v{V_L}, 0")
    for x in range(36):
        e(f"v_mov_b32 v{V_ACC+x}, 0")
    e(f"v_mul_u32_u24 v{V_LS}, {NE*1024}, v{V_WV}")
    e(f"v_lshl_add_u32 v{V_LS}, v{V_LANE}, 4, v{V_LS}")
    e(f"v_lshlrev_b32 v{T5}, 7, v{T5}")
    e(f"v_lshl_add_u32 v{T5}, v{V_H}, 8, v{T5}")
    e(f"v_lshl_add_u32 v{T5}, v{T6}, 3, v{T5}")
    e(f"v_lshl_add_u32 v{T5}, v{V_G}, 3, v{T5}")
    e(f"v_lshlrev_b32 v{T7}, 5, v{T7}")
    e(f"v_lshl_add_u32 v{T7}, v{V_G}, 3, v{T7}")
    e(f"s_mov_b32 s{S_T0}, 0x07060302")
    g.wait_vm(i_kz)
    A0, A1, B0, B1 = V_D, V_D + 1, V_D + 2, V_D + 3
    e(f"v_lshlrev_b32 v{A0}, 16, v{T2}")
    e(f"v_and_b32 v{A1}, s{S_MASK}, v{T2}")
    e(f"v_lshlrev_b32 v{B0}, 16, v{T3}")
    e(f"v_and_b32 v{B1}, s{S_MASK}, v{T3}")
    e(f"v_mul_f32 v{A0}, v{A0}, v{B0}")
    e(f"v_mul_f32 v{A1}, v{A1}, v{B1}")
    e(f"v_and_b32 v{B0}, s{S_MASK}, v{A0}")
    e(f"v_and_b32 v{B1}, s{S_MASK}, v{A1}")
    e(f"v_sub_f32 v{B0}, v{A0}, v{B0}")
    e(f"v_sub_f32 v{B1}, v{A1}, v{B1}")
    e(f"v_perm_b32 v{A0}, v{A1}, v{A0}, s{S_T0}")
    e(f"v_perm_b32 v{B0}, v{B1}, v{B0}, s{S_T0}")
    e(f"ds_write_b32 v{T0}, v{A0} offset:{L_QS}")
    e(f"ds_write_b32 v{T0}, v{B0} offset:{L_QS+1024}")
    e(f"ds_write_b32 v{T1}, v{T4} offset:{L_KZ}")
    e("s_waitcnt lgkmcnt(0)")
    e("s_barrier")
    for c in range(4):
        e(f"ds_read_b64 {vr(V_QB+2*c,2)}, v{T5} offset:{L_QS+64*c}")
    for c in range(4):
        e(f"ds_read_b64 {vr(V_PK+2*c,2)}, v{T7} offset:{L_KZ+64*c}")
    e("s_waitcnt lgkmcnt(0)")
    for ee in range(2):
        e(f"v_mfma_f32_16x16x32_bf16 {vr(V_NC,4)}, {vr(V_PK+4*ee,4)}, {vr(V_QB+4*ee,4)}, {'0' if ee == 0 else vr(V_NC,4)}")
    g.nop(10)
    for r in range(4):
        e(f"v_xor_b32 v{V_NC+r}, 0x80000000, v{V_NC+r}")

    NOPS = {"K": 8, "V": 10, None: 0}

    def issue_pair(buf, nxt, k0):
        if nxt == "K":
            ldK(buf, k0)
            ldK(buf, k0 + 1)
        elif nxt == "V":
            ldV(buf, k0)
            ldV(buf, k0 + 1)

    def bodyK(buf, other, nxt):
        g.issued = 8 + NOPS[other]
        g.known_done = 0
        offsets(nxt == "V")
        if nxt == "V":
            ldVSZ(buf)
        B = V_BUF + 32 * buf
        for p in range(4):
            a, ee = p >> 1, p & 1
            k0, k1 = 2 * p, 2 * p + 1
            b0, b1 = B + 4 * k0, B + 4 * k1
            pk = V_PK + 4 * (p & 1)
            g.wait_vm(k0)
            for k in range(4):
                e(f"v_cvt_f32_i32 v{b0+k}, v{b0+k}")
            g.wait_vm(k1)
            for k in range(4):
                e(f"v_cvt_f32_i32 v{b1+k}, v{b1+k}")
            e(f"v_cvt_pk_bf16_f32 v{pk}, v{b0}, v{b0+1}")
            e(f"v_cvt_pk_bf16_f32 v{pk+1}, v{b0+2}, v{b0+3}")
            e(f"v_cvt_pk_bf16_f32 v{pk+2}, v{b1}, v{b1+1}")
            e(f"v_cvt_pk_bf16_f32 v{pk+3}, v{b1+2}, v{b1+3}")
            issue_pair(buf, nxt, k0)
            e(f"v_mfma_f32_16x16x32_bf16 {vr(V_D+4*a,4)}, {vr(pk,4)}, {vr(V_QB+4*ee,4)}, {vr(V_NC,4) if ee == 0 else vr(V_D+4*a,4)}")
        e(f"v_add_f32_dpp v{V_S}, v{V_D+1}, v{V_D} row_ror:4 row_mask:0xf bank_mask:0xf")
        e(f"v_add_f32_dpp v{V_S+1}, v{V_D+3}, v{V_D+2} row_ror:4 row_mask:0xf bank_mask:0xf")
        g.nop(1)
        e(f"v_add_f32_dpp v{V_S}, v{V_S}, v{V_S} row_ror:8 row_mask:0xf bank_mask:0xf")
        e(f"v_add_f32_dpp v{V_S+1}, v{V_S+1}, v{V_S+1} row_ror:8 row_mask:0xf bank_mask:0xf")
        e(f"v_max3_f32 v{V_M}, v{V_M}, v{V_S}, v{V_S+1}")
        g.nop(3)
        e(f"v_add_f32_dpp v{V_S+2}, v{V_D+5}, v{V_D+4} row_ror:4 row_mask:0xf bank_mask:0xf")
        e(f"v_add_f32_dpp v{V_S+3}, v{V_D+7}, v{V_D+6} row_ror:4 row_mask:0xf bank_mask:0xf")
        g.nop(1)
        e(f"v_add_f32_dpp v{V_S+2}, v{V_S+2}, v{V_S+2} row_ror:8 row_mask:0xf bank_mask:0xf")
        e(f"v_add_f32_dpp v{V_S+3}, v{V_S+3}, v{V_S+3} row_ror:8 row_mask:0xf bank_mask:0xf")
        e(f"ds_write_b128 v{V_LS}, {vr(V_S,4)} offset:{L_S}")
        e(f"v_max3_f32 v{V_M}, v{V_M}, v{V_S+2}, v{V_S+3}")
        e(f"v_add_u32 v{V_LS}, 1024, v{V_LS}")

    def bodyV(buf, other, nxt, last=None):
        g.issued = 10 + NOPS[other]
        g.known_done = 0
        B = V_BUF + 32 * buf
        VS, VZ = V_VSZ + 4 * buf, V_VSZ + 4 * buf + 2
        e(f"ds_read_b128 {vr(V_S,4)}, v{V_LS} offset:{L_S}")
        if nxt:
            offsets(True)
        e(f"v_add_u32 v{V_LS}, 1024, v{V_LS}")
        X0, X1, X2, X3 = T4, T5, T6, T7
        g.wait_vm(1)
        e(f"v_lshlrev_b32 v{X0}, 16, v{VS}")
        e(f"v_and_b32 v{X1}, s{S_MASK}, v{VS}")
        e(f"v_lshlrev_b32 v{X2}, 16, v{VS+1}")
        e(f"v_and_b32 v{X3}, s{S_MASK}, v{VS+1}")
        e(f"v_mov_b32 v{V_VZ2}, v{VZ}")
        e(f"v_mov_b32 v{V_VZ2+1}, v{VZ+1}")
        if nxt:
            ldVSZ(buf)
        e("s_waitcnt lgkmcnt(0)")
        for i in range(4):
            e(f"v_fma_f32 v{V_S+i}, v{V_S+i}, s{S_C}, -v{V_M}")
        for i in range(4):
            e(f"v_exp_f32 v{V_S+i}, v{V_S+i}")
        e(f"v_add_f32 v{T0}, v{V_S}, v{V_S+1}")
        e(f"v_mul_f32 v{X0}, v{X0}, v{V_S}")
        e(f"v_add_f32 v{T1}, v{V_S+2}, v{V_S+3}")
        e(f"v_mul_f32 v{X1}, v{X1}, v{V_S+1}")
        e(f"v_mul_f32 v{X2}, v{X2}, v{V_S+2}")
        e(f"v_mul_f32 v{X3}, v{X3}, v{V_S+3}")
        e(f"v_add_f32 v{V_L}, v{V_L}, v{T0}")
        for i, X in enumerate((X0, X1, X2, X3)):
            e(f"v_and_b32 v{V_S+i}, s{S_MASK}, v{X}")
        e(f"v_add_f32 v{V_L}, v{V_L}, v{T1}")
        for i, X in enumerate((X0, X1, X2, X3)):
            e(f"v_sub_f32 v{X}, v{X}, v{V_S+i}")
        for i, X in enumerate((X0, X1, X2, X3)):
            e(f"v_cndmask_b32 v{X}, v{V_S+i}, v{X}, {sr(S_ODD,2)}")
        e(f"v_cvt_pk_bf16_f32 v{V_PA}, v{X0}, v{X1}")
        e(f"v_cvt_pk_bf16_f32 v{V_PA+1}, v{X2}, v{X3}")
        g.nop(2)
        e(f"v_mfma_f32_16x16x16_bf16 {vr(V_Z,4)}, {vr(V_PA,2)}, {vr(V_VZ2,2)}, {vr(V_Z,4)}")
        if last:
            last("stats")
        for p in range(4):
            hv, q = p >> 1, p & 1
            k0, k1 = 2 * p, 2 * p + 1
            b0, b1 = B + 4 * k0, B + 4 * k1
            pk = V_PK + 8 * hv
            g.wait_vm(2 + k0)
            for k in range(4):
                e(f"v_cvt_f32_i32 v{b0+k}, v{b0+k}")
            g.wait_vm(2 + k1)
            for k in range(4):
                e(f"v_cvt_f32_i32 v{b1+k}, v{b1+k}")
            for j in range(4):
                e(f"v_cvt_pk_bf16_f32 v{pk+2*j+q}, v{b0+j}, v{b1+j}")
            issue_pair(buf, nxt, k0)
            if last and p == 2:
                last("half")
            if q == 1:
                if not nxt:
                    g.nop(1)
                for j in range(4):
                    acc = V_ACC + 4 * (hv * 4 + j)
                    e(f"v_mfma_f32_16x16x16_bf16 {vr(acc,4)}, {vr(V_PA,2)}, {vr(pk+2*j,2)}, {vr(acc,4)}")

    g.lab("L_k")
    bodyK(0, "K", "K")
    e(f"s_cmp_ge_u32 s{S_R}, s{S_N}")
    e("s_cbranch_scc1 L_kt")
    bodyK(1, "K", "K")
    e("s_branch L_k")
    g.lab("L_kt")
    e(f"s_mov_b32 s{S_R}, 0")
    bodyK(1, "K", "V")
    bodyK(0, "V", "V")
    if stamp:
        e(f"s_memrealtime {sr(S_TS+8,2)}")
    g.c("max exchange")
    S_REC, S_RECE, S_OWN, S_OWNE, S_CTR = 94, 95, 96, 97, 98
    e(f"v_mov_b32 v{T1}, v{V_M}")
    e(f"v_lshlrev_b32 v{T2}, 2, v{V_WV}")
    e(f"v_lshl_add_u32 v{T2}, v{V_H}, 4, v{T2}")
    e(f"v_permlane16_swap_b32 v{V_M}, v{T1}")
    e(f"v_max_f32 v{V_M}, v{V_M}, v{T1}")
    e(f"v_mov_b32 v{T1}, v{V_M}")
    e(f"v_lshlrev_b32 v{T3}, 4, v{V_H}")
    e(f"v_mul_u32_u24 v{V_LS}, {NE*1024}, v{V_WV}")
    e(f"v_permlane32_swap_b32 v{V_M}, v{T1}")
    e(f"v_max_f32 v{V_M}, v{V_M}, v{T1}")
    e(f"v_lshl_add_u32 v{V_LS}, v{V_LANE}, 4, v{V_LS}")
    e("s_mov_b64 exec, 0xf")
    e(f"ds_write_b32 v{T2}, v{V_M} offset:{L_ML}")
    e("s_mov_b64 exec, -1")
    VAW, VRD, VST, VSO2, VHB8, VE = V_QB, V_QB + 1, V_QB + 2, V_QB + 3, V_QB + 4, V_QB + 5
    VL16, VWW, VWR, VOUT, VZERO = V_QB + 6, V_QB + 7, V_NC, V_NC + 1, V_NC + 2
    e(f"v_lshrrev_b32 v{T0}, 5, v{V_LANE}")
    e(f"v_mul_u32_u24 v{VAW}, 6144, v{V_WV}")
    e(f"v_mul_u32_u24 v{T1}, 3072, v{T0}")
    e(f"v_add_u32 v{VAW}, v{VAW}, v{T1}")
    e(f"v_lshl_add_u32 v{VAW}, v{V_N}, 4, v{VAW}")
    e(f"v_bfe_u32 v{T4}, v{V_LANE}, 3, 2")
    e(f"v_and_b32 v{T5}, 7, v{V_LANE}")
    e(f"v_lshrrev_b32 v{T6}, 1, v{V_WV}")
    e(f"v_lshl_add_u32 v{T6}, v{T6}, 2, v{T4}")
    e(f"v_mul_u32_u24 v{VRD}, 384, v{T6}")
    e(f"v_add_u32 v{VRD}, v{VRD}, v{T1}")
    e(f"v_and_b32 v{T6}, 1, v{V_WV}")
    e(f"v_lshl_add_u32 v{VRD}, v{T6}, 7, v{VRD}")
    e(f"v_lshl_add_u32 v{VRD}, v{T5}, 4, v{VRD}")
    e(f"v_lshrrev_b32 v{T6}, 1, v{V_H}")
    e(f"v_lshlrev_b32 v{VE}, 4, v{T6}")
    e(f"v_and_b32 v{T6}, 1, v{V_H}")
    e(f"v_lshl_add_u32 v{VE}, v{T6}, 2, v{VE}")
    e(f"v_lshl_add_u32 v{VST}, v{V_WV}, 5, v{VE}")
    e(f"v_lshlrev_b32 v{VHB8}, 4, v{T0}")
    e(f"v_and_b32 v{T6}, 31, v{V_LANE}")
    e(f"v_lshlrev_b32 v{VSO2}, 4, v{T6}")
    e(f"v_lshl_add_u32 v{VSO2}, v{T0}, 3, v{VSO2}")
    e(f"v_lshlrev_b32 v{VL16}, 4, v{V_LANE}")
    e(f"v_lshl_add_u32 v{VWW}, v{V_WV}, 9, v{VSO2}")
    e(f"v_lshl_add_u32 v{VWR}, v{V_WV}, 9, v{VHB8}")
    e(f"v_lshl_add_u32 v{VOUT}, v{T5}, 2, v{T4}")
    e(f"v_lshlrev_b32 v{VOUT}, 1, v{VOUT}")
    e(f"v_lshl_add_u32 v{VOUT}, v{T0}, 9, v{VOUT}")
    e(f"v_lshl_add_u32 v{V_NC+3}, v{T6}, 5, v{VHB8}")
    e(f"v_mov_b32 v{VZERO}, 0")
    VEL = V_NC + 3
    e(f"s_lshl_b32 s{S_T0}, s{S_KVH}, 2")
    e(f"s_add_u32 s{S_T0}, s{S_T0}, s{S_WAVE}")
    e(f"s_lshl_b32 s{S_REC}, s{S_T0}, 14")
    e(f"s_mov_b32 s{S_T1}, s{S_SPLIT}")
    e(f"s_lshl_b32 s{S_OWN}, s{S_T1}, 9")
    e(f"s_add_u32 s{S_OWN}, s{S_OWN}, s{S_REC}")
    e(f"s_lshl_b32 s{S_RECE}, s{S_KVH}, 10")
    e(f"s_add_u32 s{S_RECE}, s{S_RECE}, {WS_E}")
    e(f"s_lshl_b32 s{S_OWNE}, s{S_T1}, 5")
    e(f"s_add_u32 s{S_OWNE}, s{S_OWNE}, s{S_RECE}")
    e(f"s_lshl_b32 s{S_CTR}, s{S_KVH}, 5")
    e(f"s_lshl_b32 s{S_T0}, s{S_WAVE}, 6")
    e(f"s_add_u32 s{S_QO}, s{S_QO}, s{S_T0}")
    e("s_waitcnt lgkmcnt(0)")
    e("s_barrier")
    e(f"ds_read_b128 {vr(V_D,4)}, v{T3} offset:{L_ML}")
    e("s_waitcnt lgkmcnt(0)")
    e(f"v_max3_f32 v{V_M}, v{V_M}, v{V_D}, v{V_D+1}")
    e(f"v_max3_f32 v{V_M}, v{V_M}, v{V_D+2}, v{V_D+3}")
    e(f"v_mul_f32 v{V_M}, s{S_C}, v{V_M}")
    e(f"s_cmp_lg_u32 s{S_WAVE}, 0")
    e("s_cbranch_scc1 L_v")
    e("s_mov_b64 exec, 0xf")
    e(f"buffer_store_dword v{V_M}, v{VE}, {sr(R_WS,4)}, s{S_OWNE} offen sc1")
    e("s_mov_b64 exec, -1")

    g.lab("L_v")
    bodyV(1, "V", "V")
    e(f"s_cmp_ge_u32 s{S_R}, s{S_N}")
    e("s_cbranch_scc1 L_vt")
    bodyV(0, "V", "V")
    e("s_branch L_v")
    g.lab("L_vt")
    bodyV(0, "V", None)

    def last(what):
        if what == "stats":
            e(f"v_mov_b32 v{T1}, v{V_L}")
            g.nop(2)
            e(f"v_permlane16_swap_b32 v{V_L}, v{T1}")
            e(f"v_add_f32 v{V_L}, v{V_L}, v{T1}")
            e(f"v_mov_b32 v{T1}, v{V_L}")
            g.nop(2)
            e(f"v_permlane32_swap_b32 v{V_L}, v{T1}")
            e(f"v_add_f32 v{V_L}, v{V_L}, v{T1}")
            e(f"v_permlane32_swap_b32 v{V_Z}, v{V_Z+2}")
            e(f"v_permlane32_swap_b32 v{V_Z+1}, v{V_Z+3}")
            e(f"v_lshl_add_u32 v{T0}, v{V_WV}, 5, v{VHB8}")
            e(f"v_pk_add_f32 {vr(V_Z,2)}, {vr(V_Z,2)}, {vr(V_Z+2,2)}")
            e("s_mov_b64 exec, 0xf")
            e(f"ds_write_b32 v{VST}, v{V_L} offset:{L_ST}")
            e("s_mov_b32 exec_lo, 1")
            e("s_mov_b32 exec_hi, 1")
            e(f"ds_write_b64 v{T0}, {vr(V_Z,2)} offset:{L_ST+8}")
            e("s_mov_b64 exec, -1")
        else:
            e("s_mov_b32 exec_lo, 0xffff")
            e("s_mov_b32 exec_hi, 0xffff")
            for blk in range(4):
                e(f"ds_write_b128 v{VAW}, {vr(V_ACC+4*blk,4)} offset:{L_O+blk*384}")
            e("s_mov_b64 exec, -1")

    bodyV(1, None, None, last)

    g.c("WG combine")
    tst()
    if stamp:
        e(f"s_memrealtime {sr(S_TS+2,2)}")
    e("s_mov_b32 exec_lo, 0xffff")
    e("s_mov_b32 exec_hi, 0xffff")
    g.nop(4)
    for blk in range(4, 8):
        e(f"ds_write_b128 v{VAW}, {vr(V_ACC+4*blk,4)} offset:{L_O+blk*384}")
    e("s_mov_b64 exec, -1")
    e("s_waitcnt lgkmcnt(0)")
    e("s_barrier")
    tst()
    RB = V_BUF
    SB = V_BUF + 16
    for w in range(4):
        e(f"ds_read_b128 {vr(RB+4*w,4)}, v{VRD} offset:{L_O+w*6144}")
    for w in range(4):
        e(f"ds_read_b128 {vr(SB+4*w,4)}, v{VHB8} offset:{L_ST+w*32}")
    e("s_waitcnt lgkmcnt(6)")
    e(f"v_pk_add_f32 {vr(RB,2)}, {vr(RB,2)}, {vr(RB+4,2)}")
    e(f"v_pk_add_f32 {vr(RB+2,2)}, {vr(RB+2,2)}, {vr(RB+6,2)}")
    e("s_waitcnt lgkmcnt(4)")
    e(f"v_pk_add_f32 {vr(RB+8,2)}, {vr(RB+8,2)}, {vr(RB+12,2)}")
    e(f"v_pk_add_f32 {vr(RB+10,2)}, {vr(RB+10,2)}, {vr(RB+14,2)}")
    e(f"v_pk_add_f32 {vr(RB,2)}, {vr(RB,2)}, {vr(RB+8,2)}")
    e(f"v_pk_add_f32 {vr(RB+2,2)}, {vr(RB+2,2)}, {vr(RB+10,2)}")
    e("s_waitcnt lgkmcnt(0)")
    e(f"v_pk_add_f32 {vr(SB+2,2)}, {vr(SB+2,2)}, {vr(SB+6,2)}")
    e(f"v_pk_add_f32 {vr(SB+10,2)}, {vr(SB+10,2)}, {vr(SB+14,2)}")
    e(f"v_permlane32_swap_b32 v{RB}, v{RB+2}")
    e(f"v_permlane32_swap_b32 v{RB+1}, v{RB+3}")
    e(f"v_pk_add_f32 {vr(SB+2,2)}, {vr(SB+2,2)}, {vr(SB+10,2)}")
    e(f"v_pk_add_f32 {vr(RB,2)}, {vr(RB,2)}, {vr(RB+2,2)}")
    e(f"v_pk_add_f32 {vr(SB,2)}, {vr(SB,2)}, {vr(SB+4,2)}")
    e(f"v_pk_add_f32 {vr(RB,2)}, {vr(RB,2)}, {vr(SB+2,2)} neg_lo:[0,1] neg_hi:[0,1]")
    g.issued = 0
    g.known_done = 0
    g.vm(f"buffer_store_dwordx2 {vr(RB,2)}, v{VSO2}, {sr(R_WS,4)}, s{S_OWN} offen sc1")
    e(f"s_cmp_lg_u32 s{S_WAVE}, 0")
    e("s_cbranch_scc1 L_noL")
    e(f"v_pk_add_f32 {vr(SB+8,2)}, {vr(SB+8,2)}, {vr(SB+12,2)}")
    e("s_mov_b32 exec_lo, 1")
    e("s_mov_b32 exec_hi, 1")
    e(f"v_pk_add_f32 {vr(SB,2)}, {vr(SB,2)}, {vr(SB+8,2)}")
    g.vm(f"buffer_store_dwordx2 {vr(SB,2)}, v{VHB8}, {sr(R_WS,4)}, s{S_OWNE} offen offset:8 sc1")
    e("s_mov_b64 exec, 1")
    e(f"v_mov_b32 v{T1}, 1")
    g.lab("L_noL")
    tst()
    e("s_waitcnt vmcnt(0)")
    g.known_done = g.issued
    tst()
    e("s_barrier")
    tst()
    e(f"s_cmp_lg_u32 s{S_WAVE}, 0")
    e("s_cbranch_scc1 L_skip_atomic")
    g.vm(f"buffer_atomic_add v{T1}, v{VZERO}, {sr(R_DBG,4)}, s{S_CTR} offen sc0")
    e("s_waitcnt vmcnt(0)")
    g.known_done = g.issued
    e(f"ds_write_b32 v{VZERO}, v{T1} offset:{L_FLAG}")
    e("s_mov_b64 exec, -1")
    e("s_waitcnt lgkmcnt(0)")
    g.lab("L_skip_atomic")
    tst()
    e("s_barrier")
    e(f"ds_read_b32 v{T1}, v{VZERO} offset:{L_FLAG}")
    e("s_waitcnt lgkmcnt(0)")
    e(f"v_readfirstlane_b32 s{S_T0}, v{T1}")
    g.nop(1)
    X = V_BUF + 32
    if stamp:
        e(f"s_memrealtime {sr(S_TS+4,2)}")
        e("s_waitcnt lgkmcnt(0)")
        e(f"s_lshl_b32 s{S_T1}, s2, 2")
        e(f"s_add_u32 s{S_T1}, s{S_T1}, s{S_WAVE}")
        e(f"s_lshl_b32 s{S_T1}, s{S_T1}, 5")
        e(f"s_add_u32 s{S_T1}, s{S_T1}, 0x100000")
        e(f"s_getreg_b32 s{S_TS+6}, hwreg(HW_REG_XCC_ID)")
        e(f"s_getreg_b32 s{S_TS+7}, hwreg(HW_REG_HW_ID)")
        e(f"s_and_b32 s{S_TS+6}, s{S_TS+6}, 15")
        e(f"s_lshl_b32 s{S_TS+7}, s{S_TS+7}, 4")
        e(f"s_or_b32 s{S_TS+6}, s{S_TS+6}, s{S_TS+7}")
        XS = V_ACC + 16
        for k in range(4):
            e(f"v_mov_b32 v{XS+k}, s{S_TS+2*k}")
        e(f"v_mov_b32 v{XS+4}, s{S_R}")
        e(f"v_mov_b32 v{XS+5}, s{S_TS+8}")
        e(f"v_mov_b32 v{XS+6}, s{S_TS}")
        e(f"v_mov_b32 v{XS+7}, s{S_TS}")
        e("s_mov_b64 exec, 1")
        g.vm(f"buffer_store_dwordx4 {vr(XS,4)}, v{VZERO}, {sr(R_WS,4)}, s{S_T1} offen")
        g.vm(f"buffer_store_dwordx4 {vr(XS+4,4)}, v{VZERO}, {sr(R_WS,4)}, s{S_T1} offen offset:16")
        e("s_mov_b64 exec, -1")
    e(f"s_cmp_lg_u32 s{S_T0}, 31")
    e("s_cbranch_scc1 L_end")

    g.c("final combine")
    tst()
    OB = V_BUF
    WB = V_BUF + 64
    EB = V_ACC
    MX = V_ACC + 4
    M2 = V_ACC + 6
    N0 = V_ACC + 8
    N1 = V_ACC + 12
    ie = g.vm(f"buffer_load_dwordx4 {vr(EB,4)}, v{VEL}, {sr(R_WS,4)}, s{S_RECE} offen sc1")
    io = []

    def ldO(k):
        if k and k % 4 == 0:
            e(f"s_add_u32 s{S_REC}, s{S_REC}, 4096")
        io.append(g.vm(f"buffer_load_dwordx4 {vr(OB+4*k,4)}, v{VL16}, {sr(R_WS,4)}, s{S_REC} offen offset:{(k&3)*1024} sc1"))

    def reduce32(op, a, src=None):
        first = True
        for ctl in ("quad_perm:[1,0,3,2]", "quad_perm:[2,3,0,1]", "row_ror:4", "row_ror:8"):
            for r in range(2):
                sreg = (src + r) if (first and src is not None) else (a + r)
                e(f"v_{op}_f32_dpp v{a+r}, v{sreg}, v{sreg} {ctl} row_mask:0xf bank_mask:0xf")
            g.nop(1)
            first = False
        e(f"v_mov_b32 v{M2}, v{a}")
        e(f"v_mov_b32 v{M2+1}, v{a+1}")
        g.nop(1)
        e(f"v_permlane16_swap_b32 v{a}, v{M2}")
        e(f"v_permlane16_swap_b32 v{a+1}, v{M2+1}")
        e(f"v_{op}_f32 v{a}, v{a}, v{M2}")
        e(f"v_{op}_f32 v{a+1}, v{a+1}, v{M2+1}")

    for k in range(NFIRST):
        ldO(k)
    tst()
    g.wait_vm(ie)
    tst()
    reduce32("max", MX, EB)
    e(f"v_sub_f32 v{EB}, v{EB}, v{MX}")
    e(f"v_sub_f32 v{EB+1}, v{EB+1}, v{MX+1}")
    e(f"v_exp_f32 v{EB}, v{EB}")
    e(f"v_exp_f32 v{EB+1}, v{EB+1}")
    g.nop(1)
    e(f"ds_write_b64 v{VWW}, {vr(EB,2)} offset:{L_W}")
    e(f"v_pk_mul_f32 {vr(EB+2,2)}, {vr(EB+2,2)}, {vr(EB,2)}")
    for k in range(8):
        e(f"ds_read_b128 {vr(WB+4*k,4)}, v{VWR} offset:{L_W+k*32}")
    for k in range(NFIRST, 16):
        ldO(k)
    tst()
    reduce32("add", EB + 2)
    e(f"v_rcp_f32 v{EB+2}, v{EB+2}")
    e(f"v_rcp_f32 v{EB+3}, v{EB+3}")
    e("s_waitcnt lgkmcnt(0)")
    for k in range(16):
        g.wait_vm(io[k])
        if k == 8:
            e("s_waitcnt lgkmcnt(0)")
        N = N0 if k % 2 == 0 else N1
        Wk = WB + 4 * (k & 7)
        for hh in (0, 2):
            if k < 2:
                e(f"v_pk_mul_f32 {vr(N+hh,2)}, {vr(Wk+hh,2)}, {vr(OB+4*k+hh,2)}")
            else:
                e(f"v_pk_fma_f32 {vr(N+hh,2)}, {vr(Wk+hh,2)}, {vr(OB+4*k+hh,2)}, {vr(N+hh,2)}")
        if k < 8:
            e(f"ds_read_b128 {vr(Wk,4)}, v{VWR} offset:{L_W+(k+8)*32}")
    tst()
    e(f"v_pk_add_f32 {vr(N0,2)}, {vr(N0,2)}, {vr(N1,2)}")
    e(f"v_pk_add_f32 {vr(N0+2,2)}, {vr(N0+2,2)}, {vr(N1+2,2)}")
    g.nop(2)
    e(f"v_permlane32_swap_b32 v{N0}, v{N0+2}")
    e(f"v_permlane32_swap_b32 v{N0+1}, v{N0+3}")
    e(f"v_pk_add_f32 {vr(N0,2)}, {vr(N0,2)}, {vr(N0+2,2)}")
    e(f"v_pk_mul_f32 {vr(N0,2)}, {vr(N0,2)}, {vr(EB+2,2)}")
    e(f"v_cvt_pk_bf16_f32 v{N0}, v{N0}, v{N0+1}")
    g.vm(f"buffer_store_short v{N0}, v{VOUT}, {sr(R_OUT,4)}, s{S_QO} offen")
    g.vm(f"buffer_store_short_d16_hi v{N0}, v{VOUT}, {sr(R_OUT,4)}, s{S_QO} offen offset:256")
    if tail:
        tst()
        e("s_waitcnt vmcnt(0)")
        tst()
        e(f"s_lshl_b32 s{S_T1}, s{S_KVH}, 2")
        e(f"s_add_u32 s{S_T1}, s{S_T1}, s{S_WAVE}")
        e(f"s_lshl_b32 s{S_T1}, s{S_T1}, 6")
        e(f"s_add_u32 s{S_T1}, s{S_T1}, 0x300000")
        for k in range(16):
            e(f"v_mov_b32 v{V_BUF+k}, v{V_TSV+min(k, tcount[0]-1)}")
        e("s_mov_b64 exec, 1")
        for k in range(4):
            e(f"buffer_store_dwordx4 {vr(V_BUF+4*k,4)}, v{VZERO}, {sr(R_WS,4)}, s{S_T1} offen offset:{16*k}")
    if dbgtime or stamp:
        e(f"s_memrealtime {sr(S_TS+2,2)}")
        e("s_waitcnt lgkmcnt(0)")
        if dbgtime:
            e(f"s_sub_u32 s{S_T1}, s{S_TS+2}, s{S_TS}")
        else:
            e(f"s_mov_b32 s{S_T1}, s{S_TS+2}")
        e(f"v_mov_b32 v{T0}, s{S_T1}")
        e(f"s_lshl_b32 s{S_T2}, s{S_KVH}, 3")
        e(f"s_add_u32 s{S_T2}, s{S_T2}, 4")
        e("s_mov_b64 exec, 1")
        e(f"buffer_store_dword v{T0}, v{VZERO}, {sr(R_DBG,4)}, s{S_T2} offen")
    g.lab("L_end")
    e("s_endpgm")

    body_t = "\n".join(g.L)
    nv = (NV + 7) // 8 * 8
    text = HEADER + f"; @launch grid=(256,1,1) block=(256,1,1) lds={LDS}\n"
    text += f""".amdgcn_target "amdgcn-amd-amdhsa--gfx950"
.text
.globl {NAME}_kernel
.p2align 8
.type {NAME}_kernel,@function
{NAME}_kernel:
{body_t}
.section .rodata,"a"
.p2align 6
.amdhsa_kernel {NAME}_kernel
  .amdhsa_next_free_vgpr {nv}
  .amdhsa_next_free_sgpr {NSGPR}
  .amdhsa_accum_offset {nv}
  .amdhsa_group_segment_fixed_size 0
  .amdhsa_kernarg_size 80
  .amdhsa_user_sgpr_count 2
  .amdhsa_user_sgpr_kernarg_segment_ptr 1
  .amdhsa_system_sgpr_workgroup_id_x 1
  .amdhsa_float_denorm_mode_32 3
.end_amdhsa_kernel
"""
    return text


if __name__ == "__main__":
    ap = argparse.ArgumentParser()
    ap.add_argument("-o", default=f"cdna_kernels/{NAME}.s")
    ap.add_argument("--pol", default="nt")
    ap.add_argument("--NO", type=int, default=15)
    ap.add_argument("--PHI", type=int, default=19)
    ap.add_argument("--stamp", action="store_true")
    ap.add_argument("--dbgtime", action="store_true")
    ap.add_argument("--lds", type=int, default=90000)
    ap.add_argument("--polv", default=None)
    ap.add_argument("--tail", action="store_true")
    ap.add_argument("--NFIRST", type=int, default=10)
    ap.add_argument("--wmap", type=int, default=0)
    ap.add_argument("--PHIB", type=int, default=0)
    a = ap.parse_args()
    open(a.o, "w").write(gen(pol=a.pol, NO=a.NO, PHI=a.PHI, stamp=a.stamp, lds_force=a.lds, dbgtime=a.dbgtime, polv=a.polv, tail=a.tail, NFIRST=a.NFIRST, wmap=a.wmap, PHIB=a.PHIB))
    print("wrote", a.o)
```

```python
import sys, math, argparse
from gen import G, vr, sr, NAME, HEADER, f32bits


def gen(pol="nt", NO=15, PHI=19, stamp=False, lds_force=90000, dbgtime=False, PHIV=0, polv=None, tail=False, NFIRST=10, wmap=0, PHIB=0, outpol="", lateM=True, tlbpf=0, tailpf=0, rot=0):
    g = G()
    e = g.e
    if polv is None: polv = pol
    pol = (" " + pol) if pol else ""
    polv = (" " + polv) if polv else ""
    C = (128.0 ** -0.5) * math.log2(math.e)
    NE = 32 - NO
    assert NO % 2 == 1 and NO >= 3

    S_Q, S_QK, S_QV, S_KS, S_KZ, S_VS, S_VZ, S_OUT, S_DBG, S_WS = 4, 6, 8, 10, 12, 14, 16, 18, 20, 22
    R_K, R_V, R_VS, R_VZ, R_Q, R_KS, R_KZ, R_OUT, R_WS, R_DBG = 24, 28, 32, 36, 40, 44, 48, 52, 56, 60
    S_STRM, S_WGI, S_KVH, S_WAVE, S_C, S_MASK = 64, 65, 66, 67, 68, 69
    S_BKV, S_BVS, S_PHI, S_OFF, S_OFFS, S_R, S_N, S_X2 = 70, 71, 72, 73, 74, 75, 76, 77
    S_T0, S_T1 = 78, 79
    S_ODD = 80
    S_QO = 82
    S_T2 = 83
    S_TS = 84
    NSGPR = 102
    tcount = [0]
    def tst():
        if tail:
            k = tcount[0]; tcount[0] += 1
            e(f"s_memtime s[100:101]")
            e("s_waitcnt lgkmcnt(0)")
            e(f"v_mov_b32 v{V_TSV+k}, s100")

    V_LANE, V_KO, V_VO, V_SO, V_WV, V_G, V_N, V_H = 1, 2, 3, 4, 5, 6, 7, 8
    V_LS = 9
    V_M, V_L = 10, 11
    V_T = 12
    V_QB = 20
    V_NC = 28
    V_D = 32
    V_S = 40
    V_PA = 44
    V_VZ2 = 46
    V_VSZ = 48
    V_PK = 56
    V_ACC = 72
    V_Z = 104
    V_BUF = 108
    V_TSV = V_BUF + 96
    NV = V_BUF + 96 + (16 if tail else 0)

    L_QS = 0
    L_KZ = 2048
    L_ML = 2304
    L_FLAG = 2368
    L_ST = 2432
    L_W = 2560
    L_O = 4608
    L_S = L_O + 4 * 6144
    LDS = max(L_S + 4 * NE * 1024, lds_force)
    assert LDS <= 160 * 1024 and L_S < 65536

    WS_E = 32 * 16384

    T0, T1, T2, T3, T4, T5, T6, T7 = range(V_T, V_T + 8)

    e("s_cmp_ge_u32 s2, 256")
    e("s_cbranch_scc1 L_end")
    e("s_load_dwordx16 s[4:19], s[0:1], 0")
    e("s_load_dwordx4 s[20:23], s[0:1], 64")
    if stamp or dbgtime:
        e(f"s_memrealtime {sr(S_TS,2)}")
    e(f"v_and_b32 v{V_LANE}, 63, v0")
    e(f"v_lshrrev_b32 v{V_WV}, 6, v0")
    e(f"v_lshrrev_b32 v{V_G}, 4, v{V_LANE}")
    e(f"v_and_b32 v{V_N}, 15, v{V_LANE}")
    e(f"v_and_b32 v{V_H}, 3, v{V_LANE}")
    e(f"v_readfirstlane_b32 s{S_WAVE}, v{V_WV}")
    e(f"v_lshlrev_b32 v{V_KO}, 13, v{V_WV}" if not rot else f"v_mov_b32 v{V_KO}, 0")
    e(f"v_lshrrev_b32 v{T0}, 2, v{V_N}")
    e(f"v_lshl_add_u32 v{V_KO}, v{T0}, 11, v{V_KO}")
    e(f"v_bfe_u32 v{T0}, v{V_N}, 1, 1")
    e(f"v_lshl_add_u32 v{V_KO}, v{T0}, 9, v{V_KO}")
    e(f"v_and_b32 v{T7}, 1, v{V_N}")
    e(f"v_lshl_add_u32 v{V_KO}, v{T7}, 6, v{V_KO}")
    e(f"v_lshl_add_u32 v{V_KO}, v{V_G}, 4, v{V_KO}")
    e(f"v_lshlrev_b32 v{T0}, 2, v0")
    e(f"v_lshlrev_b32 v{T1}, 2, v{V_LANE}")
    S_SPLIT = 99
    if wmap == 0:
        e(f"s_lshr_b32 s{S_STRM}, s2, 4")
        e(f"s_and_b32 s{S_WGI}, s2, 15")
        e(f"s_lshr_b32 s{S_X2}, s{S_WGI}, 1")
    else:
        e(f"s_bfe_u32 s{S_STRM}, s2, 0x20001")
        e(f"s_lshr_b32 s{S_T0}, s2, 6")
        if wmap in (1, 3):
            e(f"s_lshl_b32 s{S_STRM}, s{S_STRM}, 2")
            e(f"s_add_u32 s{S_STRM}, s{S_STRM}, s{S_T0}")
        else:
            e(f"s_lshl_b32 s{S_T0}, s{S_T0}, 2")
            e(f"s_add_u32 s{S_STRM}, s{S_STRM}, s{S_T0}")
        e(f"s_bfe_u32 s{S_X2}, s2, 0x30003")
        e(f"s_and_b32 s{S_T0}, s2, 1")
        e(f"s_lshl_b32 s{S_WGI}, s{S_T0}, 3")
        e(f"s_add_u32 s{S_WGI}, s{S_WGI}, s{S_X2}")
    e(f"s_lshr_b32 s{S_KVH}, s{S_STRM}, 1")
    e(f"s_and_b32 s{S_SPLIT}, s{S_STRM}, 1")
    e(f"s_lshl_b32 s{S_SPLIT}, s{S_SPLIT}, 4")
    e(f"s_add_u32 s{S_SPLIT}, s{S_SPLIT}, s{S_WGI}")
    e(f"s_lshl_b32 s{S_BKV}, s{S_STRM}, 23")
    e(f"s_lshl_b32 s{S_BVS}, s{S_STRM}, 15")
    if wmap == 3:
        e(f"s_mul_i32 s{S_PHI}, s{S_KVH}, {PHI}")
        e(f"s_add_u32 s{S_X2}, s{S_X2}, s{S_PHI}")
        e(f"s_and_b32 s{S_T0}, s{S_STRM}, 1")
        e(f"s_mul_i32 s{S_T0}, s{S_T0}, {PHIB}")
        e(f"s_add_u32 s{S_X2}, s{S_X2}, s{S_T0}")
        e(f"s_and_b32 s{S_T0}, s2, 1")
        e(f"s_mul_i32 s{S_T0}, s{S_T0}, {NE*8}")
        e(f"s_add_u32 s{S_X2}, s{S_X2}, s{S_T0}")
    else:
        e(f"s_mul_i32 s{S_PHI}, s{S_STRM}, {PHI}")
        e(f"s_add_u32 s{S_X2}, s{S_X2}, {NO*8}")
        e(f"s_add_u32 s{S_X2}, s{S_X2}, s{S_PHI}")
        e(f"s_add_u32 s{S_PHI}, s{S_PHI}, s{S_WGI}")
    e(f"s_and_b32 s{S_T0}, s2, 1")
    e(f"s_cselect_b32 s{S_N}, {NO}, {NE}")
    e(f"s_lshl_b32 s{S_QO}, s{S_KVH}, 10")
    e(f"s_lshl_b32 s{S_T2}, s{S_STRM}, 8")

    def offsets(withvs):
        if wmap == 3:
            e(f"s_lshl_b32 s{S_T0}, s{S_R}, 3")
            e(f"s_add_u32 s{S_T0}, s{S_T0}, s{S_X2}")
        else:
            e(f"s_lshl_b32 s{S_T0}, s{S_R}, 4")
            e(f"s_add_u32 s{S_T0}, s{S_T0}, s{S_PHI}")
            e(f"s_lshl_b32 s{S_T1}, s{S_R}, 3")
            e(f"s_add_u32 s{S_T1}, s{S_T1}, s{S_X2}")
            e(f"s_cmp_lt_u32 s{S_R}, {NO}")
            e(f"s_cselect_b32 s{S_T0}, s{S_T0}, s{S_T1}")
        e(f"s_and_b32 s{S_T0}, s{S_T0}, 255")
        if rot:
            if rot == 1:
                e(f"s_add_u32 s{S_T1}, s{S_R}, s{S_WAVE}")
            elif rot == 2:
                e(f"s_lshr_b32 s{S_T1}, s{S_R}, 1")
                e(f"s_add_u32 s{S_T1}, s{S_T1}, s{S_WAVE}")
            elif rot == 3:
                e(f"s_lshl_b32 s{S_T1}, s{S_R}, 1")
                e(f"s_add_u32 s{S_T1}, s{S_T1}, s{S_WAVE}")
            e(f"s_and_b32 s{S_T1}, s{S_T1}, 3")
            e(f"s_lshl_b32 s{S_T0}, s{S_T0}, 2")
            e(f"s_add_u32 s{S_T0}, s{S_T0}, s{S_T1}")
            e(f"s_lshl_b32 s{S_OFF}, s{S_T0}, 13")
            e(f"s_add_u32 s{S_OFF}, s{S_OFF}, s{S_BKV}")
            if withvs:
                e(f"s_lshl_b32 s{S_OFFS}, s{S_T0}, 5")
                e(f"s_add_u32 s{S_OFFS}, s{S_OFFS}, s{S_BVS}")
        else:
            e(f"s_lshl_b32 s{S_OFF}, s{S_T0}, 15")
            e(f"s_add_u32 s{S_OFF}, s{S_OFF}, s{S_BKV}")
            if withvs:
                e(f"s_lshl_b32 s{S_OFFS}, s{S_T0}, 7")
                e(f"s_add_u32 s{S_OFFS}, s{S_OFFS}, s{S_BVS}")
        e(f"s_add_u32 s{S_R}, s{S_R}, 1")

    e(f"s_mov_b32 s{S_R}, 0")
    offsets(False)
    for r, n in ((R_K, 1 << 27), (R_Q, 8192), (R_KS, 4096), (R_KZ, 4096)):
        e(f"s_mov_b32 s{r+2}, 0x{n:x}")
        e(f"s_mov_b32 s{r+3}, 0x00020000")
    e("s_waitcnt lgkmcnt(0)")
    for r, p in ((R_K, S_QK), (R_Q, S_Q), (R_KS, S_KS), (R_KZ, S_KZ)):
        e(f"s_mov_b32 s{r}, s{p}")
        e(f"s_mov_b32 s{r+1}, s{p+1}")

    def ldK(buf, k):
        a, c = k >> 2, k & 3
        return g.vm(f"buffer_load_dwordx4 {vr(V_BUF+32*buf+4*k,4)}, v{V_KO}, {sr(R_K,4)}, s{S_OFF} offen offset:{a*1024+c*128}{pol}")

    def ldV(buf, k):
        hv, i = k >> 2, k & 3
        return g.vm(f"buffer_load_dwordx4 {vr(V_BUF+32*buf+4*k,4)}, v{V_VO}, {sr(R_V,4)}, s{S_OFF} offen offset:{i*512+hv*256}{polv}")

    def ldVSZ(buf):
        g.vm(f"buffer_load_dwordx2 {vr(V_VSZ+4*buf,2)}, v{V_SO}, {sr(R_VS,4)}, s{S_OFFS} offen")
        return g.vm(f"buffer_load_dwordx2 {vr(V_VSZ+4*buf+2,2)}, v{V_SO}, {sr(R_VZ,4)}, s{S_OFFS} offen")

    g.vm(f"buffer_load_dword v{T2}, v{T0}, {sr(R_Q,4)}, s{S_QO} offen")
    g.vm(f"buffer_load_dword v{T3}, v{T1}, {sr(R_KS,4)}, s{S_T2} offen")
    i_kz = g.vm(f"buffer_load_dword v{T4}, v{T1}, {sr(R_KZ,4)}, s{S_T2} offen")
    for k in range(8):
        ldK(0, k)
    offsets(False)
    for k in range(8):
        ldK(1, k)

    for r, n in ((R_V, 1 << 27), (R_VS, 1 << 19), (R_VZ, 1 << 19), (R_OUT, 8192), (R_WS, 1 << 29), (R_DBG, 256)):
        e(f"s_mov_b32 s{r+2}, 0x{n:x}")
        e(f"s_mov_b32 s{r+3}, 0x00020000")
    for r, p in ((R_V, S_QV), (R_VS, S_VS), (R_VZ, S_VZ), (R_OUT, S_OUT), (R_WS, S_WS), (R_DBG, S_DBG)):
        e(f"s_mov_b32 s{r}, s{p}")
        e(f"s_mov_b32 s{r+1}, s{p+1}")
    if tlbpf:
        e(f"v_lshlrev_b32 v{V_S}, 21, v{V_LANE}")
        if tlbpf == 2:
            e(f"s_cmp_lg_u32 s{S_WAVE}, 3")
            e("s_cbranch_scc1 L_nopf")
        e("s_mov_b64 exec, 0xf")
        e(f"buffer_load_dword v{V_BUF+64}, v{V_S}, {sr(R_K,4)}, s{S_BKV} offen nt")
        e(f"buffer_load_dword v{V_BUF+65}, v{V_S}, {sr(R_V,4)}, s{S_BKV} offen nt")
        e("s_mov_b64 exec, -1")
        if tlbpf == 2:
            g.lab("L_nopf")
    e(f"s_mov_b32 s{S_C}, 0x{f32bits(C):08x}")
    e(f"s_mov_b32 s{S_MASK}, 0xffff0000")
    e(f"v_lshlrev_b32 v{V_VO}, 13, v{V_WV}" if not rot else f"v_mov_b32 v{V_VO}, 0")
    e(f"v_lshl_add_u32 v{V_VO}, v{V_G}, 11, v{V_VO}")
    e(f"v_lshl_add_u32 v{V_VO}, v{V_N}, 4, v{V_VO}")
    e(f"v_lshlrev_b32 v{V_SO}, 5, v{V_WV}" if not rot else f"v_mov_b32 v{V_SO}, 0")
    e(f"v_lshl_add_u32 v{V_SO}, v{V_G}, 3, v{V_SO}")
    e(f"v_and_b32 v{T5}, 8, v{V_LANE}")
    e(f"v_cmp_ne_u32 {sr(S_ODD,2)}, 0, v{T5}")
    e(f"v_and_b32 v{T6}, 4, v{V_LANE}")
    e(f"v_mov_b32 v{V_M}, 0xff7fffff")
    e(f"v_mov_b32 v{V_L}, 0")
    for x in range(36):
        e(f"v_mov_b32 v{V_ACC+x}, 0")
    e(f"v_mul_u32_u24 v{V_LS}, {NE*1024}, v{V_WV}")
    e(f"v_lshl_add_u32 v{V_LS}, v{V_LANE}, 4, v{V_LS}")
    e(f"v_lshlrev_b32 v{T5}, 7, v{T5}")
    e(f"v_lshl_add_u32 v{T5}, v{V_H}, 8, v{T5}")
    e(f"v_lshl_add_u32 v{T5}, v{T6}, 3, v{T5}")
    e(f"v_lshl_add_u32 v{T5}, v{V_G}, 3, v{T5}")
    e(f"v_lshlrev_b32 v{T7}, 5, v{T7}")
    e(f"v_lshl_add_u32 v{T7}, v{V_G}, 3, v{T7}")
    e(f"s_mov_b32 s{S_T0}, 0x07060302")
    g.wait_vm(i_kz)
    A0, A1, B0, B1 = V_D, V_D + 1, V_D + 2, V_D + 3
    e(f"v_lshlrev_b32 v{A0}, 16, v{T2}")
    e(f"v_and_b32 v{A1}, s{S_MASK}, v{T2}")
    e(f"v_lshlrev_b32 v{B0}, 16, v{T3}")
    e(f"v_and_b32 v{B1}, s{S_MASK}, v{T3}")
    e(f"v_mul_f32 v{A0}, v{A0}, v{B0}")
    e(f"v_mul_f32 v{A1}, v{A1}, v{B1}")
    e(f"v_and_b32 v{B0}, s{S_MASK}, v{A0}")
    e(f"v_and_b32 v{B1}, s{S_MASK}, v{A1}")
    e(f"v_sub_f32 v{B0}, v{A0}, v{B0}")
    e(f"v_sub_f32 v{B1}, v{A1}, v{B1}")
    e(f"v_perm_b32 v{A0}, v{A1}, v{A0}, s{S_T0}")
    e(f"v_perm_b32 v{B0}, v{B1}, v{B0}, s{S_T0}")
    e(f"ds_write_b32 v{T0}, v{A0} offset:{L_QS}")
    e(f"ds_write_b32 v{T0}, v{B0} offset:{L_QS+1024}")
    e(f"ds_write_b32 v{T1}, v{T4} offset:{L_KZ}")
    e("s_waitcnt lgkmcnt(0)")
    e("s_barrier")
    for c in range(4):
        e(f"ds_read_b64 {vr(V_QB+2*c,2)}, v{T5} offset:{L_QS+64*c}")
    for c in range(4):
        e(f"ds_read_b64 {vr(V_PK+2*c,2)}, v{T7} offset:{L_KZ+64*c}")
    e("s_waitcnt lgkmcnt(0)")
    for ee in range(2):
        e(f"v_mfma_f32_16x16x32_bf16 {vr(V_NC,4)}, {vr(V_PK+4*ee,4)}, {vr(V_QB+4*ee,4)}, {'0' if ee == 0 else vr(V_NC,4)}")
    g.nop(10)
    for r in range(4):
        e(f"v_xor_b32 v{V_NC+r}, 0x80000000, v{V_NC+r}")

    NOPS = {"K": 8, "V": 10, None: 0}

    def issue_pair(buf, nxt, k0):
        if nxt == "K":
            ldK(buf, k0)
            ldK(buf, k0 + 1)
        elif nxt == "V":
            ldV(buf, k0)
            ldV(buf, k0 + 1)

    def bodyK(buf, other, nxt):
        g.issued = 8 + NOPS[other]
        g.known_done = 0
        offsets(nxt == "V")
        if nxt == "V":
            ldVSZ(buf)
        B = V_BUF + 32 * buf
        for p in range(4):
            a, ee = p >> 1, p & 1
            k0, k1 = 2 * p, 2 * p + 1
            b0, b1 = B + 4 * k0, B + 4 * k1
            pk = V_PK + 4 * (p & 1)
            g.wait_vm(k0)
            for k in range(4):
                e(f"v_cvt_f32_i32 v{b0+k}, v{b0+k}")
            g.wait_vm(k1)
            for k in range(4):
                e(f"v_cvt_f32_i32 v{b1+k}, v{b1+k}")
            e(f"v_cvt_pk_bf16_f32 v{pk}, v{b0}, v{b0+1}")
            e(f"v_cvt_pk_bf16_f32 v{pk+1}, v{b0+2}, v{b0+3}")
            e(f"v_cvt_pk_bf16_f32 v{pk+2}, v{b1}, v{b1+1}")
            e(f"v_cvt_pk_bf16_f32 v{pk+3}, v{b1+2}, v{b1+3}")
            issue_pair(buf, nxt, k0)
            e(f"v_mfma_f32_16x16x32_bf16 {vr(V_D+4*a,4)}, {vr(pk,4)}, {vr(V_QB+4*ee,4)}, {vr(V_NC,4) if ee == 0 else vr(V_D+4*a,4)}")
        e(f"v_add_f32_dpp v{V_S}, v{V_D+1}, v{V_D} row_ror:4 row_mask:0xf bank_mask:0xf")
        e(f"v_add_f32_dpp v{V_S+1}, v{V_D+3}, v{V_D+2} row_ror:4 row_mask:0xf bank_mask:0xf")
        g.nop(1)
        e(f"v_add_f32_dpp v{V_S}, v{V_S}, v{V_S} row_ror:8 row_mask:0xf bank_mask:0xf")
        e(f"v_add_f32_dpp v{V_S+1}, v{V_S+1}, v{V_S+1} row_ror:8 row_mask:0xf bank_mask:0xf")
        e(f"v_max3_f32 v{V_M}, v{V_M}, v{V_S}, v{V_S+1}")
        g.nop(3)
        e(f"v_add_f32_dpp v{V_S+2}, v{V_D+5}, v{V_D+4} row_ror:4 row_mask:0xf bank_mask:0xf")
        e(f"v_add_f32_dpp v{V_S+3}, v{V_D+7}, v{V_D+6} row_ror:4 row_mask:0xf bank_mask:0xf")
        g.nop(1)
        e(f"v_add_f32_dpp v{V_S+2}, v{V_S+2}, v{V_S+2} row_ror:8 row_mask:0xf bank_mask:0xf")
        e(f"v_add_f32_dpp v{V_S+3}, v{V_S+3}, v{V_S+3} row_ror:8 row_mask:0xf bank_mask:0xf")
        e(f"ds_write_b128 v{V_LS}, {vr(V_S,4)} offset:{L_S}")
        e(f"v_max3_f32 v{V_M}, v{V_M}, v{V_S+2}, v{V_S+3}")
        e(f"v_add_u32 v{V_LS}, 1024, v{V_LS}")

    def bodyV(buf, other, nxt, last=None):
        g.issued = 10 + NOPS[other]
        g.known_done = 0
        B = V_BUF + 32 * buf
        VS, VZ = V_VSZ + 4 * buf, V_VSZ + 4 * buf + 2
        e(f"ds_read_b128 {vr(V_S,4)}, v{V_LS} offset:{L_S}")
        if nxt:
            offsets(True)
        e(f"v_add_u32 v{V_LS}, 1024, v{V_LS}")
        X0, X1, X2, X3 = T4, T5, T6, T7
        g.wait_vm(1)
        e(f"v_lshlrev_b32 v{X0}, 16, v{VS}")
        e(f"v_and_b32 v{X1}, s{S_MASK}, v{VS}")
        e(f"v_lshlrev_b32 v{X2}, 16, v{VS+1}")
        e(f"v_and_b32 v{X3}, s{S_MASK}, v{VS+1}")
        e(f"v_mov_b32 v{V_VZ2}, v{VZ}")
        e(f"v_mov_b32 v{V_VZ2+1}, v{VZ+1}")
        if nxt:
            ldVSZ(buf)
        e("s_waitcnt lgkmcnt(0)")
        for i in range(4):
            e(f"v_fma_f32 v{V_S+i}, v{V_S+i}, s{S_C}, -v{V_M}")
        for i in range(4):
            e(f"v_exp_f32 v{V_S+i}, v{V_S+i}")
        e(f"v_add_f32 v{T0}, v{V_S}, v{V_S+1}")
        e(f"v_mul_f32 v{X0}, v{X0}, v{V_S}")
        e(f"v_add_f32 v{T1}, v{V_S+2}, v{V_S+3}")
        e(f"v_mul_f32 v{X1}, v{X1}, v{V_S+1}")
        e(f"v_mul_f32 v{X2}, v{X2}, v{V_S+2}")
        e(f"v_mul_f32 v{X3}, v{X3}, v{V_S+3}")
        e(f"v_add_f32 v{V_L}, v{V_L}, v{T0}")
        for i, X in enumerate((X0, X1, X2, X3)):
            e(f"v_and_b32 v{V_S+i}, s{S_MASK}, v{X}")
        e(f"v_add_f32 v{V_L}, v{V_L}, v{T1}")
        for i, X in enumerate((X0, X1, X2, X3)):
            e(f"v_sub_f32 v{X}, v{X}, v{V_S+i}")
        for i, X in enumerate((X0, X1, X2, X3)):
            e(f"v_cndmask_b32 v{X}, v{V_S+i}, v{X}, {sr(S_ODD,2)}")
        e(f"v_cvt_pk_bf16_f32 v{V_PA}, v{X0}, v{X1}")
        e(f"v_cvt_pk_bf16_f32 v{V_PA+1}, v{X2}, v{X3}")
        g.nop(2)
        e(f"v_mfma_f32_16x16x16_bf16 {vr(V_Z,4)}, {vr(V_PA,2)}, {vr(V_VZ2,2)}, {vr(V_Z,4)}")
        if last:
            last("stats")
        for p in range(4):
            hv, q = p >> 1, p & 1
            k0, k1 = 2 * p, 2 * p + 1
            b0, b1 = B + 4 * k0, B + 4 * k1
            pk = V_PK + 8 * hv
            g.wait_vm(2 + k0)
            for k in range(4):
                e(f"v_cvt_f32_i32 v{b0+k}, v{b0+k}")
            g.wait_vm(2 + k1)
            for k in range(4):
                e(f"v_cvt_f32_i32 v{b1+k}, v{b1+k}")
            for j in range(4):
                e(f"v_cvt_pk_bf16_f32 v{pk+2*j+q}, v{b0+j}, v{b1+j}")
            issue_pair(buf, nxt, k0)
            if last and p == 2:
                last("half")
            if q == 1:
                if not nxt:
                    g.nop(1)
                for j in range(4):
                    acc = V_ACC + 4 * (hv * 4 + j)
                    e(f"v_mfma_f32_16x16x16_bf16 {vr(acc,4)}, {vr(V_PA,2)}, {vr(pk+2*j,2)}, {vr(acc,4)}")

    g.lab("L_k")
    bodyK(0, "K", "K")
    e(f"s_cmp_ge_u32 s{S_R}, s{S_N}")
    e("s_cbranch_scc1 L_kt")
    bodyK(1, "K", "K")
    e("s_branch L_k")
    g.lab("L_kt")
    e(f"s_mov_b32 s{S_R}, 0")
    bodyK(1, "K", "V")
    bodyK(0, "V", "V")
    if stamp:
        e(f"s_memrealtime {sr(S_TS+8,2)}")
    g.c("max exchange")
    S_REC, S_RECE, S_OWN, S_OWNE, S_CTR = 94, 95, 96, 97, 98
    e(f"v_mov_b32 v{T1}, v{V_M}")
    e(f"v_lshlrev_b32 v{T2}, 2, v{V_WV}")
    e(f"v_lshl_add_u32 v{T2}, v{V_H}, 4, v{T2}")
    e(f"v_permlane16_swap_b32 v{V_M}, v{T1}")
    e(f"v_max_f32 v{V_M}, v{V_M}, v{T1}")
    e(f"v_mov_b32 v{T1}, v{V_M}")
    e(f"v_lshlrev_b32 v{T3}, 4, v{V_H}")
    e(f"v_mul_u32_u24 v{V_LS}, {NE*1024}, v{V_WV}")
    e(f"v_permlane32_swap_b32 v{V_M}, v{T1}")
    e(f"v_max_f32 v{V_M}, v{V_M}, v{T1}")
    e(f"v_lshl_add_u32 v{V_LS}, v{V_LANE}, 4, v{V_LS}")
    e("s_mov_b64 exec, 0xf")
    e(f"ds_write_b32 v{T2}, v{V_M} offset:{L_ML}")
    e("s_mov_b64 exec, -1")
    VAW, VRD, VST, VSO2, VHB8, VE = V_QB, V_QB + 1, V_QB + 2, V_QB + 3, V_QB + 4, V_QB + 5
    VL16, VWW, VWR, VOUT, VZERO = V_QB + 6, V_QB + 7, V_NC, V_NC + 1, V_NC + 2
    e(f"v_lshrrev_b32 v{T0}, 5, v{V_LANE}")
    e(f"v_mul_u32_u24 v{VAW}, 6144, v{V_WV}")
    e(f"v_mul_u32_u24 v{T1}, 3072, v{T0}")
    e(f"v_add_u32 v{VAW}, v{VAW}, v{T1}")
    e(f"v_lshl_add_u32 v{VAW}, v{V_N}, 4, v{VAW}")
    e(f"v_bfe_u32 v{T4}, v{V_LANE}, 3, 2")
    e(f"v_and_b32 v{T5}, 7, v{V_LANE}")
    e(f"v_lshrrev_b32 v{T6}, 1, v{V_WV}")
    e(f"v_lshl_add_u32 v{T6}, v{T6}, 2, v{T4}")
    e(f"v_mul_u32_u24 v{VRD}, 384, v{T6}")
    e(f"v_add_u32 v{VRD}, v{VRD}, v{T1}")
    e(f"v_and_b32 v{T6}, 1, v{V_WV}")
    e(f"v_lshl_add_u32 v{VRD}, v{T6}, 7, v{VRD}")
    e(f"v_lshl_add_u32 v{VRD}, v{T5}, 4, v{VRD}")
    e(f"v_lshrrev_b32 v{T6}, 1, v{V_H}")
    e(f"v_lshlrev_b32 v{VE}, 4, v{T6}")
    e(f"v_and_b32 v{T6}, 1, v{V_H}")
    e(f"v_lshl_add_u32 v{VE}, v{T6}, 2, v{VE}")
    e(f"v_lshl_add_u32 v{VST}, v{V_WV}, 5, v{VE}")
    e(f"v_lshlrev_b32 v{VHB8}, 4, v{T0}")
    e(f"v_and_b32 v{T6}, 31, v{V_LANE}")
    e(f"v_lshlrev_b32 v{VSO2}, 4, v{T6}")
    e(f"v_lshl_add_u32 v{VSO2}, v{T0}, 3, v{VSO2}")
    e(f"v_lshlrev_b32 v{VL16}, 4, v{V_LANE}")
    e(f"v_lshl_add_u32 v{VWW}, v{V_WV}, 9, v{VSO2}")
    e(f"v_lshl_add_u32 v{VWR}, v{V_WV}, 9, v{VHB8}")
    e(f"v_lshl_add_u32 v{VOUT}, v{T5}, 2, v{T4}")
    e(f"v_lshlrev_b32 v{VOUT}, 1, v{VOUT}")
    e(f"v_lshl_add_u32 v{VOUT}, v{T0}, 9, v{VOUT}")
    e(f"v_lshl_add_u32 v{V_NC+3}, v{T6}, 5, v{VHB8}")
    e(f"v_mov_b32 v{VZERO}, 0")
    VEL = V_NC + 3
    e(f"s_lshl_b32 s{S_T0}, s{S_KVH}, 2")
    e(f"s_add_u32 s{S_T0}, s{S_T0}, s{S_WAVE}")
    e(f"s_lshl_b32 s{S_REC}, s{S_T0}, 14")
    e(f"s_mov_b32 s{S_T1}, s{S_SPLIT}")
    e(f"s_lshl_b32 s{S_OWN}, s{S_T1}, 9")
    e(f"s_add_u32 s{S_OWN}, s{S_OWN}, s{S_REC}")
    e(f"s_lshl_b32 s{S_RECE}, s{S_KVH}, 10")
    e(f"s_add_u32 s{S_RECE}, s{S_RECE}, {WS_E}")
    e(f"s_lshl_b32 s{S_OWNE}, s{S_T1}, 5")
    e(f"s_add_u32 s{S_OWNE}, s{S_OWNE}, s{S_RECE}")
    e(f"s_lshl_b32 s{S_CTR}, s{S_KVH}, 5")
    e(f"s_lshl_b32 s{S_T0}, s{S_WAVE}, 6")
    e(f"s_add_u32 s{S_QO}, s{S_QO}, s{S_T0}")
    e("s_waitcnt lgkmcnt(0)")
    e("s_barrier")
    e(f"ds_read_b128 {vr(V_D,4)}, v{T3} offset:{L_ML}")
    e("s_waitcnt lgkmcnt(0)")
    e(f"v_max3_f32 v{V_M}, v{V_M}, v{V_D}, v{V_D+1}")
    e(f"v_max3_f32 v{V_M}, v{V_M}, v{V_D+2}, v{V_D+3}")
    e(f"v_mul_f32 v{V_M}, s{S_C}, v{V_M}")
    e(f"s_cmp_lg_u32 s{S_WAVE}, 0")
    e("s_cbranch_scc1 L_v")
    e("s_mov_b64 exec, 0xf")
    if lateM:
        e(f"ds_write_b32 v{VE}, v{V_M} offset:{L_FLAG+16}")
    else:
        e(f"buffer_store_dword v{V_M}, v{VE}, {sr(R_WS,4)}, s{S_OWNE} offen sc1")
    e("s_mov_b64 exec, -1")

    g.lab("L_v")
    bodyV(1, "V", "V")
    e(f"s_cmp_ge_u32 s{S_R}, s{S_N}")
    e("s_cbranch_scc1 L_vt")
    bodyV(0, "V", "V")
    e("s_branch L_v")
    g.lab("L_vt")
    if tailpf:
        e("s_mov_b64 exec, 1")
        e(f"s_mov_b32 s{S_T0}, 0x1f0000")
        e(f"buffer_load_dword v{V_BUF+64}, v{VZERO}, {sr(R_WS,4)}, s{S_T0} offen")
        if tailpf & 2:
            e(f"buffer_load_dword v{V_BUF+65}, v{VZERO}, {sr(R_DBG,4)}, 0 offen offset:252")
        if tailpf & 4:
            e(f"buffer_load_dword v{V_BUF+66}, v{VZERO}, {sr(R_OUT,4)}, s{S_QO} offen")
        e("s_mov_b64 exec, -1")
    bodyV(0, "V", None)

    def last(what):
        if what == "stats":
            e(f"v_mov_b32 v{T1}, v{V_L}")
            g.nop(2)
            e(f"v_permlane16_swap_b32 v{V_L}, v{T1}")
            e(f"v_add_f32 v{V_L}, v{V_L}, v{T1}")
            e(f"v_mov_b32 v{T1}, v{V_L}")
            g.nop(2)
            e(f"v_permlane32_swap_b32 v{V_L}, v{T1}")
            e(f"v_add_f32 v{V_L}, v{V_L}, v{T1}")
            e(f"v_permlane32_swap_b32 v{V_Z}, v{V_Z+2}")
            e(f"v_permlane32_swap_b32 v{V_Z+1}, v{V_Z+3}")
            e(f"v_lshl_add_u32 v{T0}, v{V_WV}, 5, v{VHB8}")
            e(f"v_pk_add_f32 {vr(V_Z,2)}, {vr(V_Z,2)}, {vr(V_Z+2,2)}")
            e("s_mov_b64 exec, 0xf")
            e(f"ds_write_b32 v{VST}, v{V_L} offset:{L_ST}")
            e("s_mov_b32 exec_lo, 1")
            e("s_mov_b32 exec_hi, 1")
            e(f"ds_write_b64 v{T0}, {vr(V_Z,2)} offset:{L_ST+8}")
            e("s_mov_b64 exec, -1")
            if lateM:
                e(f"ds_read_b64 {vr(V_D,2)}, v{VHB8} offset:{L_FLAG+16}")
        else:
            e("s_mov_b32 exec_lo, 0xffff")
            e("s_mov_b32 exec_hi, 0xffff")
            for blk in range(4):
                e(f"ds_write_b128 v{VAW}, {vr(V_ACC+4*blk,4)} offset:{L_O+blk*384}")
            e("s_mov_b64 exec, -1")

    bodyV(1, None, None, last)

    g.c("WG combine")
    tst()
    if stamp:
        e(f"s_memrealtime {sr(S_TS+2,2)}")
    e("s_mov_b32 exec_lo, 0xffff")
    e("s_mov_b32 exec_hi, 0xffff")
    g.nop(4)
    for blk in range(4, 8):
        e(f"ds_write_b128 v{VAW}, {vr(V_ACC+4*blk,4)} offset:{L_O+blk*384}")
    e("s_mov_b64 exec, -1")
    e("s_waitcnt lgkmcnt(0)")
    e("s_barrier")
    tst()
    RB = V_BUF
    SB = V_BUF + 16
    for w in range(4):
        e(f"ds_read_b128 {vr(RB+4*w,4)}, v{VRD} offset:{L_O+w*6144}")
    for w in range(4):
        e(f"ds_read_b128 {vr(SB+4*w,4)}, v{VHB8} offset:{L_ST+w*32}")
    e("s_waitcnt lgkmcnt(6)")
    e(f"v_pk_add_f32 {vr(RB,2)}, {vr(RB,2)}, {vr(RB+4,2)}")
    e(f"v_pk_add_f32 {vr(RB+2,2)}, {vr(RB+2,2)}, {vr(RB+6,2)}")
    e("s_waitcnt lgkmcnt(4)")
    e(f"v_pk_add_f32 {vr(RB+8,2)}, {vr(RB+8,2)}, {vr(RB+12,2)}")
    e(f"v_pk_add_f32 {vr(RB+10,2)}, {vr(RB+10,2)}, {vr(RB+14,2)}")
    e(f"v_pk_add_f32 {vr(RB,2)}, {vr(RB,2)}, {vr(RB+8,2)}")
    e(f"v_pk_add_f32 {vr(RB+2,2)}, {vr(RB+2,2)}, {vr(RB+10,2)}")
    e("s_waitcnt lgkmcnt(0)")
    e(f"v_pk_add_f32 {vr(SB+2,2)}, {vr(SB+2,2)}, {vr(SB+6,2)}")
    e(f"v_pk_add_f32 {vr(SB+10,2)}, {vr(SB+10,2)}, {vr(SB+14,2)}")
    e(f"v_permlane32_swap_b32 v{RB}, v{RB+2}")
    e(f"v_permlane32_swap_b32 v{RB+1}, v{RB+3}")
    e(f"v_pk_add_f32 {vr(SB+2,2)}, {vr(SB+2,2)}, {vr(SB+10,2)}")
    e(f"v_pk_add_f32 {vr(RB,2)}, {vr(RB,2)}, {vr(RB+2,2)}")
    e(f"v_pk_add_f32 {vr(SB,2)}, {vr(SB,2)}, {vr(SB+4,2)}")
    e(f"v_pk_add_f32 {vr(RB,2)}, {vr(RB,2)}, {vr(SB+2,2)} neg_lo:[0,1] neg_hi:[0,1]")
    g.issued = 0
    g.known_done = 0
    g.vm(f"buffer_store_dwordx2 {vr(RB,2)}, v{VSO2}, {sr(R_WS,4)}, s{S_OWN} offen sc1")
    e(f"s_cmp_lg_u32 s{S_WAVE}, 0")
    e("s_cbranch_scc1 L_noL")
    e(f"v_pk_add_f32 {vr(SB+8,2)}, {vr(SB+8,2)}, {vr(SB+12,2)}")
    e("s_mov_b32 exec_lo, 1")
    e("s_mov_b32 exec_hi, 1")
    if lateM:
        e(f"v_pk_add_f32 {vr(V_D+2,2)}, {vr(SB,2)}, {vr(SB+8,2)}")
        g.vm(f"buffer_store_dwordx4 {vr(V_D,4)}, v{VHB8}, {sr(R_WS,4)}, s{S_OWNE} offen sc1")
    else:
        e(f"v_pk_add_f32 {vr(SB,2)}, {vr(SB,2)}, {vr(SB+8,2)}")
        g.vm(f"buffer_store_dwordx2 {vr(SB,2)}, v{VHB8}, {sr(R_WS,4)}, s{S_OWNE} offen offset:8 sc1")
    e("s_mov_b64 exec, 1")
    e(f"v_mov_b32 v{T1}, 1")
    g.lab("L_noL")
    tst()
    e("s_waitcnt vmcnt(0)")
    g.known_done = g.issued
    tst()
    e("s_barrier")
    tst()
    e(f"s_cmp_lg_u32 s{S_WAVE}, 0")
    e("s_cbranch_scc1 L_skip_atomic")
    g.vm(f"buffer_atomic_add v{T1}, v{VZERO}, {sr(R_DBG,4)}, s{S_CTR} offen sc0")
    e("s_waitcnt vmcnt(0)")
    g.known_done = g.issued
    e(f"ds_write_b32 v{VZERO}, v{T1} offset:{L_FLAG}")
    e("s_mov_b64 exec, -1")
    e("s_waitcnt lgkmcnt(0)")
    g.lab("L_skip_atomic")
    tst()
    e("s_barrier")
    e(f"ds_read_b32 v{T1}, v{VZERO} offset:{L_FLAG}")
    e("s_waitcnt lgkmcnt(0)")
    e(f"v_readfirstlane_b32 s{S_T0}, v{T1}")
    g.nop(1)
    X = V_BUF + 32
    if stamp:
        e(f"s_memrealtime {sr(S_TS+4,2)}")
        e("s_waitcnt lgkmcnt(0)")
        e(f"s_lshl_b32 s{S_T1}, s2, 2")
        e(f"s_add_u32 s{S_T1}, s{S_T1}, s{S_WAVE}")
        e(f"s_lshl_b32 s{S_T1}, s{S_T1}, 5")
        e(f"s_add_u32 s{S_T1}, s{S_T1}, 0x100000")
        e(f"s_getreg_b32 s{S_TS+6}, hwreg(HW_REG_XCC_ID)")
        e(f"s_getreg_b32 s{S_TS+7}, hwreg(HW_REG_HW_ID)")
        e(f"s_and_b32 s{S_TS+6}, s{S_TS+6}, 15")
        e(f"s_lshl_b32 s{S_TS+7}, s{S_TS+7}, 4")
        e(f"s_or_b32 s{S_TS+6}, s{S_TS+6}, s{S_TS+7}")
        XS = V_ACC + 16
        for k in range(4):
            e(f"v_mov_b32 v{XS+k}, s{S_TS+2*k}")
        e(f"v_mov_b32 v{XS+4}, s{S_R}")
        e(f"v_mov_b32 v{XS+5}, s{S_TS+8}")
        e(f"v_mov_b32 v{XS+6}, s{S_TS}")
        e(f"v_mov_b32 v{XS+7}, s{S_TS}")
        e("s_mov_b64 exec, 1")
        g.vm(f"buffer_store_dwordx4 {vr(XS,4)}, v{VZERO}, {sr(R_WS,4)}, s{S_T1} offen")
        g.vm(f"buffer_store_dwordx4 {vr(XS+4,4)}, v{VZERO}, {sr(R_WS,4)}, s{S_T1} offen offset:16")
        e("s_mov_b64 exec, -1")
    e(f"s_cmp_lg_u32 s{S_T0}, 31")
    e("s_cbranch_scc1 L_end")

    g.c("final combine")
    tst()
    OB = V_BUF
    WB = V_BUF + 64
    EB = V_ACC
    MX = V_ACC + 4
    M2 = V_ACC + 6
    N0 = V_ACC + 8
    N1 = V_ACC + 12
    ie = g.vm(f"buffer_load_dwordx4 {vr(EB,4)}, v{VEL}, {sr(R_WS,4)}, s{S_RECE} offen sc1")
    io = []

    def ldO(k):
        if k and k % 4 == 0:
            e(f"s_add_u32 s{S_REC}, s{S_REC}, 4096")
        io.append(g.vm(f"buffer_load_dwordx4 {vr(OB+4*k,4)}, v{VL16}, {sr(R_WS,4)}, s{S_REC} offen offset:{(k&3)*1024} sc1"))

    def reduce32(op, a, src=None):
        first = True
        for ctl in ("quad_perm:[1,0,3,2]", "quad_perm:[2,3,0,1]", "row_ror:4", "row_ror:8"):
            for r in range(2):
                sreg = (src + r) if (first and src is not None) else (a + r)
                e(f"v_{op}_f32_dpp v{a+r}, v{sreg}, v{sreg} {ctl} row_mask:0xf bank_mask:0xf")
            g.nop(1)
            first = False
        e(f"v_mov_b32 v{M2}, v{a}")
        e(f"v_mov_b32 v{M2+1}, v{a+1}")
        g.nop(1)
        e(f"v_permlane16_swap_b32 v{a}, v{M2}")
        e(f"v_permlane16_swap_b32 v{a+1}, v{M2+1}")
        e(f"v_{op}_f32 v{a}, v{a}, v{M2}")
        e(f"v_{op}_f32 v{a+1}, v{a+1}, v{M2+1}")

    for k in range(NFIRST):
        ldO(k)
    tst()
    g.wait_vm(ie)
    tst()
    reduce32("max", MX, EB)
    e(f"v_sub_f32 v{EB}, v{EB}, v{MX}")
    e(f"v_sub_f32 v{EB+1}, v{EB+1}, v{MX+1}")
    e(f"v_exp_f32 v{EB}, v{EB}")
    e(f"v_exp_f32 v{EB+1}, v{EB+1}")
    g.nop(1)
    e(f"ds_write_b64 v{VWW}, {vr(EB,2)} offset:{L_W}")
    e(f"v_pk_mul_f32 {vr(EB+2,2)}, {vr(EB+2,2)}, {vr(EB,2)}")
    for k in range(8):
        e(f"ds_read_b128 {vr(WB+4*k,4)}, v{VWR} offset:{L_W+k*32}")
    for k in range(NFIRST, 16):
        ldO(k)
    tst()
    reduce32("add", EB + 2)
    e(f"v_rcp_f32 v{EB+2}, v{EB+2}")
    e(f"v_rcp_f32 v{EB+3}, v{EB+3}")
    e("s_waitcnt lgkmcnt(0)")
    for k in range(16):
        g.wait_vm(io[k])
        if k == 8:
            e("s_waitcnt lgkmcnt(0)")
        N = N0 if k % 2 == 0 else N1
        Wk = WB + 4 * (k & 7)
        for hh in (0, 2):
            if k < 2:
                e(f"v_pk_mul_f32 {vr(N+hh,2)}, {vr(Wk+hh,2)}, {vr(OB+4*k+hh,2)}")
            else:
                e(f"v_pk_fma_f32 {vr(N+hh,2)}, {vr(Wk+hh,2)}, {vr(OB+4*k+hh,2)}, {vr(N+hh,2)}")
        if k < 8:
            e(f"ds_read_b128 {vr(Wk,4)}, v{VWR} offset:{L_W+(k+8)*32}")
    tst()
    e(f"v_pk_add_f32 {vr(N0,2)}, {vr(N0,2)}, {vr(N1,2)}")
    e(f"v_pk_add_f32 {vr(N0+2,2)}, {vr(N0+2,2)}, {vr(N1+2,2)}")
    g.nop(2)
    e(f"v_permlane32_swap_b32 v{N0}, v{N0+2}")
    e(f"v_permlane32_swap_b32 v{N0+1}, v{N0+3}")
    e(f"v_pk_add_f32 {vr(N0,2)}, {vr(N0,2)}, {vr(N0+2,2)}")
    e(f"v_pk_mul_f32 {vr(N0,2)}, {vr(N0,2)}, {vr(EB+2,2)}")
    e(f"v_cvt_pk_bf16_f32 v{N0}, v{N0}, v{N0+1}")
    g.vm(f"buffer_store_short v{N0}, v{VOUT}, {sr(R_OUT,4)}, s{S_QO} offen{outpol}")
    g.vm(f"buffer_store_short_d16_hi v{N0}, v{VOUT}, {sr(R_OUT,4)}, s{S_QO} offen offset:256{outpol}")
    if tail:
        tst()
        e("s_waitcnt vmcnt(0)")
        tst()
        e(f"s_lshl_b32 s{S_T1}, s{S_KVH}, 2")
        e(f"s_add_u32 s{S_T1}, s{S_T1}, s{S_WAVE}")
        e(f"s_lshl_b32 s{S_T1}, s{S_T1}, 6")
        e(f"s_add_u32 s{S_T1}, s{S_T1}, 0x300000")
        for k in range(16):
            e(f"v_mov_b32 v{V_BUF+k}, v{V_TSV+min(k, tcount[0]-1)}")
        e("s_mov_b64 exec, 1")
        for k in range(4):
            e(f"buffer_store_dwordx4 {vr(V_BUF+4*k,4)}, v{VZERO}, {sr(R_WS,4)}, s{S_T1} offen offset:{16*k}")
    if dbgtime or stamp:
        e(f"s_memrealtime {sr(S_TS+2,2)}")
        e("s_waitcnt lgkmcnt(0)")
        if dbgtime:
            e(f"s_sub_u32 s{S_T1}, s{S_TS+2}, s{S_TS}")
        else:
            e(f"s_mov_b32 s{S_T1}, s{S_TS+2}")
        e(f"v_mov_b32 v{T0}, s{S_T1}")
        e(f"s_lshl_b32 s{S_T2}, s{S_KVH}, 3")
        e(f"s_add_u32 s{S_T2}, s{S_T2}, 4")
        e("s_mov_b64 exec, 1")
        e(f"buffer_store_dword v{T0}, v{VZERO}, {sr(R_DBG,4)}, s{S_T2} offen")
    g.lab("L_end")
    e("s_endpgm")

    body_t = "\n".join(g.L)
    nv = (NV + 7) // 8 * 8
    text = HEADER + f"; @launch grid=(256,1,1) block=(256,1,1) lds={LDS}\n"
    text += f""".amdgcn_target "amdgcn-amd-amdhsa--gfx950"
.text
.globl {NAME}_kernel
.p2align 8
.type {NAME}_kernel,@function
{NAME}_kernel:
{body_t}
.section .rodata,"a"
.p2align 6
.amdhsa_kernel {NAME}_kernel
  .amdhsa_next_free_vgpr {nv}
  .amdhsa_next_free_sgpr {NSGPR}
  .amdhsa_accum_offset {nv}
  .amdhsa_group_segment_fixed_size 0
  .amdhsa_kernarg_size 80
  .amdhsa_user_sgpr_count 2
  .amdhsa_user_sgpr_kernarg_segment_ptr 1
  .amdhsa_system_sgpr_workgroup_id_x 1
  .amdhsa_float_denorm_mode_32 3
.end_amdhsa_kernel
"""
    return text


if __name__ == "__main__":
    ap = argparse.ArgumentParser()
    ap.add_argument("-o", default=f"cdna_kernels/{NAME}.s")
    ap.add_argument("--pol", default="nt")
    ap.add_argument("--NO", type=int, default=15)
    ap.add_argument("--PHI", type=int, default=16)
    ap.add_argument("--stamp", action="store_true")
    ap.add_argument("--dbgtime", action="store_true")
    ap.add_argument("--lds", type=int, default=90000)
    ap.add_argument("--polv", default=None)
    ap.add_argument("--tail", action="store_true")
    ap.add_argument("--NFIRST", type=int, default=10)
    ap.add_argument("--wmap", type=int, default=3)
    ap.add_argument("--PHIB", type=int, default=64)
    ap.add_argument("--outpol", default="")
    ap.add_argument("--earlyM", action="store_true")
    ap.add_argument("--tlbpf", type=int, default=0)
    ap.add_argument("--tailpf", type=int, default=0)
    ap.add_argument("--rot", type=int, default=0)
    a = ap.parse_args()
    open(a.o, "w").write(gen(pol=a.pol, NO=a.NO, PHI=a.PHI, stamp=a.stamp, lds_force=a.lds, dbgtime=a.dbgtime, polv=a.polv, tail=a.tail, NFIRST=a.NFIRST, wmap=a.wmap, PHIB=a.PHIB, outpol=(' ' + a.outpol if a.outpol else ''), lateM=not a.earlyM, tlbpf=a.tlbpf, tailpf=a.tailpf, rot=a.rot))
    print("wrote", a.o)
```

```python
import sys, math, argparse
from gen import G, vr, sr, NAME, HEADER, f32bits

DOC = """; Algorithm (all reformulations are exact up to fp32 rounding):
"""


def gen(pol="nt", NO=15, PHI=16, PHIB=64, stamp=False, dbgtime=False, tail=False, NFIRST=10, lay=0, vspol="nt",
        vsat="kt", korder=0):
    g = G()
    e = g.e
    pol = (" " + pol) if pol else ""
    vspol = (" " + vspol) if vspol else ""
    C = (128.0 ** -0.5) * math.log2(math.e)
    NE = 32 - NO
    assert NO % 2 == 1 and NO >= 3

    S_Q, S_QK, S_QV, S_KS, S_KZ, S_VS, S_VZ, S_OUT, S_DBG, S_WS = 4, 6, 8, 10, 12, 14, 16, 18, 20, 22
    R_K, R_V, R_VS, R_VZ, R_Q, R_KS, R_KZ, R_OUT, R_WS, R_DBG = 24, 28, 32, 36, 40, 44, 48, 52, 56, 60
    S_STRM, S_SPLIT, S_KVH, S_WAVE, S_C, S_MASK = 64, 65, 66, 67, 68, 69
    S_BKV, S_BVS, S_OFF, S_R, S_N, S_X = 70, 71, 73, 75, 76, 77
    S_T0, S_T1 = 78, 79
    S_ODD = 80
    S_QO = 82
    S_T2 = 83
    S_TS = 84
    S_REC, S_RECE, S_OWN, S_OWNE, S_CTR = 94, 95, 96, 97, 98
    NSGPR = 102

    V_LANE, V_KO, V_VO, V_SA, V_WV, V_G, V_N, V_H = 1, 2, 3, 4, 5, 6, 7, 8
    V_LS = 9
    V_M, V_L = 10, 11
    V_T = 12
    V_QB = 20
    V_NC = 28
    V_D = 32
    V_S = 40
    V_PA = 44
    V_KO2, V_VO2 = 46, 47
    V_SZ = 48
    V_PK = 56
    V_ACC = 72
    V_Z = 104
    V_BUF = 108
    V_TSV = V_BUF + 96
    NV = V_BUF + 96 + (16 if tail else 0)

    tcount = [0]

    def tst():
        if tail:
            k = tcount[0]
            tcount[0] += 1
            e("s_memtime s[100:101]")
            e("s_waitcnt lgkmcnt(0)")
            e(f"v_mov_b32 v{V_TSV+k}, s100")

    L_QS = 0
    L_KZ = 2048
    L_ML = 2304
    L_FLAG = 2368
    L_ST = 2432
    L_W = 2560
    L_O = 4608
    L_SZ = L_O + 4 * 6144
    L_S = L_SZ + 4 * 2048
    LDS = L_S + 4 * NE * 1024
    assert 81920 < LDS <= 160 * 1024 and L_S < 65536

    WS_E = 32 * 16384

    T0, T1, T2, T3, T4, T5, T6, T7 = range(V_T, V_T + 8)

    e("s_cmp_ge_u32 s2, 256")
    e("s_cbranch_scc1 L_end")
    e("s_load_dwordx16 s[4:19], s[0:1], 0")
    e("s_load_dwordx4 s[20:23], s[0:1], 64")
    if stamp or dbgtime:
        e(f"s_memrealtime {sr(S_TS,2)}")
    e(f"v_and_b32 v{V_LANE}, 63, v0")
    e(f"v_lshrrev_b32 v{V_WV}, 6, v0")
    e(f"v_lshrrev_b32 v{V_G}, 4, v{V_LANE}")
    e(f"v_and_b32 v{V_N}, 15, v{V_LANE}")
    e(f"v_and_b32 v{V_H}, 3, v{V_LANE}")
    e(f"v_readfirstlane_b32 s{S_WAVE}, v{V_WV}")
    g.c("K lane offset: MFMA row m=(g',r1,hf) -> token row, 64B half hf, 16B chunk g (whole 128B lines per load)")
    if lay == 2:
        e(f"v_and_b32 v{T0}, 1, v{V_WV}")
        e(f"v_lshlrev_b32 v{V_VO}, 10, v{T0}")
        e(f"v_lshrrev_b32 v{T0}, 1, v{V_WV}")
        e(f"v_lshl_add_u32 v{V_VO}, v{T0}, 14, v{V_VO}")
        e(f"v_lshrrev_b32 v{T0}, 2, v{V_N}")
        e(f"v_lshl_add_u32 v{V_KO}, v{T0}, 11, v{V_VO}")
        e(f"v_bfe_u32 v{T0}, v{V_N}, 1, 1")
        e(f"v_lshl_add_u32 v{V_KO}, v{T0}, 9, v{V_KO}")
    else:
        e(f"v_lshlrev_b32 v{V_KO}, 13, v{V_WV}")
        e(f"v_lshrrev_b32 v{T0}, 2, v{V_N}")
        e(f"v_lshl_add_u32 v{V_KO}, v{T0}, 11, v{V_KO}")
        e(f"v_bfe_u32 v{T0}, v{V_N}, 1, 1")
        e(f"v_lshl_add_u32 v{V_KO}, v{T0}, 9, v{V_KO}")
    e(f"v_and_b32 v{T7}, 1, v{V_N}")
    e(f"v_lshl_add_u32 v{V_KO}, v{T7}, 6, v{V_KO}")
    e(f"v_lshl_add_u32 v{V_KO}, v{V_G}, 4, v{V_KO}")
    if lay:
        e(f"v_add_u32 v{V_KO2}, 0x2000, v{V_KO}")
    e(f"v_lshlrev_b32 v{T0}, 2, v0")
    e(f"v_lshlrev_b32 v{T1}, 2, v{V_LANE}")
    g.c("stream (kv head, scale group) = ((wg>>1)&3)*4 + (wg>>6); slot j = (wg>>3)&7; parity = wg&1")
    e(f"s_bfe_u32 s{S_STRM}, s2, 0x20001")
    e(f"s_lshr_b32 s{S_T0}, s2, 6")
    e(f"s_lshl_b32 s{S_STRM}, s{S_STRM}, 2")
    e(f"s_add_u32 s{S_STRM}, s{S_STRM}, s{S_T0}")
    e(f"s_bfe_u32 s{S_SPLIT}, s2, 0x30003")
    e(f"s_lshr_b32 s{S_KVH}, s{S_STRM}, 1")
    e(f"s_lshl_b32 s{S_BKV}, s{S_STRM}, 23")
    g.c("64-token block of round r: (phase + parity*NE*8 + j + 8r) mod 256")
    e(f"s_mul_i32 s{S_X}, s{S_KVH}, {PHI}")
    e(f"s_add_u32 s{S_X}, s{S_X}, s{S_SPLIT}")
    e(f"s_and_b32 s{S_T1}, s{S_STRM}, 1")
    e(f"s_mul_i32 s{S_T0}, s{S_T1}, {PHIB}")
    e(f"s_add_u32 s{S_X}, s{S_X}, s{S_T0}")
    e(f"s_lshl_b32 s{S_T1}, s{S_T1}, 4")
    e(f"s_add_u32 s{S_SPLIT}, s{S_SPLIT}, s{S_T1}")
    e(f"s_and_b32 s{S_T1}, s2, 1")
    e(f"s_cselect_b32 s{S_N}, {NO}, {NE}")
    e(f"s_mul_i32 s{S_T0}, s{S_T1}, {NE*8}")
    e(f"s_add_u32 s{S_X}, s{S_X}, s{S_T0}")
    e(f"s_lshl_b32 s{S_T1}, s{S_T1}, 3")
    e(f"s_add_u32 s{S_SPLIT}, s{S_SPLIT}, s{S_T1}")

    def offsets():
        e(f"s_lshl_b32 s{S_T0}, s{S_R}, 3")
        e(f"s_add_u32 s{S_T0}, s{S_T0}, s{S_X}")
        e(f"s_and_b32 s{S_T0}, s{S_T0}, 255")
        e(f"s_lshl_b32 s{S_OFF}, s{S_T0}, 15")
        e(f"s_add_u32 s{S_OFF}, s{S_OFF}, s{S_BKV}")
        e(f"s_add_u32 s{S_R}, s{S_R}, 1")

    e(f"s_mov_b32 s{S_R}, 0")
    offsets()
    e(f"s_lshl_b32 s{S_QO}, s{S_KVH}, 10")
    e(f"s_lshl_b32 s{S_T2}, s{S_STRM}, 8")
    for r, n in ((R_K, 1 << 27), (R_Q, 8192), (R_KS, 4096), (R_KZ, 4096)):
        e(f"s_mov_b32 s{r+2}, 0x{n:x}")
        e(f"s_mov_b32 s{r+3}, 0x00020000")
    e("s_waitcnt lgkmcnt(0)")
    e(f"s_mov_b32 s{R_K}, s{S_QK}")
    e(f"s_mov_b32 s{R_K+1}, s{S_QK+1}")

    def ldK(buf, k):
        a, c = ((k >> 1) & 1, (k >> 2) * 2 + (k & 1)) if korder else (k >> 2, k & 3)
        if lay:
            return g.vm(f"buffer_load_dwordx4 {vr(V_BUF+32*buf+4*k,4)}, v{V_KO2 if a else V_KO}, {sr(R_K,4)}, s{S_OFF} offen offset:{c*128}{pol}")
        return g.vm(f"buffer_load_dwordx4 {vr(V_BUF+32*buf+4*k,4)}, v{V_KO}, {sr(R_K,4)}, s{S_OFF} offen offset:{a*1024+c*128}{pol}")

    def ldV(buf, k):
        hv, i = k >> 2, k & 3
        if lay:
            return g.vm(f"buffer_load_dwordx4 {vr(V_BUF+32*buf+4*k,4)}, v{V_VO2 if i >> 1 else V_VO}, {sr(R_V,4)}, s{S_OFF} offen offset:{(i&1)*512+hv*256}{pol}")
        return g.vm(f"buffer_load_dwordx4 {vr(V_BUF+32*buf+4*k,4)}, v{V_VO}, {sr(R_V,4)}, s{S_OFF} offen offset:{i*512+hv*256}{pol}")

    for k in range(8):
        ldK(0, k)
    for r, p in ((R_Q, S_Q), (R_KS, S_KS), (R_KZ, S_KZ)):
        e(f"s_mov_b32 s{r}, s{p}")
        e(f"s_mov_b32 s{r+1}, s{p+1}")
    g.vm(f"buffer_load_dword v{T2}, v{T0}, {sr(R_Q,4)}, s{S_QO} offen")
    g.vm(f"buffer_load_dword v{T3}, v{T1}, {sr(R_KS,4)}, s{S_T2} offen")
    i_kz = g.vm(f"buffer_load_dword v{T4}, v{T1}, {sr(R_KZ,4)}, s{S_T2} offen")
    offsets()
    for k in range(8):
        ldK(1, k)

    for r, n in ((R_V, 1 << 27), (R_VS, 1 << 19), (R_VZ, 1 << 19), (R_OUT, 8192), (R_WS, 1 << 29), (R_DBG, 256)):
        e(f"s_mov_b32 s{r+2}, 0x{n:x}")
        e(f"s_mov_b32 s{r+3}, 0x00020000")
    for r, p in ((R_V, S_QV), (R_VS, S_VS), (R_VZ, S_VZ), (R_OUT, S_OUT), (R_WS, S_WS), (R_DBG, S_DBG)):
        e(f"s_mov_b32 s{r}, s{p}")
        e(f"s_mov_b32 s{r+1}, s{p+1}")
    e(f"s_mov_b32 s{S_C}, 0x{f32bits(C):08x}")
    e(f"s_mov_b32 s{S_MASK}, 0xffff0000")
    e(f"s_lshl_b32 s{S_BVS}, s{S_STRM}, 15")
    g.c("V lane offset: token group g, 16B column chunk n")
    if not lay:
        e(f"v_lshlrev_b32 v{V_VO}, 13, v{V_WV}")
    e(f"v_lshl_add_u32 v{V_VO}, v{V_G}, 11, v{V_VO}")
    e(f"v_lshl_add_u32 v{V_VO}, v{V_N}, 4, v{V_VO}")
    if lay:
        e(f"v_add_u32 v{V_VO2}, 0x2000, v{V_VO}")
    g.c("bulk vs/vz offset: lane = (round, 16B half)")
    e(f"v_lshrrev_b32 v{T5}, 1, v{V_LANE}")
    e(f"v_lshlrev_b32 v{T5}, 3, v{T5}")
    e(f"v_add_u32 v{T5}, s{S_X}, v{T5}")
    e(f"v_and_b32 v{T5}, 255, v{T5}")
    e(f"v_lshlrev_b32 v{V_SA}, 7, v{T5}")
    e(f"v_lshl_add_u32 v{V_SA}, v{V_WV}, 5, v{V_SA}")
    e(f"v_lshl_add_u32 v{V_SA}, v{T7}, 4, v{V_SA}")
    e(f"v_and_b32 v{T5}, 8, v{V_LANE}")
    e(f"v_cmp_ne_u32 {sr(S_ODD,2)}, 0, v{T5}")
    e(f"v_and_b32 v{T6}, 4, v{V_LANE}")
    e(f"v_mov_b32 v{V_M}, 0xff7fffff")
    e(f"v_mov_b32 v{V_L}, 0")
    for x in range(36):
        e(f"v_mov_b32 v{V_ACC+x}, 0")
    e(f"v_mul_u32_u24 v{V_LS}, {NE*1024}, v{V_WV}")
    e(f"v_lshl_add_u32 v{V_LS}, v{V_LANE}, 4, v{V_LS}")
    e(f"v_lshlrev_b32 v{T5}, 7, v{T5}")
    e(f"v_lshl_add_u32 v{T5}, v{V_H}, 8, v{T5}")
    e(f"v_lshl_add_u32 v{T5}, v{T6}, 3, v{T5}")
    e(f"v_lshl_add_u32 v{T5}, v{V_G}, 3, v{T5}")
    e(f"v_lshlrev_b32 v{T7}, 5, v{T7}")
    e(f"v_lshl_add_u32 v{T7}, v{V_G}, 3, v{T7}")
    e(f"s_mov_b32 s{S_T0}, 0x07060302")
    g.c("q*ks (exact in fp32) split into bf16 high/low parts")
    g.wait_vm(i_kz)
    A0, A1, B0, B1 = V_D, V_D + 1, V_D + 2, V_D + 3
    e(f"v_lshlrev_b32 v{A0}, 16, v{T2}")
    e(f"v_and_b32 v{A1}, s{S_MASK}, v{T2}")
    e(f"v_lshlrev_b32 v{B0}, 16, v{T3}")
    e(f"v_and_b32 v{B1}, s{S_MASK}, v{T3}")
    e(f"v_mul_f32 v{A0}, v{A0}, v{B0}")
    e(f"v_mul_f32 v{A1}, v{A1}, v{B1}")
    e(f"v_and_b32 v{B0}, s{S_MASK}, v{A0}")
    e(f"v_and_b32 v{B1}, s{S_MASK}, v{A1}")
    e(f"v_sub_f32 v{B0}, v{A0}, v{B0}")
    e(f"v_sub_f32 v{B1}, v{A1}, v{B1}")
    e(f"v_perm_b32 v{A0}, v{A1}, v{A0}, s{S_T0}")
    e(f"v_perm_b32 v{B0}, v{B1}, v{B0}, s{S_T0}")
    e(f"ds_write_b32 v{T0}, v{A0} offset:{L_QS}")
    e(f"ds_write_b32 v{T0}, v{B0} offset:{L_QS+1024}")
    e(f"ds_write_b32 v{T1}, v{T4} offset:{L_KZ}")
    e("s_waitcnt lgkmcnt(0)")
    e("s_barrier")
    for c in range(4):
        e(f"ds_read_b64 {vr(V_QB+2*c,2)}, v{T5} offset:{L_QS+64*c}")
    for c in range(4):
        e(f"ds_read_b64 {vr(V_PK+2*c,2)}, v{T7} offset:{L_KZ+64*c}")
    e("s_waitcnt lgkmcnt(0)")
    for ee in range(2):
        e(f"v_mfma_f32_16x16x32_bf16 {vr(V_NC,4)}, {vr(V_PK+4*ee,4)}, {vr(V_QB+4*ee,4)}, {'0' if ee == 0 else vr(V_NC,4)}")
    g.nop(10)
    for r in range(4):
        e(f"v_xor_b32 v{V_NC+r}, 0x80000000, v{V_NC+r}")

    def ld_bulk():
        e(f"s_lshl_b32 s{S_T0}, s{S_N}, 1")
        e(f"v_cmp_gt_u32 vcc, s{S_T0}, v{V_LANE}")
        g.nop(1)
        e("s_mov_b64 exec, vcc")
        g.vm(f"buffer_load_dwordx4 {vr(V_SZ,4)}, v{V_SA}, {sr(R_VS,4)}, s{S_BVS} offen{vspol}")
        g.vm(f"buffer_load_dwordx4 {vr(V_SZ+4,4)}, v{V_SA}, {sr(R_VZ,4)}, s{S_BVS} offen{vspol}")
        e("s_mov_b64 exec, -1")

    if vsat == "start":
        ld_bulk()

    def issue_pair(buf, nxt, k0):
        if nxt == "K":
            ldK(buf, k0)
            ldK(buf, k0 + 1)
        elif nxt == "V":
            ldV(buf, k0)
            ldV(buf, k0 + 1)

    def bodyK(buf, nxt, younger=8):
        g.issued = 8 + younger
        g.known_done = 0
        offsets()
        B = V_BUF + 32 * buf
        for p in range(4):
            a, ee = (p & 1, p >> 1) if korder else (p >> 1, p & 1)
            k0, k1 = 2 * p, 2 * p + 1
            b0, b1 = B + 4 * k0, B + 4 * k1
            pk = V_PK + 4 * (p & 1)
            g.wait_vm(k0)
            for k in range(4):
                e(f"v_cvt_f32_i32 v{b0+k}, v{b0+k}")
            g.wait_vm(k1)
            for k in range(4):
                e(f"v_cvt_f32_i32 v{b1+k}, v{b1+k}")
            e(f"v_cvt_pk_bf16_f32 v{pk}, v{b0}, v{b0+1}")
            e(f"v_cvt_pk_bf16_f32 v{pk+1}, v{b0+2}, v{b0+3}")
            e(f"v_cvt_pk_bf16_f32 v{pk+2}, v{b1}, v{b1+1}")
            e(f"v_cvt_pk_bf16_f32 v{pk+3}, v{b1+2}, v{b1+3}")
            issue_pair(buf, nxt, k0)
            e(f"v_mfma_f32_16x16x32_bf16 {vr(V_D+4*a,4)}, {vr(pk,4)}, {vr(V_QB+4*ee,4)}, {vr(V_NC,4) if ee == 0 else vr(V_D+4*a,4)}")
        e(f"v_add_f32_dpp v{V_S}, v{V_D+1}, v{V_D} row_ror:4 row_mask:0xf bank_mask:0xf")
        e(f"v_add_f32_dpp v{V_S+1}, v{V_D+3}, v{V_D+2} row_ror:4 row_mask:0xf bank_mask:0xf")
        g.nop(1)
        e(f"v_add_f32_dpp v{V_S}, v{V_S}, v{V_S} row_ror:8 row_mask:0xf bank_mask:0xf")
        e(f"v_add_f32_dpp v{V_S+1}, v{V_S+1}, v{V_S+1} row_ror:8 row_mask:0xf bank_mask:0xf")
        e(f"v_max3_f32 v{V_M}, v{V_M}, v{V_S}, v{V_S+1}")
        g.nop(3)
        e(f"v_add_f32_dpp v{V_S+2}, v{V_D+5}, v{V_D+4} row_ror:4 row_mask:0xf bank_mask:0xf")
        e(f"v_add_f32_dpp v{V_S+3}, v{V_D+7}, v{V_D+6} row_ror:4 row_mask:0xf bank_mask:0xf")
        g.nop(1)
        e(f"v_add_f32_dpp v{V_S+2}, v{V_S+2}, v{V_S+2} row_ror:8 row_mask:0xf bank_mask:0xf")
        e(f"v_add_f32_dpp v{V_S+3}, v{V_S+3}, v{V_S+3} row_ror:8 row_mask:0xf bank_mask:0xf")
        e(f"ds_write_b128 v{V_LS}, {vr(V_S,4)} offset:{L_S}")
        e(f"v_max3_f32 v{V_M}, v{V_M}, v{V_S+2}, v{V_S+3}")
        e(f"v_add_u32 v{V_LS}, 1024, v{V_LS}")

    def bodyV(buf, nxt, younger=8, last=None):
        g.issued = 8 + younger
        g.known_done = 0
        B = V_BUF + 32 * buf
        e(f"ds_read_b128 {vr(V_S,4)}, v{V_LS} offset:{L_S}")
        if lay:
            e(f"ds_read2_b32 {vr(V_SZ,2)}, v{V_SA} offset0:0 offset1:8")
            e(f"ds_read2_b32 {vr(V_SZ+2,2)}, v{V_SA} offset0:32 offset1:40")
        else:
            e(f"ds_read2_b64 {vr(V_SZ,4)}, v{V_SA} offset0:0 offset1:16")
        if nxt:
            offsets()
        e(f"v_add_u32 v{V_LS}, 1024, v{V_LS}")
        e(f"v_add_u32 v{V_SA}, 256, v{V_SA}")
        X0, X1, X2, X3 = T4, T5, T6, T7
        e("s_waitcnt lgkmcnt(0)")
        for i in range(4):
            e(f"v_fma_f32 v{V_S+i}, v{V_S+i}, s{S_C}, -v{V_M}")
        for i in range(4):
            e(f"v_exp_f32 v{V_S+i}, v{V_S+i}")
        e(f"v_lshlrev_b32 v{X0}, 16, v{V_SZ}")
        e(f"v_and_b32 v{X1}, s{S_MASK}, v{V_SZ}")
        e(f"v_lshlrev_b32 v{X2}, 16, v{V_SZ+1}")
        e(f"v_and_b32 v{X3}, s{S_MASK}, v{V_SZ+1}")
        e(f"v_add_f32 v{T0}, v{V_S}, v{V_S+1}")
        e(f"v_mul_f32 v{X0}, v{X0}, v{V_S}")
        e(f"v_add_f32 v{T1}, v{V_S+2}, v{V_S+3}")
        e(f"v_mul_f32 v{X1}, v{X1}, v{V_S+1}")
        e(f"v_mul_f32 v{X2}, v{X2}, v{V_S+2}")
        e(f"v_mul_f32 v{X3}, v{X3}, v{V_S+3}")
        e(f"v_add_f32 v{V_L}, v{V_L}, v{T0}")
        for i, X in enumerate((X0, X1, X2, X3)):
            e(f"v_and_b32 v{V_S+i}, s{S_MASK}, v{X}")
        e(f"v_add_f32 v{V_L}, v{V_L}, v{T1}")
        for i, X in enumerate((X0, X1, X2, X3)):
            e(f"v_sub_f32 v{X}, v{X}, v{V_S+i}")
        for i, X in enumerate((X0, X1, X2, X3)):
            e(f"v_cndmask_b32 v{X}, v{V_S+i}, v{X}, {sr(S_ODD,2)}")
        e(f"v_cvt_pk_bf16_f32 v{V_PA}, v{X0}, v{X1}")
        e(f"v_cvt_pk_bf16_f32 v{V_PA+1}, v{X2}, v{X3}")
        g.nop(2)
        e(f"v_mfma_f32_16x16x16_bf16 {vr(V_Z,4)}, {vr(V_PA,2)}, {vr(V_SZ+2,2)}, {vr(V_Z,4)}")
        if last:
            last("stats")
        for p in range(4):
            hv, q = p >> 1, p & 1
            k0, k1 = 2 * p, 2 * p + 1
            b0, b1 = B + 4 * k0, B + 4 * k1
            pk = V_PK + 8 * hv
            g.wait_vm(k0)
            for k in range(4):
                e(f"v_cvt_f32_i32 v{b0+k}, v{b0+k}")
            g.wait_vm(k1)
            for k in range(4):
                e(f"v_cvt_f32_i32 v{b1+k}, v{b1+k}")
            for j in range(4):
                e(f"v_cvt_pk_bf16_f32 v{pk+2*j+q}, v{b0+j}, v{b1+j}")
            issue_pair(buf, nxt, k0)
            if last and p == 2:
                last("half")
            if q == 1:
                if not nxt:
                    g.nop(1)
                for j in range(4):
                    acc = V_ACC + 4 * (hv * 4 + j)
                    e(f"v_mfma_f32_16x16x16_bf16 {vr(acc,4)}, {vr(V_PA,2)}, {vr(pk+2*j,2)}, {vr(acc,4)}")

    g.c("---- K phase (s75 = units issued so far, two units in flight)")
    g.lab("L_k")
    bodyK(0, "K")
    e(f"s_cmp_ge_u32 s{S_R}, s{S_N}")
    e("s_cbranch_scc1 L_kt")
    bodyK(1, "K")
    e("s_branch L_k")
    g.lab("L_kt")
    e(f"s_mov_b32 s{S_R}, 0")
    if vsat == "kt":
        g.issued = 16
        g.known_done = 0
        ld_bulk()
        bodyK(1, "V", younger=10)
        bodyK(0, "V", younger=10)
    else:
        bodyK(1, "V")
        bodyK(0, "V")
    if stamp:
        e(f"s_memrealtime {sr(S_TS+8,2)}")

    g.c("---- workgroup maximum; park vs/vz in LDS; epilogue addresses")
    e(f"v_mov_b32 v{T1}, v{V_M}")
    e(f"v_lshlrev_b32 v{T2}, 2, v{V_WV}")
    e(f"v_lshl_add_u32 v{T2}, v{V_H}, 4, v{T2}")
    e(f"v_permlane16_swap_b32 v{V_M}, v{T1}")
    e(f"v_max_f32 v{V_M}, v{V_M}, v{T1}")
    e(f"v_mov_b32 v{T1}, v{V_M}")
    e(f"v_lshlrev_b32 v{T3}, 4, v{V_H}")
    e(f"v_mul_u32_u24 v{V_LS}, {NE*1024}, v{V_WV}")
    e(f"v_permlane32_swap_b32 v{V_M}, v{T1}")
    e(f"v_max_f32 v{V_M}, v{V_M}, v{T1}")
    e(f"v_lshl_add_u32 v{V_LS}, v{V_LANE}, 4, v{V_LS}")
    e("s_mov_b64 exec, 0xf")
    e(f"ds_write_b32 v{T2}, v{V_M} offset:{L_ML}")
    e("s_mov_b64 exec, -1")
    e(f"v_lshrrev_b32 v{T4}, 1, v{V_LANE}")
    e(f"v_lshlrev_b32 v{T4}, 8, v{T4}")
    e(f"v_and_b32 v{T5}, 1, v{V_LANE}")
    e(f"v_lshl_add_u32 v{T4}, v{T5}, 4, v{T4}")
    e(f"v_lshl_add_u32 v{T4}, v{V_WV}, 5, v{T4}")
    if lay:
        e(f"v_and_b32 v{T5}, 1, v{V_WV}")
        e(f"v_lshlrev_b32 v{V_SA}, 2, v{T5}")
        e(f"v_lshrrev_b32 v{T5}, 1, v{V_WV}")
        e(f"v_lshl_add_u32 v{V_SA}, v{T5}, 6, v{V_SA}")
    else:
        e(f"v_lshlrev_b32 v{V_SA}, 5, v{V_WV}")
    e(f"v_lshl_add_u32 v{V_SA}, v{V_G}, 3, v{V_SA}")
    e(f"v_add_u32 v{V_SA}, {L_SZ}, v{V_SA}")
    e("s_waitcnt vmcnt(16)")
    e(f"ds_write_b128 v{T4}, {vr(V_SZ,4)} offset:{L_SZ}")
    e(f"ds_write_b128 v{T4}, {vr(V_SZ+4,4)} offset:{L_SZ+128}")
    VAW, VRD, VST, VSO2, VHB8, VE = V_QB, V_QB + 1, V_QB + 2, V_QB + 3, V_QB + 4, V_QB + 5
    VL16, VWW, VWR, VOUT, VZERO, VEL = V_QB + 6, V_QB + 7, V_NC, V_NC + 1, V_NC + 2, V_NC + 3
    U4, U5, U6 = V_D + 4, V_D + 5, V_D + 6
    e(f"v_lshrrev_b32 v{T0}, 5, v{V_LANE}")
    e(f"v_mul_u32_u24 v{VAW}, 6144, v{V_WV}")
    e(f"v_mul_u32_u24 v{T1}, 3072, v{T0}")
    e(f"v_add_u32 v{VAW}, v{VAW}, v{T1}")
    e(f"v_lshl_add_u32 v{VAW}, v{V_N}, 4, v{VAW}")
    e(f"v_bfe_u32 v{U4}, v{V_LANE}, 3, 2")
    e(f"v_and_b32 v{U5}, 7, v{V_LANE}")
    e(f"v_lshrrev_b32 v{U6}, 1, v{V_WV}")
    e(f"v_lshl_add_u32 v{U6}, v{U6}, 2, v{U4}")
    e(f"v_mul_u32_u24 v{VRD}, 384, v{U6}")
    e(f"v_add_u32 v{VRD}, v{VRD}, v{T1}")
    e(f"v_and_b32 v{U6}, 1, v{V_WV}")
    e(f"v_lshl_add_u32 v{VRD}, v{U6}, 7, v{VRD}")
    e(f"v_lshl_add_u32 v{VRD}, v{U5}, 4, v{VRD}")
    e(f"v_lshrrev_b32 v{U6}, 1, v{V_H}")
    e(f"v_lshlrev_b32 v{VE}, 4, v{U6}")
    e(f"v_and_b32 v{U6}, 1, v{V_H}")
    e(f"v_lshl_add_u32 v{VE}, v{U6}, 2, v{VE}")
    e(f"v_lshl_add_u32 v{VST}, v{V_WV}, 5, v{VE}")
    e(f"v_lshlrev_b32 v{VHB8}, 4, v{T0}")
    e(f"v_and_b32 v{U6}, 31, v{V_LANE}")
    e(f"v_lshlrev_b32 v{VSO2}, 4, v{U6}")
    e(f"v_lshl_add_u32 v{VSO2}, v{T0}, 3, v{VSO2}")
    e(f"v_lshlrev_b32 v{VL16}, 4, v{V_LANE}")
    e(f"v_lshl_add_u32 v{VWW}, v{V_WV}, 9, v{VSO2}")
    e(f"v_lshl_add_u32 v{VWR}, v{V_WV}, 9, v{VHB8}")
    e(f"v_lshl_add_u32 v{VOUT}, v{U5}, 2, v{U4}")
    e(f"v_lshlrev_b32 v{VOUT}, 1, v{VOUT}")
    e(f"v_lshl_add_u32 v{VOUT}, v{T0}, 9, v{VOUT}")
    e(f"v_lshl_add_u32 v{VEL}, v{U6}, 5, v{VHB8}")
    e(f"v_mov_b32 v{VZERO}, 0")
    e(f"s_lshl_b32 s{S_T0}, s{S_KVH}, 2")
    e(f"s_add_u32 s{S_T0}, s{S_T0}, s{S_WAVE}")
    e(f"s_lshl_b32 s{S_REC}, s{S_T0}, 14")
    e(f"s_lshl_b32 s{S_OWN}, s{S_SPLIT}, 9")
    e(f"s_add_u32 s{S_OWN}, s{S_OWN}, s{S_REC}")
    e(f"s_lshl_b32 s{S_RECE}, s{S_KVH}, 10")
    e(f"s_add_u32 s{S_RECE}, s{S_RECE}, {WS_E}")
    e(f"s_lshl_b32 s{S_OWNE}, s{S_SPLIT}, 5")
    e(f"s_add_u32 s{S_OWNE}, s{S_OWNE}, s{S_RECE}")
    e(f"s_lshl_b32 s{S_CTR}, s{S_KVH}, 5")
    e(f"s_lshl_b32 s{S_T0}, s{S_WAVE}, 6")
    e(f"s_add_u32 s{S_QO}, s{S_QO}, s{S_T0}")
    e("s_waitcnt lgkmcnt(0)")
    e("s_barrier")
    e(f"ds_read_b128 {vr(V_D,4)}, v{T3} offset:{L_ML}")
    e("s_waitcnt lgkmcnt(0)")
    g.c("lanes of unused MFMA columns keep their own max in the mix so their exps stay <= 1")
    e(f"v_max3_f32 v{V_M}, v{V_M}, v{V_D}, v{V_D+1}")
    e(f"v_max3_f32 v{V_M}, v{V_M}, v{V_D+2}, v{V_D+3}")
    e(f"v_mul_f32 v{V_M}, s{S_C}, v{V_M}")
    e(f"s_cmp_lg_u32 s{S_WAVE}, 0")
    e("s_cbranch_scc1 L_v")
    e("s_mov_b64 exec, 0xf")
    e(f"ds_write_b32 v{VE}, v{V_M} offset:{L_FLAG+16}")
    e("s_mov_b64 exec, -1")

    g.c("---- V phase")
    g.lab("L_v")
    bodyV(1, "V")
    e(f"s_cmp_ge_u32 s{S_R}, s{S_N}")
    e("s_cbranch_scc1 L_vt")
    bodyV(0, "V")
    e("s_branch L_v")
    g.lab("L_vt")
    bodyV(0, None)

    def last(what):
        if what == "stats":
            e(f"v_mov_b32 v{T1}, v{V_L}")
            g.nop(2)
            e(f"v_permlane16_swap_b32 v{V_L}, v{T1}")
            e(f"v_add_f32 v{V_L}, v{V_L}, v{T1}")
            e(f"v_mov_b32 v{T1}, v{V_L}")
            g.nop(2)
            e(f"v_permlane32_swap_b32 v{V_L}, v{T1}")
            e(f"v_add_f32 v{V_L}, v{V_L}, v{T1}")
            e(f"v_permlane32_swap_b32 v{V_Z}, v{V_Z+2}")
            e(f"v_permlane32_swap_b32 v{V_Z+1}, v{V_Z+3}")
            e(f"v_lshl_add_u32 v{T0}, v{V_WV}, 5, v{VHB8}")
            e(f"v_pk_add_f32 {vr(V_Z,2)}, {vr(V_Z,2)}, {vr(V_Z+2,2)}")
            e("s_mov_b64 exec, 0xf")
            e(f"ds_write_b32 v{VST}, v{V_L} offset:{L_ST}")
            e("s_mov_b32 exec_lo, 1")
            e("s_mov_b32 exec_hi, 1")
            e(f"ds_write_b64 v{T0}, {vr(V_Z,2)} offset:{L_ST+8}")
            e("s_mov_b64 exec, -1")
            e(f"ds_read_b64 {vr(V_D,2)}, v{VHB8} offset:{L_FLAG+16}")
        else:
            e("s_mov_b32 exec_lo, 0xffff")
            e("s_mov_b32 exec_hi, 0xffff")
            for blk in range(4):
                e(f"ds_write_b128 v{VAW}, {vr(V_ACC+4*blk,4)} offset:{L_O+blk*384}")
            e("s_mov_b64 exec, -1")

    bodyV(1, None, younger=0, last=last)

    g.c("---- workgroup reduce, publish partial (write-through), arrive")
    tst()
    if stamp:
        e(f"s_memrealtime {sr(S_TS+2,2)}")
    e("s_mov_b32 exec_lo, 0xffff")
    e("s_mov_b32 exec_hi, 0xffff")
    g.nop(4)
    for blk in range(4, 8):
        e(f"ds_write_b128 v{VAW}, {vr(V_ACC+4*blk,4)} offset:{L_O+blk*384}")
    e("s_mov_b64 exec, -1")
    e("s_waitcnt lgkmcnt(0)")
    e("s_barrier")
    tst()
    RB = V_BUF
    SB = V_BUF + 16
    for w in range(4):
        e(f"ds_read_b128 {vr(RB+4*w,4)}, v{VRD} offset:{L_O+w*6144}")
    for w in range(4):
        e(f"ds_read_b128 {vr(SB+4*w,4)}, v{VHB8} offset:{L_ST+w*32}")
    e("s_waitcnt lgkmcnt(6)")
    e(f"v_pk_add_f32 {vr(RB,2)}, {vr(RB,2)}, {vr(RB+4,2)}")
    e(f"v_pk_add_f32 {vr(RB+2,2)}, {vr(RB+2,2)}, {vr(RB+6,2)}")
    e("s_waitcnt lgkmcnt(4)")
    e(f"v_pk_add_f32 {vr(RB+8,2)}, {vr(RB+8,2)}, {vr(RB+12,2)}")
    e(f"v_pk_add_f32 {vr(RB+10,2)}, {vr(RB+10,2)}, {vr(RB+14,2)}")
    e(f"v_pk_add_f32 {vr(RB,2)}, {vr(RB,2)}, {vr(RB+8,2)}")
    e(f"v_pk_add_f32 {vr(RB+2,2)}, {vr(RB+2,2)}, {vr(RB+10,2)}")
    e("s_waitcnt lgkmcnt(0)")
    e(f"v_pk_add_f32 {vr(SB+2,2)}, {vr(SB+2,2)}, {vr(SB+6,2)}")
    e(f"v_pk_add_f32 {vr(SB+10,2)}, {vr(SB+10,2)}, {vr(SB+14,2)}")
    e(f"v_permlane32_swap_b32 v{RB}, v{RB+2}")
    e(f"v_permlane32_swap_b32 v{RB+1}, v{RB+3}")
    e(f"v_pk_add_f32 {vr(SB+2,2)}, {vr(SB+2,2)}, {vr(SB+10,2)}")
    e(f"v_pk_add_f32 {vr(RB,2)}, {vr(RB,2)}, {vr(RB+2,2)}")
    e(f"v_pk_add_f32 {vr(SB,2)}, {vr(SB,2)}, {vr(SB+4,2)}")
    e(f"v_pk_add_f32 {vr(RB,2)}, {vr(RB,2)}, {vr(SB+2,2)} neg_lo:[0,1] neg_hi:[0,1]")
    g.issued = 0
    g.known_done = 0
    g.vm(f"buffer_store_dwordx2 {vr(RB,2)}, v{VSO2}, {sr(R_WS,4)}, s{S_OWN} offen sc1")
    e(f"s_cmp_lg_u32 s{S_WAVE}, 0")
    e("s_cbranch_scc1 L_noL")
    e(f"v_pk_add_f32 {vr(SB+8,2)}, {vr(SB+8,2)}, {vr(SB+12,2)}")
    e("s_mov_b32 exec_lo, 1")
    e("s_mov_b32 exec_hi, 1")
    e(f"v_pk_add_f32 {vr(V_D+2,2)}, {vr(SB,2)}, {vr(SB+8,2)}")
    g.vm(f"buffer_store_dwordx4 {vr(V_D,4)}, v{VHB8}, {sr(R_WS,4)}, s{S_OWNE} offen sc1")
    e("s_mov_b64 exec, 1")
    e(f"v_mov_b32 v{T1}, 1")
    g.lab("L_noL")
    tst()
    e("s_waitcnt vmcnt(0)")
    g.known_done = g.issued
    tst()
    e("s_barrier")
    tst()
    e(f"s_cmp_lg_u32 s{S_WAVE}, 0")
    e("s_cbranch_scc1 L_skip_atomic")
    g.vm(f"buffer_atomic_add v{T1}, v{VZERO}, {sr(R_DBG,4)}, s{S_CTR} offen sc0")
    e("s_waitcnt vmcnt(0)")
    g.known_done = g.issued
    e(f"ds_write_b32 v{VZERO}, v{T1} offset:{L_FLAG}")
    e("s_mov_b64 exec, -1")
    e("s_waitcnt lgkmcnt(0)")
    g.lab("L_skip_atomic")
    tst()
    e("s_barrier")
    e(f"ds_read_b32 v{T1}, v{VZERO} offset:{L_FLAG}")
    e("s_waitcnt lgkmcnt(0)")
    e(f"v_readfirstlane_b32 s{S_T0}, v{T1}")
    g.nop(1)
    if stamp:
        e(f"s_memrealtime {sr(S_TS+4,2)}")
        e("s_waitcnt lgkmcnt(0)")
        e(f"s_lshl_b32 s{S_T1}, s2, 2")
        e(f"s_add_u32 s{S_T1}, s{S_T1}, s{S_WAVE}")
        e(f"s_lshl_b32 s{S_T1}, s{S_T1}, 5")
        e(f"s_add_u32 s{S_T1}, s{S_T1}, 0x100000")
        e(f"s_getreg_b32 s{S_TS+6}, hwreg(HW_REG_XCC_ID)")
        e(f"s_getreg_b32 s{S_TS+7}, hwreg(HW_REG_HW_ID)")
        e(f"s_and_b32 s{S_TS+6}, s{S_TS+6}, 15")
        e(f"s_lshl_b32 s{S_TS+7}, s{S_TS+7}, 4")
        e(f"s_or_b32 s{S_TS+6}, s{S_TS+6}, s{S_TS+7}")
        XS = V_ACC + 16
        for k in range(4):
            e(f"v_mov_b32 v{XS+k}, s{S_TS+2*k}")
        e(f"v_mov_b32 v{XS+4}, s{S_R}")
        e(f"v_mov_b32 v{XS+5}, s{S_TS+8}")
        e(f"v_mov_b32 v{XS+6}, s{S_TS}")
        e(f"v_mov_b32 v{XS+7}, s{S_TS}")
        e("s_mov_b64 exec, 1")
        g.vm(f"buffer_store_dwordx4 {vr(XS,4)}, v{VZERO}, {sr(R_WS,4)}, s{S_T1} offen")
        g.vm(f"buffer_store_dwordx4 {vr(XS+4,4)}, v{VZERO}, {sr(R_WS,4)}, s{S_T1} offen offset:16")
        e("s_mov_b64 exec, -1")
    e(f"s_cmp_lg_u32 s{S_T0}, 31")
    e("s_cbranch_scc1 L_end")

    g.c("---- final merge by the last arriving workgroup of this kv head (wave = 32-column block)")
    tst()
    OB = V_BUF
    WB = V_BUF + 64
    EB = V_ACC
    MX = V_ACC + 4
    M2 = V_ACC + 6
    N0 = V_ACC + 8
    N1 = V_ACC + 12
    ie = g.vm(f"buffer_load_dwordx4 {vr(EB,4)}, v{VEL}, {sr(R_WS,4)}, s{S_RECE} offen sc1")
    io = []

    def ldO(k):
        if k and k % 4 == 0:
            e(f"s_add_u32 s{S_REC}, s{S_REC}, 4096")
        io.append(g.vm(f"buffer_load_dwordx4 {vr(OB+4*k,4)}, v{VL16}, {sr(R_WS,4)}, s{S_REC} offen offset:{(k&3)*1024} sc1"))

    def reduce32(op, a, src=None):
        first = True
        for ctl in ("quad_perm:[1,0,3,2]", "quad_perm:[2,3,0,1]", "row_ror:4", "row_ror:8"):
            for r in range(2):
                sreg = (src + r) if (first and src is not None) else (a + r)
                e(f"v_{op}_f32_dpp v{a+r}, v{sreg}, v{sreg} {ctl} row_mask:0xf bank_mask:0xf")
            g.nop(1)
            first = False
        e(f"v_mov_b32 v{M2}, v{a}")
        e(f"v_mov_b32 v{M2+1}, v{a+1}")
        g.nop(1)
        e(f"v_permlane16_swap_b32 v{a}, v{M2}")
        e(f"v_permlane16_swap_b32 v{a+1}, v{M2+1}")
        e(f"v_{op}_f32 v{a}, v{a}, v{M2}")
        e(f"v_{op}_f32 v{a+1}, v{a+1}, v{M2+1}")

    for k in range(NFIRST):
        ldO(k)
    tst()
    g.wait_vm(ie)
    tst()
    reduce32("max", MX, EB)
    e(f"v_sub_f32 v{EB}, v{EB}, v{MX}")
    e(f"v_sub_f32 v{EB+1}, v{EB+1}, v{MX+1}")
    e(f"v_exp_f32 v{EB}, v{EB}")
    e(f"v_exp_f32 v{EB+1}, v{EB+1}")
    g.nop(1)
    e(f"ds_write_b64 v{VWW}, {vr(EB,2)} offset:{L_W}")
    e(f"v_pk_mul_f32 {vr(EB+2,2)}, {vr(EB+2,2)}, {vr(EB,2)}")
    for k in range(8):
        e(f"ds_read_b128 {vr(WB+4*k,4)}, v{VWR} offset:{L_W+k*32}")
    for k in range(NFIRST, 16):
        ldO(k)
    tst()
    reduce32("add", EB + 2)
    e(f"v_rcp_f32 v{EB+2}, v{EB+2}")
    e(f"v_rcp_f32 v{EB+3}, v{EB+3}")
    e("s_waitcnt lgkmcnt(0)")
    for k in range(16):
        g.wait_vm(io[k])
        if k == 8:
            e("s_waitcnt lgkmcnt(0)")
        N = N0 if k % 2 == 0 else N1
        Wk = WB + 4 * (k & 7)
        for hh in (0, 2):
            if k < 2:
                e(f"v_pk_mul_f32 {vr(N+hh,2)}, {vr(Wk+hh,2)}, {vr(OB+4*k+hh,2)}")
            else:
                e(f"v_pk_fma_f32 {vr(N+hh,2)}, {vr(Wk+hh,2)}, {vr(OB+4*k+hh,2)}, {vr(N+hh,2)}")
        if k < 8:
            e(f"ds_read_b128 {vr(Wk,4)}, v{VWR} offset:{L_W+(k+8)*32}")
    tst()
    e(f"v_pk_add_f32 {vr(N0,2)}, {vr(N0,2)}, {vr(N1,2)}")
    e(f"v_pk_add_f32 {vr(N0+2,2)}, {vr(N0+2,2)}, {vr(N1+2,2)}")
    g.nop(2)
    e(f"v_permlane32_swap_b32 v{N0}, v{N0+2}")
    e(f"v_permlane32_swap_b32 v{N0+1}, v{N0+3}")
    e(f"v_pk_add_f32 {vr(N0,2)}, {vr(N0,2)}, {vr(N0+2,2)}")
    e(f"v_pk_mul_f32 {vr(N0,2)}, {vr(N0,2)}, {vr(EB+2,2)}")
    e(f"v_cvt_pk_bf16_f32 v{N0}, v{N0}, v{N0+1}")
    g.vm(f"buffer_store_short v{N0}, v{VOUT}, {sr(R_OUT,4)}, s{S_QO} offen")
    g.vm(f"buffer_store_short_d16_hi v{N0}, v{VOUT}, {sr(R_OUT,4)}, s{S_QO} offen offset:256")
    if tail:
        tst()
        e("s_waitcnt vmcnt(0)")
        tst()
        e(f"s_lshl_b32 s{S_T1}, s{S_KVH}, 2")
        e(f"s_add_u32 s{S_T1}, s{S_T1}, s{S_WAVE}")
        e(f"s_lshl_b32 s{S_T1}, s{S_T1}, 6")
        e(f"s_add_u32 s{S_T1}, s{S_T1}, 0x300000")
        for k in range(16):
            e(f"v_mov_b32 v{V_BUF+k}, v{V_TSV+min(k, tcount[0]-1)}")
        e("s_mov_b64 exec, 1")
        for k in range(4):
            e(f"buffer_store_dwordx4 {vr(V_BUF+4*k,4)}, v{VZERO}, {sr(R_WS,4)}, s{S_T1} offen offset:{16*k}")
    if dbgtime or stamp:
        e(f"s_memrealtime {sr(S_TS+2,2)}")
        e("s_waitcnt lgkmcnt(0)")
        if dbgtime:
            e(f"s_sub_u32 s{S_T1}, s{S_TS+2}, s{S_TS}")
        else:
            e(f"s_mov_b32 s{S_T1}, s{S_TS+2}")
        e(f"v_mov_b32 v{T0}, s{S_T1}")
        e(f"s_lshl_b32 s{S_T2}, s{S_KVH}, 3")
        e(f"s_add_u32 s{S_T2}, s{S_T2}, 4")
        e("s_mov_b64 exec, 1")
        e(f"buffer_store_dword v{T0}, v{VZERO}, {sr(R_DBG,4)}, s{S_T2} offen")
    g.lab("L_end")
    e("s_endpgm")

    body_t = "\n".join(g.L)
    nv = (NV + 7) // 8 * 8
    text = HEADER + f"; @launch grid=(256,1,1) block=(256,1,1) lds={LDS}\n" + DOC
    text += f""".amdgcn_target "amdgcn-amd-amdhsa--gfx950"
.text
.globl {NAME}_kernel
.p2align 8
.type {NAME}_kernel,@function
{NAME}_kernel:
{body_t}
.section .rodata,"a"
.p2align 6
.amdhsa_kernel {NAME}_kernel
  .amdhsa_next_free_vgpr {nv}
  .amdhsa_next_free_sgpr {NSGPR}
  .amdhsa_accum_offset {nv}
  .amdhsa_group_segment_fixed_size 0
  .amdhsa_kernarg_size 80
  .amdhsa_user_sgpr_count 2
  .amdhsa_user_sgpr_kernarg_segment_ptr 1
  .amdhsa_system_sgpr_workgroup_id_x 1
  .amdhsa_float_denorm_mode_32 3
.end_amdhsa_kernel
"""
    return text


if __name__ == "__main__":
    ap = argparse.ArgumentParser()
    ap.add_argument("-o", default=f"cdna_kernels/{NAME}.s")
    ap.add_argument("--pol", default="nt")
    ap.add_argument("--NO", type=int, default=15)
    ap.add_argument("--PHI", type=int, default=16)
    ap.add_argument("--PHIB", type=int, default=64)
    ap.add_argument("--stamp", action="store_true")
    ap.add_argument("--dbgtime", action="store_true")
    ap.add_argument("--tail", action="store_true")
    ap.add_argument("--NFIRST", type=int, default=10)
    ap.add_argument("--lay", type=int, default=0)
    ap.add_argument("--vspol", default="nt")
    ap.add_argument("--vsat", default="kt")
    ap.add_argument("--korder", type=int, default=0)
    a = ap.parse_args()
    open(a.o, "w").write(gen(pol=a.pol, NO=a.NO, PHI=a.PHI, PHIB=a.PHIB, stamp=a.stamp, dbgtime=a.dbgtime, tail=a.tail,
                             NFIRST=a.NFIRST, lay=a.lay, vspol=a.vspol, vsat=a.vsat, korder=a.korder))
    print("wrote", a.o)
```

```python
import sys, math, argparse
from gen import G, vr, sr, NAME, HEADER, f32bits


def gen(pol="nt", NO=15, PHI=19, stamp=False, lds_force=90000, dbgtime=False, PHIV=0, polv=None, tail=False, NFIRST=10, wmap=0, PHIB=0, outpol="", lateM=True, tlbpf=0, tailpf=0, rot=0, kfirst=0, rowmaj=0):
    g = G()
    e = g.e
    if polv is None: polv = pol
    pol = (" " + pol) if pol else ""
    polv = (" " + polv) if polv else ""
    C = (128.0 ** -0.5) * math.log2(math.e)
    NE = 32 - NO
    assert NO % 2 == 1 and NO >= 3

    S_Q, S_QK, S_QV, S_KS, S_KZ, S_VS, S_VZ, S_OUT, S_DBG, S_WS = 4, 6, 8, 10, 12, 14, 16, 18, 20, 22
    R_K, R_V, R_VS, R_VZ, R_Q, R_KS, R_KZ, R_OUT, R_WS, R_DBG = 24, 28, 32, 36, 40, 44, 48, 52, 56, 60
    S_STRM, S_WGI, S_KVH, S_WAVE, S_C, S_MASK = 64, 65, 66, 67, 68, 69
    S_BKV, S_BVS, S_PHI, S_OFF, S_OFFS, S_R, S_N, S_X2 = 70, 71, 72, 73, 74, 75, 76, 77
    S_T0, S_T1 = 78, 79
    S_ODD = 80
    S_QO = 82
    S_T2 = 83
    S_TS = 84
    NSGPR = 102
    tcount = [0]
    def tst():
        if tail:
            k = tcount[0]; tcount[0] += 1
            e(f"s_memtime s[100:101]")
            e("s_waitcnt lgkmcnt(0)")
            e(f"v_mov_b32 v{V_TSV+k}, s100")

    V_LANE, V_KO, V_VO, V_SO, V_WV, V_G, V_N, V_H = 1, 2, 3, 4, 5, 6, 7, 8
    V_LS = 9
    V_M, V_L = 10, 11
    V_T = 12
    V_QB = 20
    V_NC = 28
    V_D = 32
    V_S = 40
    V_PA = 44
    V_VZ2 = 46
    V_VSZ = 48
    V_PK = 56
    V_ACC = 72
    V_Z = 104
    V_BUF = 108
    V_TSV = V_BUF + 96
    NV = V_BUF + 96 + (16 if tail else 0)
    V_VO2 = NV
    V_KO2 = NV + 1
    NV += 2
    NS_ = 4 if rowmaj else 2
    vspol = ' nt' if rowmaj != 2 else ''

    L_QS = 0
    L_KZ = 2048
    L_ML = 2304
    L_FLAG = 2368
    L_ST = 2432
    L_W = 2560
    L_O = 4608
    L_S = L_O + 4 * 6144
    LDS = max(L_S + 4 * NE * 1024, lds_force)
    assert LDS <= 160 * 1024 and L_S < 65536

    WS_E = 32 * 16384

    T0, T1, T2, T3, T4, T5, T6, T7 = range(V_T, V_T + 8)

    e("s_cmp_ge_u32 s2, 256")
    e("s_cbranch_scc1 L_end")
    e("s_load_dwordx16 s[4:19], s[0:1], 0")
    e("s_load_dwordx4 s[20:23], s[0:1], 64")
    if stamp or dbgtime:
        e(f"s_memrealtime {sr(S_TS,2)}")
    e(f"v_and_b32 v{V_LANE}, 63, v0")
    e(f"v_lshrrev_b32 v{V_WV}, 6, v0")
    e(f"v_lshrrev_b32 v{V_G}, 4, v{V_LANE}")
    e(f"v_and_b32 v{V_N}, 15, v{V_LANE}")
    e(f"v_and_b32 v{V_H}, 3, v{V_LANE}")
    e(f"v_readfirstlane_b32 s{S_WAVE}, v{V_WV}")
    if rowmaj == 6:
        e(f"v_lshlrev_b32 v{V_KO}, 13, v{V_WV}")
        e(f"v_lshrrev_b32 v{T0}, 1, v{V_N}")
        e(f"v_lshl_add_u32 v{V_KO}, v{T0}, 9, v{V_KO}")
    elif rowmaj:
        e(f"v_lshlrev_b32 v{V_KO}, 10, v{V_WV}")
        e(f"v_lshrrev_b32 v{T0}, 1, v{V_N}")
        e(f"v_lshl_add_u32 v{V_KO}, v{T0}, {12 if rowmaj == 5 else 15}, v{V_KO}")
    else:
        e(f"v_lshlrev_b32 v{V_KO}, 13, v{V_WV}" if not rot else f"v_mov_b32 v{V_KO}, 0")
        e(f"v_lshrrev_b32 v{T0}, 2, v{V_N}")
        e(f"v_lshl_add_u32 v{V_KO}, v{T0}, 11, v{V_KO}")
        e(f"v_bfe_u32 v{T0}, v{V_N}, 1, 1")
        e(f"v_lshl_add_u32 v{V_KO}, v{T0}, 9, v{V_KO}")
    e(f"v_and_b32 v{T7}, 1, v{V_N}")
    e(f"v_lshl_add_u32 v{V_KO}, v{T7}, 6, v{V_KO}")
    e(f"v_lshl_add_u32 v{V_KO}, v{V_G}, 4, v{V_KO}")
    if rowmaj == 6:
        e(f"v_add_u32 v{V_KO2}, 0x1000, v{V_KO}")
    e(f"v_lshlrev_b32 v{T0}, 2, v0")
    e(f"v_lshlrev_b32 v{T1}, 2, v{V_LANE}")
    S_SPLIT = 99
    if wmap == 0:
        e(f"s_lshr_b32 s{S_STRM}, s2, 4")
        e(f"s_and_b32 s{S_WGI}, s2, 15")
        e(f"s_lshr_b32 s{S_X2}, s{S_WGI}, 1")
    else:
        e(f"s_bfe_u32 s{S_STRM}, s2, 0x20001")
        e(f"s_lshr_b32 s{S_T0}, s2, 6")
        if wmap in (1, 3):
            e(f"s_lshl_b32 s{S_STRM}, s{S_STRM}, 2")
            e(f"s_add_u32 s{S_STRM}, s{S_STRM}, s{S_T0}")
        else:
            e(f"s_lshl_b32 s{S_T0}, s{S_T0}, 2")
            e(f"s_add_u32 s{S_STRM}, s{S_STRM}, s{S_T0}")
        e(f"s_bfe_u32 s{S_X2}, s2, 0x30003")
        e(f"s_and_b32 s{S_T0}, s2, 1")
        e(f"s_lshl_b32 s{S_WGI}, s{S_T0}, 3")
        e(f"s_add_u32 s{S_WGI}, s{S_WGI}, s{S_X2}")
    e(f"s_lshr_b32 s{S_KVH}, s{S_STRM}, 1")
    e(f"s_and_b32 s{S_SPLIT}, s{S_STRM}, 1")
    e(f"s_lshl_b32 s{S_SPLIT}, s{S_SPLIT}, 4")
    e(f"s_add_u32 s{S_SPLIT}, s{S_SPLIT}, s{S_WGI}")
    e(f"s_lshl_b32 s{S_BKV}, s{S_STRM}, 23")
    e(f"s_lshl_b32 s{S_BVS}, s{S_STRM}, 15")
    if wmap == 3:
        e(f"s_mul_i32 s{S_PHI}, s{S_KVH}, {PHI}")
        e(f"s_add_u32 s{S_X2}, s{S_X2}, s{S_PHI}")
        e(f"s_and_b32 s{S_T0}, s{S_STRM}, 1")
        e(f"s_mul_i32 s{S_T0}, s{S_T0}, {PHIB}")
        e(f"s_add_u32 s{S_X2}, s{S_X2}, s{S_T0}")
        e(f"s_and_b32 s{S_T0}, s2, 1")
        e(f"s_mul_i32 s{S_T0}, s{S_T0}, {NE*8}")
        e(f"s_add_u32 s{S_X2}, s{S_X2}, s{S_T0}")
    else:
        e(f"s_mul_i32 s{S_PHI}, s{S_STRM}, {PHI}")
        e(f"s_add_u32 s{S_X2}, s{S_X2}, {NO*8}")
        e(f"s_add_u32 s{S_X2}, s{S_X2}, s{S_PHI}")
        e(f"s_add_u32 s{S_PHI}, s{S_PHI}, s{S_WGI}")
    e(f"s_and_b32 s{S_T0}, s2, 1")
    e(f"s_cselect_b32 s{S_N}, {NO}, {NE}")
    e(f"s_lshl_b32 s{S_QO}, s{S_KVH}, 10")
    e(f"s_lshl_b32 s{S_T2}, s{S_STRM}, 8")

    def offsets(withvs):
        if wmap == 3:
            e(f"s_lshl_b32 s{S_T0}, s{S_R}, 3")
            e(f"s_add_u32 s{S_T0}, s{S_T0}, s{S_X2}")
        else:
            e(f"s_lshl_b32 s{S_T0}, s{S_R}, 4")
            e(f"s_add_u32 s{S_T0}, s{S_T0}, s{S_PHI}")
            e(f"s_lshl_b32 s{S_T1}, s{S_R}, 3")
            e(f"s_add_u32 s{S_T1}, s{S_T1}, s{S_X2}")
            e(f"s_cmp_lt_u32 s{S_R}, {NO}")
            e(f"s_cselect_b32 s{S_T0}, s{S_T0}, s{S_T1}")
        e(f"s_and_b32 s{S_T0}, s{S_T0}, 255")
        if rowmaj and rowmaj not in (5, 6):
            if rowmaj == 3:
                e(f"s_mul_i32 s{S_T1}, s{S_R}, 3")
                e(f"s_add_u32 s{S_T1}, s{S_T1}, s{S_T0}")
                e(f"s_and_b32 s{S_T1}, s{S_T1}, 7")
            elif rowmaj == 4:
                e(f"s_lshl_b32 s{S_T1}, s{S_WAVE}, 1")
                e(f"s_add_u32 s{S_T1}, s{S_T1}, s{S_T0}")
                e(f"s_add_u32 s{S_T1}, s{S_T1}, s{S_R}")
                e(f"s_and_b32 s{S_T1}, s{S_T1}, 7")
            else:
                e(f"s_and_b32 s{S_T1}, s{S_T0}, 7")
            e(f"s_lshr_b32 s{S_T0}, s{S_T0}, 3")
            e(f"s_lshl_b32 s{S_T0}, s{S_T0}, 6")
            e(f"s_add_u32 s{S_T0}, s{S_T0}, s{S_T1}")
            e(f"s_lshl_b32 s{S_OFF}, s{S_T0}, 12")
            e(f"s_add_u32 s{S_OFF}, s{S_OFF}, s{S_BKV}")
            if withvs:
                e(f"s_lshl_b32 s{S_OFFS}, s{S_T0}, 4")
                e(f"s_add_u32 s{S_OFFS}, s{S_OFFS}, s{S_BVS}")
        elif rot:
            if rot == 1:
                e(f"s_add_u32 s{S_T1}, s{S_R}, s{S_WAVE}")
            elif rot == 2:
                e(f"s_lshr_b32 s{S_T1}, s{S_R}, 1")
                e(f"s_add_u32 s{S_T1}, s{S_T1}, s{S_WAVE}")
            elif rot == 3:
                e(f"s_lshl_b32 s{S_T1}, s{S_R}, 1")
                e(f"s_add_u32 s{S_T1}, s{S_T1}, s{S_WAVE}")
            e(f"s_and_b32 s{S_T1}, s{S_T1}, 3")
            e(f"s_lshl_b32 s{S_T0}, s{S_T0}, 2")
            e(f"s_add_u32 s{S_T0}, s{S_T0}, s{S_T1}")
            e(f"s_lshl_b32 s{S_OFF}, s{S_T0}, 13")
            e(f"s_add_u32 s{S_OFF}, s{S_OFF}, s{S_BKV}")
            if withvs:
                e(f"s_lshl_b32 s{S_OFFS}, s{S_T0}, 5")
                e(f"s_add_u32 s{S_OFFS}, s{S_OFFS}, s{S_BVS}")
        else:
            e(f"s_lshl_b32 s{S_OFF}, s{S_T0}, 15")
            e(f"s_add_u32 s{S_OFF}, s{S_OFF}, s{S_BKV}")
            if withvs:
                e(f"s_lshl_b32 s{S_OFFS}, s{S_T0}, 7")
                e(f"s_add_u32 s{S_OFFS}, s{S_OFFS}, s{S_BVS}")
        e(f"s_add_u32 s{S_R}, s{S_R}, 1")

    e(f"s_mov_b32 s{S_R}, 0")
    offsets(False)
    for r, n in ((R_K, 1 << 27), (R_Q, 8192), (R_KS, 4096), (R_KZ, 4096)):
        e(f"s_mov_b32 s{r+2}, 0x{n:x}")
        e(f"s_mov_b32 s{r+3}, 0x00020000")
    e("s_waitcnt lgkmcnt(0)")
    for r, p in (((R_K, S_QK),) if kfirst else ((R_K, S_QK), (R_Q, S_Q), (R_KS, S_KS), (R_KZ, S_KZ))):
        e(f"s_mov_b32 s{r}, s{p}")
        e(f"s_mov_b32 s{r+1}, s{p+1}")

    def ldK(buf, k):
        a, c = k >> 2, k & 3
        if rowmaj == 6:
            return g.vm(f"buffer_load_dwordx4 {vr(V_BUF+32*buf+4*k,4)}, v{V_KO2 if a else V_KO}, {sr(R_K,4)}, s{S_OFF} offen offset:{c*128}{pol}")
        return g.vm(f"buffer_load_dwordx4 {vr(V_BUF+32*buf+4*k,4)}, v{V_KO}, {sr(R_K,4)}, s{S_OFF} offen offset:{a*(512 if rowmaj else 1024)+c*128}{pol}")

    def ldV(buf, k):
        hv, i = k >> 2, k & 3
        if rowmaj:
            return g.vm(f"buffer_load_dwordx4 {vr(V_BUF+32*buf+4*k,4)}, v{V_VO2 if i >> 1 else V_VO}, {sr(R_V,4)}, s{S_OFF} offen offset:{(i&1)*512+hv*256}{polv}")
        return g.vm(f"buffer_load_dwordx4 {vr(V_BUF+32*buf+4*k,4)}, v{V_VO}, {sr(R_V,4)}, s{S_OFF} offen offset:{i*512+hv*256}{polv}")

    def ldVSZ(buf):
        if rowmaj:
            g.vm(f"buffer_load_dword v{V_VSZ+4*buf}, v{V_SO}, {sr(R_VS,4)}, s{S_OFFS} offen{vspol}")
            g.vm(f"buffer_load_dword v{V_VSZ+4*buf+1}, v{V_SO}, {sr(R_VS,4)}, s{S_OFFS} offen offset:{16 if rowmaj in (5, 6) else 128}{vspol}")
            g.vm(f"buffer_load_dword v{V_VSZ+4*buf+2}, v{V_SO}, {sr(R_VZ,4)}, s{S_OFFS} offen{vspol}")
            return g.vm(f"buffer_load_dword v{V_VSZ+4*buf+3}, v{V_SO}, {sr(R_VZ,4)}, s{S_OFFS} offen offset:{16 if rowmaj in (5, 6) else 128}{vspol}")
        g.vm(f"buffer_load_dwordx2 {vr(V_VSZ+4*buf,2)}, v{V_SO}, {sr(R_VS,4)}, s{S_OFFS} offen nt")
        return g.vm(f"buffer_load_dwordx2 {vr(V_VSZ+4*buf+2,2)}, v{V_SO}, {sr(R_VZ,4)}, s{S_OFFS} offen nt")

    def smalls():
        g.vm(f"buffer_load_dword v{T2}, v{T0}, {sr(R_Q,4)}, s{S_QO} offen")
        g.vm(f"buffer_load_dword v{T3}, v{T1}, {sr(R_KS,4)}, s{S_T2} offen")
        return g.vm(f"buffer_load_dword v{T4}, v{T1}, {sr(R_KZ,4)}, s{S_T2} offen")
    if not kfirst:
        i_kz = smalls()
    for k in range(8):
        ldK(0, k)
        if kfirst and k == kfirst - 1:
            for r, p in ((R_Q, S_Q), (R_KS, S_KS), (R_KZ, S_KZ)):
                e(f"s_mov_b32 s{r}, s{p}")
                e(f"s_mov_b32 s{r+1}, s{p+1}")
            i_kz = smalls()
    offsets(False)
    for k in range(8):
        ldK(1, k)

    for r, n in ((R_V, 1 << 27), (R_VS, 1 << 19), (R_VZ, 1 << 19), (R_OUT, 8192), (R_WS, 1 << 29), (R_DBG, 256)):
        e(f"s_mov_b32 s{r+2}, 0x{n:x}")
        e(f"s_mov_b32 s{r+3}, 0x00020000")
    for r, p in ((R_V, S_QV), (R_VS, S_VS), (R_VZ, S_VZ), (R_OUT, S_OUT), (R_WS, S_WS), (R_DBG, S_DBG)):
        e(f"s_mov_b32 s{r}, s{p}")
        e(f"s_mov_b32 s{r+1}, s{p+1}")
    if tlbpf:
        e(f"v_lshlrev_b32 v{V_S}, 21, v{V_LANE}")
        if tlbpf == 2:
            e(f"s_cmp_lg_u32 s{S_WAVE}, 3")
            e("s_cbranch_scc1 L_nopf")
        e("s_mov_b64 exec, 0xf")
        e(f"buffer_load_dword v{V_BUF+64}, v{V_S}, {sr(R_K,4)}, s{S_BKV} offen nt")
        e(f"buffer_load_dword v{V_BUF+65}, v{V_S}, {sr(R_V,4)}, s{S_BKV} offen nt")
        e("s_mov_b64 exec, -1")
        if tlbpf == 2:
            g.lab("L_nopf")
    e(f"s_mov_b32 s{S_C}, 0x{f32bits(C):08x}")
    e(f"s_mov_b32 s{S_MASK}, 0xffff0000")
    if rowmaj == 6:
        e(f"v_lshlrev_b32 v{V_VO}, 13, v{V_WV}")
        e(f"v_lshl_add_u32 v{V_VO}, v{V_G}, 10, v{V_VO}")
        e(f"v_lshl_add_u32 v{V_VO}, v{V_N}, 4, v{V_VO}")
        e(f"v_add_u32 v{V_VO2}, 0x1000, v{V_VO}")
        e(f"v_lshlrev_b32 v{V_SO}, 5, v{V_WV}")
        e(f"v_lshl_add_u32 v{V_SO}, v{V_G}, 2, v{V_SO}")
    elif rowmaj:
        e(f"v_lshlrev_b32 v{V_VO}, 10, v{V_WV}")
        e(f"v_lshl_add_u32 v{V_VO}, v{V_G}, {13 if rowmaj == 5 else 16}, v{V_VO}")
        e(f"v_lshl_add_u32 v{V_VO}, v{V_N}, 4, v{V_VO}")
        e(f"v_add_u32 v{V_VO2}, {0x1000 if rowmaj == 5 else 0x8000}, v{V_VO}")
        e(f"v_lshlrev_b32 v{V_SO}, 2, v{V_WV}")
        e(f"v_lshl_add_u32 v{V_SO}, v{V_G}, {5 if rowmaj == 5 else 8}, v{V_SO}")
    else:
        e(f"v_lshlrev_b32 v{V_VO}, 13, v{V_WV}" if not rot else f"v_mov_b32 v{V_VO}, 0")
        e(f"v_lshl_add_u32 v{V_VO}, v{V_G}, 11, v{V_VO}")
        e(f"v_lshl_add_u32 v{V_VO}, v{V_N}, 4, v{V_VO}")
        e(f"v_lshlrev_b32 v{V_SO}, 5, v{V_WV}" if not rot else f"v_mov_b32 v{V_SO}, 0")
        e(f"v_lshl_add_u32 v{V_SO}, v{V_G}, 3, v{V_SO}")
    e(f"v_and_b32 v{T5}, 8, v{V_LANE}")
    e(f"v_cmp_ne_u32 {sr(S_ODD,2)}, 0, v{T5}")
    e(f"v_and_b32 v{T6}, 4, v{V_LANE}")
    e(f"v_mov_b32 v{V_M}, 0xff7fffff")
    e(f"v_mov_b32 v{V_L}, 0")
    for x in range(36):
        e(f"v_mov_b32 v{V_ACC+x}, 0")
    e(f"v_mul_u32_u24 v{V_LS}, {NE*1024}, v{V_WV}")
    e(f"v_lshl_add_u32 v{V_LS}, v{V_LANE}, 4, v{V_LS}")
    e(f"v_lshlrev_b32 v{T5}, 7, v{T5}")
    e(f"v_lshl_add_u32 v{T5}, v{V_H}, 8, v{T5}")
    e(f"v_lshl_add_u32 v{T5}, v{T6}, 3, v{T5}")
    e(f"v_lshl_add_u32 v{T5}, v{V_G}, 3, v{T5}")
    e(f"v_lshlrev_b32 v{T7}, 5, v{T7}")
    e(f"v_lshl_add_u32 v{T7}, v{V_G}, 3, v{T7}")
    e(f"s_mov_b32 s{S_T0}, 0x07060302")
    g.wait_vm(i_kz)
    A0, A1, B0, B1 = V_D, V_D + 1, V_D + 2, V_D + 3
    e(f"v_lshlrev_b32 v{A0}, 16, v{T2}")
    e(f"v_and_b32 v{A1}, s{S_MASK}, v{T2}")
    e(f"v_lshlrev_b32 v{B0}, 16, v{T3}")
    e(f"v_and_b32 v{B1}, s{S_MASK}, v{T3}")
    e(f"v_mul_f32 v{A0}, v{A0}, v{B0}")
    e(f"v_mul_f32 v{A1}, v{A1}, v{B1}")
    e(f"v_and_b32 v{B0}, s{S_MASK}, v{A0}")
    e(f"v_and_b32 v{B1}, s{S_MASK}, v{A1}")
    e(f"v_sub_f32 v{B0}, v{A0}, v{B0}")
    e(f"v_sub_f32 v{B1}, v{A1}, v{B1}")
    e(f"v_perm_b32 v{A0}, v{A1}, v{A0}, s{S_T0}")
    e(f"v_perm_b32 v{B0}, v{B1}, v{B0}, s{S_T0}")
    e(f"ds_write_b32 v{T0}, v{A0} offset:{L_QS}")
    e(f"ds_write_b32 v{T0}, v{B0} offset:{L_QS+1024}")
    e(f"ds_write_b32 v{T1}, v{T4} offset:{L_KZ}")
    e("s_waitcnt lgkmcnt(0)")
    e("s_barrier")
    for c in range(4):
        e(f"ds_read_b64 {vr(V_QB+2*c,2)}, v{T5} offset:{L_QS+64*c}")
    for c in range(4):
        e(f"ds_read_b64 {vr(V_PK+2*c,2)}, v{T7} offset:{L_KZ+64*c}")
    e("s_waitcnt lgkmcnt(0)")
    for ee in range(2):
        e(f"v_mfma_f32_16x16x32_bf16 {vr(V_NC,4)}, {vr(V_PK+4*ee,4)}, {vr(V_QB+4*ee,4)}, {'0' if ee == 0 else vr(V_NC,4)}")
    g.nop(10)
    for r in range(4):
        e(f"v_xor_b32 v{V_NC+r}, 0x80000000, v{V_NC+r}")

    NOPS = {"K": 8, "V": 8 + NS_, None: 0}

    def issue_pair(buf, nxt, k0):
        if nxt == "K":
            ldK(buf, k0)
            ldK(buf, k0 + 1)
        elif nxt == "V":
            ldV(buf, k0)
            ldV(buf, k0 + 1)

    def bodyK(buf, other, nxt):
        g.issued = 8 + NOPS[other]
        g.known_done = 0
        offsets(nxt == "V")
        if nxt == "V":
            ldVSZ(buf)
        B = V_BUF + 32 * buf
        for p in range(4):
            a, ee = p >> 1, p & 1
            k0, k1 = 2 * p, 2 * p + 1
            b0, b1 = B + 4 * k0, B + 4 * k1
            pk = V_PK + 4 * (p & 1)
            g.wait_vm(k0)
            for k in range(4):
                e(f"v_cvt_f32_i32 v{b0+k}, v{b0+k}")
            g.wait_vm(k1)
            for k in range(4):
                e(f"v_cvt_f32_i32 v{b1+k}, v{b1+k}")
            e(f"v_cvt_pk_bf16_f32 v{pk}, v{b0}, v{b0+1}")
            e(f"v_cvt_pk_bf16_f32 v{pk+1}, v{b0+2}, v{b0+3}")
            e(f"v_cvt_pk_bf16_f32 v{pk+2}, v{b1}, v{b1+1}")
            e(f"v_cvt_pk_bf16_f32 v{pk+3}, v{b1+2}, v{b1+3}")
            issue_pair(buf, nxt, k0)
            e(f"v_mfma_f32_16x16x32_bf16 {vr(V_D+4*a,4)}, {vr(pk,4)}, {vr(V_QB+4*ee,4)}, {vr(V_NC,4) if ee == 0 else vr(V_D+4*a,4)}")
        SA, SB_ = (V_S + 2, V_S + 1) if (rowmaj and rowmaj != 6) else (V_S + 1, V_S + 2)
        e(f"v_add_f32_dpp v{V_S}, v{V_D+1}, v{V_D} row_ror:4 row_mask:0xf bank_mask:0xf")
        e(f"v_add_f32_dpp v{SA}, v{V_D+3}, v{V_D+2} row_ror:4 row_mask:0xf bank_mask:0xf")
        g.nop(1)
        e(f"v_add_f32_dpp v{V_S}, v{V_S}, v{V_S} row_ror:8 row_mask:0xf bank_mask:0xf")
        e(f"v_add_f32_dpp v{SA}, v{SA}, v{SA} row_ror:8 row_mask:0xf bank_mask:0xf")
        e(f"v_max3_f32 v{V_M}, v{V_M}, v{V_S}, v{SA}")
        g.nop(3)
        e(f"v_add_f32_dpp v{SB_}, v{V_D+5}, v{V_D+4} row_ror:4 row_mask:0xf bank_mask:0xf")
        e(f"v_add_f32_dpp v{V_S+3}, v{V_D+7}, v{V_D+6} row_ror:4 row_mask:0xf bank_mask:0xf")
        g.nop(1)
        e(f"v_add_f32_dpp v{SB_}, v{SB_}, v{SB_} row_ror:8 row_mask:0xf bank_mask:0xf")
        e(f"v_add_f32_dpp v{V_S+3}, v{V_S+3}, v{V_S+3} row_ror:8 row_mask:0xf bank_mask:0xf")
        e(f"ds_write_b128 v{V_LS}, {vr(V_S,4)} offset:{L_S}")
        e(f"v_max3_f32 v{V_M}, v{V_M}, v{SB_}, v{V_S+3}")
        e(f"v_add_u32 v{V_LS}, 1024, v{V_LS}")

    def bodyV(buf, other, nxt, last=None):
        g.issued = 8 + NS_ + NOPS[other]
        g.known_done = 0
        B = V_BUF + 32 * buf
        VS, VZ = V_VSZ + 4 * buf, V_VSZ + 4 * buf + 2
        e(f"ds_read_b128 {vr(V_S,4)}, v{V_LS} offset:{L_S}")
        if nxt:
            offsets(True)
        e(f"v_add_u32 v{V_LS}, 1024, v{V_LS}")
        X0, X1, X2, X3 = T4, T5, T6, T7
        g.wait_vm(NS_ - 1)
        e(f"v_lshlrev_b32 v{X0}, 16, v{VS}")
        e(f"v_and_b32 v{X1}, s{S_MASK}, v{VS}")
        e(f"v_lshlrev_b32 v{X2}, 16, v{VS+1}")
        e(f"v_and_b32 v{X3}, s{S_MASK}, v{VS+1}")
        e(f"v_mov_b32 v{V_VZ2}, v{VZ}")
        e(f"v_mov_b32 v{V_VZ2+1}, v{VZ+1}")
        if nxt:
            ldVSZ(buf)
        e("s_waitcnt lgkmcnt(0)")
        for i in range(4):
            e(f"v_fma_f32 v{V_S+i}, v{V_S+i}, s{S_C}, -v{V_M}")
        for i in range(4):
            e(f"v_exp_f32 v{V_S+i}, v{V_S+i}")
        e(f"v_add_f32 v{T0}, v{V_S}, v{V_S+1}")
        e(f"v_mul_f32 v{X0}, v{X0}, v{V_S}")
        e(f"v_add_f32 v{T1}, v{V_S+2}, v{V_S+3}")
        e(f"v_mul_f32 v{X1}, v{X1}, v{V_S+1}")
        e(f"v_mul_f32 v{X2}, v{X2}, v{V_S+2}")
        e(f"v_mul_f32 v{X3}, v{X3}, v{V_S+3}")
        e(f"v_add_f32 v{V_L}, v{V_L}, v{T0}")
        for i, X in enumerate((X0, X1, X2, X3)):
            e(f"v_and_b32 v{V_S+i}, s{S_MASK}, v{X}")
        e(f"v_add_f32 v{V_L}, v{V_L}, v{T1}")
        for i, X in enumerate((X0, X1, X2, X3)):
            e(f"v_sub_f32 v{X}, v{X}, v{V_S+i}")
        for i, X in enumerate((X0, X1, X2, X3)):
            e(f"v_cndmask_b32 v{X}, v{V_S+i}, v{X}, {sr(S_ODD,2)}")
        e(f"v_cvt_pk_bf16_f32 v{V_PA}, v{X0}, v{X1}")
        e(f"v_cvt_pk_bf16_f32 v{V_PA+1}, v{X2}, v{X3}")
        g.nop(2)
        e(f"v_mfma_f32_16x16x16_bf16 {vr(V_Z,4)}, {vr(V_PA,2)}, {vr(V_VZ2,2)}, {vr(V_Z,4)}")
        if last:
            last("stats")
        for p in range(4):
            hv, q = p >> 1, p & 1
            k0, k1 = 2 * p, 2 * p + 1
            b0, b1 = B + 4 * k0, B + 4 * k1
            pk = V_PK + 8 * hv
            g.wait_vm(NS_ + k0)
            for k in range(4):
                e(f"v_cvt_f32_i32 v{b0+k}, v{b0+k}")
            g.wait_vm(NS_ + k1)
            for k in range(4):
                e(f"v_cvt_f32_i32 v{b1+k}, v{b1+k}")
            for j in range(4):
                e(f"v_cvt_pk_bf16_f32 v{pk+2*j+q}, v{b0+j}, v{b1+j}")
            issue_pair(buf, nxt, k0)
            if last and p == 2:
                last("half")
            if q == 1:
                if not nxt:
                    g.nop(1)
                for j in range(4):
                    acc = V_ACC + 4 * (hv * 4 + j)
                    e(f"v_mfma_f32_16x16x16_bf16 {vr(acc,4)}, {vr(V_PA,2)}, {vr(pk+2*j,2)}, {vr(acc,4)}")

    g.lab("L_k")
    bodyK(0, "K", "K")
    e(f"s_cmp_ge_u32 s{S_R}, s{S_N}")
    e("s_cbranch_scc1 L_kt")
    bodyK(1, "K", "K")
    e("s_branch L_k")
    g.lab("L_kt")
    e(f"s_mov_b32 s{S_R}, 0")
    bodyK(1, "K", "V")
    bodyK(0, "V", "V")
    if stamp:
        e(f"s_memrealtime {sr(S_TS+8,2)}")
    g.c("max exchange")
    S_REC, S_RECE, S_OWN, S_OWNE, S_CTR = 94, 95, 96, 97, 98
    e(f"v_mov_b32 v{T1}, v{V_M}")
    e(f"v_lshlrev_b32 v{T2}, 2, v{V_WV}")
    e(f"v_lshl_add_u32 v{T2}, v{V_H}, 4, v{T2}")
    e(f"v_permlane16_swap_b32 v{V_M}, v{T1}")
    e(f"v_max_f32 v{V_M}, v{V_M}, v{T1}")
    e(f"v_mov_b32 v{T1}, v{V_M}")
    e(f"v_lshlrev_b32 v{T3}, 4, v{V_H}")
    e(f"v_mul_u32_u24 v{V_LS}, {NE*1024}, v{V_WV}")
    e(f"v_permlane32_swap_b32 v{V_M}, v{T1}")
    e(f"v_max_f32 v{V_M}, v{V_M}, v{T1}")
    e(f"v_lshl_add_u32 v{V_LS}, v{V_LANE}, 4, v{V_LS}")
    e("s_mov_b64 exec, 0xf")
    e(f"ds_write_b32 v{T2}, v{V_M} offset:{L_ML}")
    e("s_mov_b64 exec, -1")
    VAW, VRD, VST, VSO2, VHB8, VE = V_QB, V_QB + 1, V_QB + 2, V_QB + 3, V_QB + 4, V_QB + 5
    VL16, VWW, VWR, VOUT, VZERO = V_QB + 6, V_QB + 7, V_NC, V_NC + 1, V_NC + 2
    e(f"v_lshrrev_b32 v{T0}, 5, v{V_LANE}")
    e(f"v_mul_u32_u24 v{VAW}, 6144, v{V_WV}")
    e(f"v_mul_u32_u24 v{T1}, 3072, v{T0}")
    e(f"v_add_u32 v{VAW}, v{VAW}, v{T1}")
    e(f"v_lshl_add_u32 v{VAW}, v{V_N}, 4, v{VAW}")
    e(f"v_bfe_u32 v{T4}, v{V_LANE}, 3, 2")
    e(f"v_and_b32 v{T5}, 7, v{V_LANE}")
    e(f"v_lshrrev_b32 v{T6}, 1, v{V_WV}")
    e(f"v_lshl_add_u32 v{T6}, v{T6}, 2, v{T4}")
    e(f"v_mul_u32_u24 v{VRD}, 384, v{T6}")
    e(f"v_add_u32 v{VRD}, v{VRD}, v{T1}")
    e(f"v_and_b32 v{T6}, 1, v{V_WV}")
    e(f"v_lshl_add_u32 v{VRD}, v{T6}, 7, v{VRD}")
    e(f"v_lshl_add_u32 v{VRD}, v{T5}, 4, v{VRD}")
    e(f"v_lshrrev_b32 v{T6}, 1, v{V_H}")
    e(f"v_lshlrev_b32 v{VE}, 4, v{T6}")
    e(f"v_and_b32 v{T6}, 1, v{V_H}")
    e(f"v_lshl_add_u32 v{VE}, v{T6}, 2, v{VE}")
    e(f"v_lshl_add_u32 v{VST}, v{V_WV}, 5, v{VE}")
    e(f"v_lshlrev_b32 v{VHB8}, 4, v{T0}")
    e(f"v_and_b32 v{T6}, 31, v{V_LANE}")
    e(f"v_lshlrev_b32 v{VSO2}, 4, v{T6}")
    e(f"v_lshl_add_u32 v{VSO2}, v{T0}, 3, v{VSO2}")
    e(f"v_lshlrev_b32 v{VL16}, 4, v{V_LANE}")
    e(f"v_lshl_add_u32 v{VWW}, v{V_WV}, 9, v{VSO2}")
    e(f"v_lshl_add_u32 v{VWR}, v{V_WV}, 9, v{VHB8}")
    e(f"v_lshl_add_u32 v{VOUT}, v{T5}, 2, v{T4}")
    e(f"v_lshlrev_b32 v{VOUT}, 1, v{VOUT}")
    e(f"v_lshl_add_u32 v{VOUT}, v{T0}, 9, v{VOUT}")
    e(f"v_lshl_add_u32 v{V_NC+3}, v{T6}, 5, v{VHB8}")
    e(f"v_mov_b32 v{VZERO}, 0")
    VEL = V_NC + 3
    e(f"s_lshl_b32 s{S_T0}, s{S_KVH}, 2")
    e(f"s_add_u32 s{S_T0}, s{S_T0}, s{S_WAVE}")
    e(f"s_lshl_b32 s{S_REC}, s{S_T0}, 14")
    e(f"s_mov_b32 s{S_T1}, s{S_SPLIT}")
    e(f"s_lshl_b32 s{S_OWN}, s{S_T1}, 9")
    e(f"s_add_u32 s{S_OWN}, s{S_OWN}, s{S_REC}")
    e(f"s_lshl_b32 s{S_RECE}, s{S_KVH}, 10")
    e(f"s_add_u32 s{S_RECE}, s{S_RECE}, {WS_E}")
    e(f"s_lshl_b32 s{S_OWNE}, s{S_T1}, 5")
    e(f"s_add_u32 s{S_OWNE}, s{S_OWNE}, s{S_RECE}")
    e(f"s_lshl_b32 s{S_CTR}, s{S_KVH}, 5")
    e(f"s_lshl_b32 s{S_T0}, s{S_WAVE}, 6")
    e(f"s_add_u32 s{S_QO}, s{S_QO}, s{S_T0}")
    e("s_waitcnt lgkmcnt(0)")
    e("s_barrier")
    e(f"ds_read_b128 {vr(V_D,4)}, v{T3} offset:{L_ML}")
    e("s_waitcnt lgkmcnt(0)")
    e(f"v_max3_f32 v{V_M}, v{V_M}, v{V_D}, v{V_D+1}")
    e(f"v_max3_f32 v{V_M}, v{V_M}, v{V_D+2}, v{V_D+3}")
    e(f"v_mul_f32 v{V_M}, s{S_C}, v{V_M}")
    e(f"s_cmp_lg_u32 s{S_WAVE}, 0")
    e("s_cbranch_scc1 L_v")
    e("s_mov_b64 exec, 0xf")
    if lateM:
        e(f"ds_write_b32 v{VE}, v{V_M} offset:{L_FLAG+16}")
    else:
        e(f"buffer_store_dword v{V_M}, v{VE}, {sr(R_WS,4)}, s{S_OWNE} offen sc1")
    e("s_mov_b64 exec, -1")

    g.lab("L_v")
    bodyV(1, "V", "V")
    e(f"s_cmp_ge_u32 s{S_R}, s{S_N}")
    e("s_cbranch_scc1 L_vt")
    bodyV(0, "V", "V")
    e("s_branch L_v")
    g.lab("L_vt")
    if tailpf:
        e("s_mov_b64 exec, 1")
        e(f"s_mov_b32 s{S_T0}, 0x1f0000")
        e(f"buffer_load_dword v{V_BUF+64}, v{VZERO}, {sr(R_WS,4)}, s{S_T0} offen")
        if tailpf & 2:
            e(f"buffer_load_dword v{V_BUF+65}, v{VZERO}, {sr(R_DBG,4)}, 0 offen offset:252")
        if tailpf & 4:
            e(f"buffer_load_dword v{V_BUF+66}, v{VZERO}, {sr(R_OUT,4)}, s{S_QO} offen")
        e("s_mov_b64 exec, -1")
    bodyV(0, "V", None)

    def last(what):
        if what == "stats":
            e(f"v_mov_b32 v{T1}, v{V_L}")
            g.nop(2)
            e(f"v_permlane16_swap_b32 v{V_L}, v{T1}")
            e(f"v_add_f32 v{V_L}, v{V_L}, v{T1}")
            e(f"v_mov_b32 v{T1}, v{V_L}")
            g.nop(2)
            e(f"v_permlane32_swap_b32 v{V_L}, v{T1}")
            e(f"v_add_f32 v{V_L}, v{V_L}, v{T1}")
            e(f"v_permlane32_swap_b32 v{V_Z}, v{V_Z+2}")
            e(f"v_permlane32_swap_b32 v{V_Z+1}, v{V_Z+3}")
            e(f"v_lshl_add_u32 v{T0}, v{V_WV}, 5, v{VHB8}")
            e(f"v_pk_add_f32 {vr(V_Z,2)}, {vr(V_Z,2)}, {vr(V_Z+2,2)}")
            e("s_mov_b64 exec, 0xf")
            e(f"ds_write_b32 v{VST}, v{V_L} offset:{L_ST}")
            e("s_mov_b32 exec_lo, 1")
            e("s_mov_b32 exec_hi, 1")
            e(f"ds_write_b64 v{T0}, {vr(V_Z,2)} offset:{L_ST+8}")
            e("s_mov_b64 exec, -1")
            if lateM:
                e(f"ds_read_b64 {vr(V_D,2)}, v{VHB8} offset:{L_FLAG+16}")
        else:
            e("s_mov_b32 exec_lo, 0xffff")
            e("s_mov_b32 exec_hi, 0xffff")
            for blk in range(4):
                e(f"ds_write_b128 v{VAW}, {vr(V_ACC+4*blk,4)} offset:{L_O+blk*384}")
            e("s_mov_b64 exec, -1")

    bodyV(1, None, None, last)

    g.c("WG combine")
    tst()
    if stamp:
        e(f"s_memrealtime {sr(S_TS+2,2)}")
    e("s_mov_b32 exec_lo, 0xffff")
    e("s_mov_b32 exec_hi, 0xffff")
    g.nop(4)
    for blk in range(4, 8):
        e(f"ds_write_b128 v{VAW}, {vr(V_ACC+4*blk,4)} offset:{L_O+blk*384}")
    e("s_mov_b64 exec, -1")
    e("s_waitcnt lgkmcnt(0)")
    e("s_barrier")
    tst()
    RB = V_BUF
    SB = V_BUF + 16
    for w in range(4):
        e(f"ds_read_b128 {vr(RB+4*w,4)}, v{VRD} offset:{L_O+w*6144}")
    for w in range(4):
        e(f"ds_read_b128 {vr(SB+4*w,4)}, v{VHB8} offset:{L_ST+w*32}")
    e("s_waitcnt lgkmcnt(6)")
    e(f"v_pk_add_f32 {vr(RB,2)}, {vr(RB,2)}, {vr(RB+4,2)}")
    e(f"v_pk_add_f32 {vr(RB+2,2)}, {vr(RB+2,2)}, {vr(RB+6,2)}")
    e("s_waitcnt lgkmcnt(4)")
    e(f"v_pk_add_f32 {vr(RB+8,2)}, {vr(RB+8,2)}, {vr(RB+12,2)}")
    e(f"v_pk_add_f32 {vr(RB+10,2)}, {vr(RB+10,2)}, {vr(RB+14,2)}")
    e(f"v_pk_add_f32 {vr(RB,2)}, {vr(RB,2)}, {vr(RB+8,2)}")
    e(f"v_pk_add_f32 {vr(RB+2,2)}, {vr(RB+2,2)}, {vr(RB+10,2)}")
    e("s_waitcnt lgkmcnt(0)")
    e(f"v_pk_add_f32 {vr(SB+2,2)}, {vr(SB+2,2)}, {vr(SB+6,2)}")
    e(f"v_pk_add_f32 {vr(SB+10,2)}, {vr(SB+10,2)}, {vr(SB+14,2)}")
    e(f"v_permlane32_swap_b32 v{RB}, v{RB+2}")
    e(f"v_permlane32_swap_b32 v{RB+1}, v{RB+3}")
    e(f"v_pk_add_f32 {vr(SB+2,2)}, {vr(SB+2,2)}, {vr(SB+10,2)}")
    e(f"v_pk_add_f32 {vr(RB,2)}, {vr(RB,2)}, {vr(RB+2,2)}")
    e(f"v_pk_add_f32 {vr(SB,2)}, {vr(SB,2)}, {vr(SB+4,2)}")
    e(f"v_pk_add_f32 {vr(RB,2)}, {vr(RB,2)}, {vr(SB+2,2)} neg_lo:[0,1] neg_hi:[0,1]")
    g.issued = 0
    g.known_done = 0
    g.vm(f"buffer_store_dwordx2 {vr(RB,2)}, v{VSO2}, {sr(R_WS,4)}, s{S_OWN} offen sc1")
    e(f"s_cmp_lg_u32 s{S_WAVE}, 0")
    e("s_cbranch_scc1 L_noL")
    e(f"v_pk_add_f32 {vr(SB+8,2)}, {vr(SB+8,2)}, {vr(SB+12,2)}")
    e("s_mov_b32 exec_lo, 1")
    e("s_mov_b32 exec_hi, 1")
    if lateM:
        e(f"v_pk_add_f32 {vr(V_D+2,2)}, {vr(SB,2)}, {vr(SB+8,2)}")
        g.vm(f"buffer_store_dwordx4 {vr(V_D,4)}, v{VHB8}, {sr(R_WS,4)}, s{S_OWNE} offen sc1")
    else:
        e(f"v_pk_add_f32 {vr(SB,2)}, {vr(SB,2)}, {vr(SB+8,2)}")
        g.vm(f"buffer_store_dwordx2 {vr(SB,2)}, v{VHB8}, {sr(R_WS,4)}, s{S_OWNE} offen offset:8 sc1")
    e("s_mov_b64 exec, 1")
    e(f"v_mov_b32 v{T1}, 1")
    g.lab("L_noL")
    tst()
    e("s_waitcnt vmcnt(0)")
    g.known_done = g.issued
    tst()
    e("s_barrier")
    tst()
    e(f"s_cmp_lg_u32 s{S_WAVE}, 0")
    e("s_cbranch_scc1 L_skip_atomic")
    g.vm(f"buffer_atomic_add v{T1}, v{VZERO}, {sr(R_DBG,4)}, s{S_CTR} offen sc0")
    e("s_waitcnt vmcnt(0)")
    g.known_done = g.issued
    e(f"ds_write_b32 v{VZERO}, v{T1} offset:{L_FLAG}")
    e("s_mov_b64 exec, -1")
    e("s_waitcnt lgkmcnt(0)")
    g.lab("L_skip_atomic")
    tst()
    e("s_barrier")
    e(f"ds_read_b32 v{T1}, v{VZERO} offset:{L_FLAG}")
    e("s_waitcnt lgkmcnt(0)")
    e(f"v_readfirstlane_b32 s{S_T0}, v{T1}")
    g.nop(1)
    X = V_BUF + 32
    if stamp:
        e(f"s_memrealtime {sr(S_TS+4,2)}")
        e("s_waitcnt lgkmcnt(0)")
        e(f"s_lshl_b32 s{S_T1}, s2, 2")
        e(f"s_add_u32 s{S_T1}, s{S_T1}, s{S_WAVE}")
        e(f"s_lshl_b32 s{S_T1}, s{S_T1}, 5")
        e(f"s_add_u32 s{S_T1}, s{S_T1}, 0x100000")
        e(f"s_getreg_b32 s{S_TS+6}, hwreg(HW_REG_XCC_ID)")
        e(f"s_getreg_b32 s{S_TS+7}, hwreg(HW_REG_HW_ID)")
        e(f"s_and_b32 s{S_TS+6}, s{S_TS+6}, 15")
        e(f"s_lshl_b32 s{S_TS+7}, s{S_TS+7}, 4")
        e(f"s_or_b32 s{S_TS+6}, s{S_TS+6}, s{S_TS+7}")
        XS = V_ACC + 16
        for k in range(4):
            e(f"v_mov_b32 v{XS+k}, s{S_TS+2*k}")
        e(f"v_mov_b32 v{XS+4}, s{S_R}")
        e(f"v_mov_b32 v{XS+5}, s{S_TS+8}")
        e(f"v_mov_b32 v{XS+6}, s{S_TS}")
        e(f"v_mov_b32 v{XS+7}, s{S_TS}")
        e("s_mov_b64 exec, 1")
        g.vm(f"buffer_store_dwordx4 {vr(XS,4)}, v{VZERO}, {sr(R_WS,4)}, s{S_T1} offen")
        g.vm(f"buffer_store_dwordx4 {vr(XS+4,4)}, v{VZERO}, {sr(R_WS,4)}, s{S_T1} offen offset:16")
        e("s_mov_b64 exec, -1")
    e(f"s_cmp_lg_u32 s{S_T0}, 31")
    e("s_cbranch_scc1 L_end")

    g.c("final combine")
    tst()
    OB = V_BUF
    WB = V_BUF + 64
    EB = V_ACC
    MX = V_ACC + 4
    M2 = V_ACC + 6
    N0 = V_ACC + 8
    N1 = V_ACC + 12
    ie = g.vm(f"buffer_load_dwordx4 {vr(EB,4)}, v{VEL}, {sr(R_WS,4)}, s{S_RECE} offen sc1")
    io = []

    def ldO(k):
        if k and k % 4 == 0:
            e(f"s_add_u32 s{S_REC}, s{S_REC}, 4096")
        io.append(g.vm(f"buffer_load_dwordx4 {vr(OB+4*k,4)}, v{VL16}, {sr(R_WS,4)}, s{S_REC} offen offset:{(k&3)*1024} sc1"))

    def reduce32(op, a, src=None):
        first = True
        for ctl in ("quad_perm:[1,0,3,2]", "quad_perm:[2,3,0,1]", "row_ror:4", "row_ror:8"):
            for r in range(2):
                sreg = (src + r) if (first and src is not None) else (a + r)
                e(f"v_{op}_f32_dpp v{a+r}, v{sreg}, v{sreg} {ctl} row_mask:0xf bank_mask:0xf")
            g.nop(1)
            first = False
        e(f"v_mov_b32 v{M2}, v{a}")
        e(f"v_mov_b32 v{M2+1}, v{a+1}")
        g.nop(1)
        e(f"v_permlane16_swap_b32 v{a}, v{M2}")
        e(f"v_permlane16_swap_b32 v{a+1}, v{M2+1}")
        e(f"v_{op}_f32 v{a}, v{a}, v{M2}")
        e(f"v_{op}_f32 v{a+1}, v{a+1}, v{M2+1}")

    for k in range(NFIRST):
        ldO(k)
    tst()
    g.wait_vm(ie)
    tst()
    reduce32("max", MX, EB)
    e(f"v_sub_f32 v{EB}, v{EB}, v{MX}")
    e(f"v_sub_f32 v{EB+1}, v{EB+1}, v{MX+1}")
    e(f"v_exp_f32 v{EB}, v{EB}")
    e(f"v_exp_f32 v{EB+1}, v{EB+1}")
    g.nop(1)
    e(f"ds_write_b64 v{VWW}, {vr(EB,2)} offset:{L_W}")
    e(f"v_pk_mul_f32 {vr(EB+2,2)}, {vr(EB+2,2)}, {vr(EB,2)}")
    for k in range(8):
        e(f"ds_read_b128 {vr(WB+4*k,4)}, v{VWR} offset:{L_W+k*32}")
    for k in range(NFIRST, 16):
        ldO(k)
    tst()
    reduce32("add", EB + 2)
    e(f"v_rcp_f32 v{EB+2}, v{EB+2}")
    e(f"v_rcp_f32 v{EB+3}, v{EB+3}")
    e("s_waitcnt lgkmcnt(0)")
    for k in range(16):
        g.wait_vm(io[k])
        if k == 8:
            e("s_waitcnt lgkmcnt(0)")
        N = N0 if k % 2 == 0 else N1
        Wk = WB + 4 * (k & 7)
        for hh in (0, 2):
            if k < 2:
                e(f"v_pk_mul_f32 {vr(N+hh,2)}, {vr(Wk+hh,2)}, {vr(OB+4*k+hh,2)}")
            else:
                e(f"v_pk_fma_f32 {vr(N+hh,2)}, {vr(Wk+hh,2)}, {vr(OB+4*k+hh,2)}, {vr(N+hh,2)}")
        if k < 8:
            e(f"ds_read_b128 {vr(Wk,4)}, v{VWR} offset:{L_W+(k+8)*32}")
    tst()
    e(f"v_pk_add_f32 {vr(N0,2)}, {vr(N0,2)}, {vr(N1,2)}")
    e(f"v_pk_add_f32 {vr(N0+2,2)}, {vr(N0+2,2)}, {vr(N1+2,2)}")
    g.nop(2)
    e(f"v_permlane32_swap_b32 v{N0}, v{N0+2}")
    e(f"v_permlane32_swap_b32 v{N0+1}, v{N0+3}")
    e(f"v_pk_add_f32 {vr(N0,2)}, {vr(N0,2)}, {vr(N0+2,2)}")
    e(f"v_pk_mul_f32 {vr(N0,2)}, {vr(N0,2)}, {vr(EB+2,2)}")
    e(f"v_cvt_pk_bf16_f32 v{N0}, v{N0}, v{N0+1}")
    g.vm(f"buffer_store_short v{N0}, v{VOUT}, {sr(R_OUT,4)}, s{S_QO} offen{outpol}")
    g.vm(f"buffer_store_short_d16_hi v{N0}, v{VOUT}, {sr(R_OUT,4)}, s{S_QO} offen offset:256{outpol}")
    if tail:
        tst()
        e("s_waitcnt vmcnt(0)")
        tst()
        e(f"s_lshl_b32 s{S_T1}, s{S_KVH}, 2")
        e(f"s_add_u32 s{S_T1}, s{S_T1}, s{S_WAVE}")
        e(f"s_lshl_b32 s{S_T1}, s{S_T1}, 6")
        e(f"s_add_u32 s{S_T1}, s{S_T1}, 0x300000")
        for k in range(16):
            e(f"v_mov_b32 v{V_BUF+k}, v{V_TSV+min(k, tcount[0]-1)}")
        e("s_mov_b64 exec, 1")
        for k in range(4):
            e(f"buffer_store_dwordx4 {vr(V_BUF+4*k,4)}, v{VZERO}, {sr(R_WS,4)}, s{S_T1} offen offset:{16*k}")
    if dbgtime or stamp:
        e(f"s_memrealtime {sr(S_TS+2,2)}")
        e("s_waitcnt lgkmcnt(0)")
        if dbgtime:
            e(f"s_sub_u32 s{S_T1}, s{S_TS+2}, s{S_TS}")
        else:
            e(f"s_mov_b32 s{S_T1}, s{S_TS+2}")
        e(f"v_mov_b32 v{T0}, s{S_T1}")
        e(f"s_lshl_b32 s{S_T2}, s{S_KVH}, 3")
        e(f"s_add_u32 s{S_T2}, s{S_T2}, 4")
        e("s_mov_b64 exec, 1")
        e(f"buffer_store_dword v{T0}, v{VZERO}, {sr(R_DBG,4)}, s{S_T2} offen")
    g.lab("L_end")
    e("s_endpgm")

    body_t = "\n".join(g.L)
    nv = (NV + 7) // 8 * 8
    text = HEADER + f"; @launch grid=(256,1,1) block=(256,1,1) lds={LDS}\n"
    text += f""".amdgcn_target "amdgcn-amd-amdhsa--gfx950"
.text
.globl {NAME}_kernel
.p2align 8
.type {NAME}_kernel,@function
{NAME}_kernel:
{body_t}
.section .rodata,"a"
.p2align 6
.amdhsa_kernel {NAME}_kernel
  .amdhsa_next_free_vgpr {nv}
  .amdhsa_next_free_sgpr {NSGPR}
  .amdhsa_accum_offset {nv}
  .amdhsa_group_segment_fixed_size 0
  .amdhsa_kernarg_size 80
  .amdhsa_user_sgpr_count 2
  .amdhsa_user_sgpr_kernarg_segment_ptr 1
  .amdhsa_system_sgpr_workgroup_id_x 1
  .amdhsa_float_denorm_mode_32 3
.end_amdhsa_kernel
"""
    return text


if __name__ == "__main__":
    ap = argparse.ArgumentParser()
    ap.add_argument("-o", default=f"cdna_kernels/{NAME}.s")
    ap.add_argument("--pol", default="nt")
    ap.add_argument("--NO", type=int, default=15)
    ap.add_argument("--PHI", type=int, default=16)
    ap.add_argument("--stamp", action="store_true")
    ap.add_argument("--dbgtime", action="store_true")
    ap.add_argument("--lds", type=int, default=90000)
    ap.add_argument("--polv", default=None)
    ap.add_argument("--tail", action="store_true")
    ap.add_argument("--NFIRST", type=int, default=10)
    ap.add_argument("--wmap", type=int, default=3)
    ap.add_argument("--PHIB", type=int, default=64)
    ap.add_argument("--outpol", default="")
    ap.add_argument("--earlyM", action="store_true")
    ap.add_argument("--tlbpf", type=int, default=0)
    ap.add_argument("--tailpf", type=int, default=0)
    ap.add_argument("--rot", type=int, default=0)
    ap.add_argument("--kfirst", type=int, default=8)
    ap.add_argument("--rowmaj", type=int, default=0)
    a = ap.parse_args()
    open(a.o, "w").write(gen(pol=a.pol, NO=a.NO, PHI=a.PHI, stamp=a.stamp, lds_force=a.lds, dbgtime=a.dbgtime, polv=a.polv, tail=a.tail, NFIRST=a.NFIRST, wmap=a.wmap, PHIB=a.PHIB, outpol=(' ' + a.outpol if a.outpol else ''), lateM=not a.earlyM, tlbpf=a.tlbpf, tailpf=a.tailpf, rot=a.rot, kfirst=a.kfirst, rowmaj=a.rowmaj))
    print("wrote", a.o)
```

```python
import sys, math, argparse
from gen import G, vr, sr, NAME, HEADER, f32bits

DOC = """; Algorithm (all reformulations are exact up to fp32 rounding):
"""


def gen(pol="nt", NO=15, PHI=16, PHIB=64, stamp=False, dbgtime=False, tail=False, NFIRST=10, lay=0, vspol="nt",
        vsat="kt", korder=0, inv=0):
    g = G()
    e = g.e
    pol = (" " + pol) if pol else ""
    vspol = (" " + vspol) if vspol else ""
    C = (128.0 ** -0.5) * math.log2(math.e)
    NE = 32 - NO
    assert NO % 2 == 1 and NO >= 3

    S_Q, S_QK, S_QV, S_KS, S_KZ, S_VS, S_VZ, S_OUT, S_DBG, S_WS = 4, 6, 8, 10, 12, 14, 16, 18, 20, 22
    R_K, R_V, R_VS, R_VZ, R_Q, R_KS, R_KZ, R_OUT, R_WS, R_DBG = 24, 28, 32, 36, 40, 44, 48, 52, 56, 60
    S_STRM, S_SPLIT, S_KVH, S_WAVE, S_C, S_MASK = 64, 65, 66, 67, 68, 69
    S_BKV, S_BVS, S_OFF, S_R, S_N, S_X = 70, 71, 73, 75, 76, 77
    S_T0, S_T1 = 78, 79
    S_ODD = 80
    S_QO = 82
    S_T2 = 83
    S_TS = 84
    S_REC, S_RECE, S_OWN, S_OWNE, S_CTR = 94, 95, 96, 97, 98
    NSGPR = 102

    V_LANE, V_KO, V_VO, V_SA, V_WV, V_G, V_N, V_H = 1, 2, 3, 4, 5, 6, 7, 8
    V_LS = 9
    V_M, V_L = 10, 11
    V_T = 12
    V_QB = 20
    V_NC = 28
    V_D = 32
    V_S = 40
    V_PA = 44
    V_KO2, V_VO2 = 46, 47
    V_SZ = 48
    V_PK = 56
    V_ACC = 72
    V_Z = 104
    V_BUF = 108
    V_TSV = V_BUF + 96
    NV = V_BUF + 96 + (16 if tail else 0)

    tcount = [0]

    def tst():
        if tail:
            k = tcount[0]
            tcount[0] += 1
            e("s_memtime s[100:101]")
            e("s_waitcnt lgkmcnt(0)")
            e(f"v_mov_b32 v{V_TSV+k}, s100")

    L_QS = 0
    L_KZ = 2048
    L_ML = 2304
    L_FLAG = 2368
    L_ST = 2432
    L_W = 2560
    L_O = 4608
    L_SZ = L_O + 4 * 6144
    L_S = L_SZ + 4 * 2048
    LDS = L_S + 4 * NE * 1024
    assert 81920 < LDS <= 160 * 1024 and L_S < 65536

    WS_E = 32 * 16384

    T0, T1, T2, T3, T4, T5, T6, T7 = range(V_T, V_T + 8)

    e("s_cmp_ge_u32 s2, 256")
    e("s_cbranch_scc1 L_end")
    e("s_load_dwordx16 s[4:19], s[0:1], 0")
    e("s_load_dwordx4 s[20:23], s[0:1], 64")
    if stamp or dbgtime:
        e(f"s_memrealtime {sr(S_TS,2)}")
    e(f"v_and_b32 v{V_LANE}, 63, v0")
    e(f"v_lshrrev_b32 v{V_WV}, 6, v0")
    e(f"v_lshrrev_b32 v{V_G}, 4, v{V_LANE}")
    e(f"v_and_b32 v{V_N}, 15, v{V_LANE}")
    e(f"v_and_b32 v{V_H}, 3, v{V_LANE}")
    e(f"v_readfirstlane_b32 s{S_WAVE}, v{V_WV}")
    g.c("K lane offset: MFMA row m=(g',r1,hf) -> token row, 64B half hf, 16B chunk g (whole 128B lines per load)")
    if lay == 2:
        e(f"v_and_b32 v{T0}, 1, v{V_WV}")
        e(f"v_lshlrev_b32 v{V_VO}, 10, v{T0}")
        e(f"v_lshrrev_b32 v{T0}, 1, v{V_WV}")
        e(f"v_lshl_add_u32 v{V_VO}, v{T0}, 14, v{V_VO}")
        e(f"v_lshrrev_b32 v{T0}, 2, v{V_N}")
        e(f"v_lshl_add_u32 v{V_KO}, v{T0}, 11, v{V_VO}")
        e(f"v_bfe_u32 v{T0}, v{V_N}, 1, 1")
        e(f"v_lshl_add_u32 v{V_KO}, v{T0}, 9, v{V_KO}")
    else:
        e(f"v_lshlrev_b32 v{V_KO}, 13, v{V_WV}")
        e(f"v_lshrrev_b32 v{T0}, 2, v{V_N}")
        e(f"v_lshl_add_u32 v{V_KO}, v{T0}, 11, v{V_KO}")
        e(f"v_bfe_u32 v{T0}, v{V_N}, 1, 1")
        e(f"v_lshl_add_u32 v{V_KO}, v{T0}, 9, v{V_KO}")
    e(f"v_and_b32 v{T7}, 1, v{V_N}")
    e(f"v_lshl_add_u32 v{V_KO}, v{T7}, 6, v{V_KO}")
    e(f"v_lshl_add_u32 v{V_KO}, v{V_G}, 4, v{V_KO}")
    if lay:
        e(f"v_add_u32 v{V_KO2}, 0x2000, v{V_KO}")
    e(f"v_lshlrev_b32 v{T0}, 2, v0")
    e(f"v_lshlrev_b32 v{T1}, 2, v{V_LANE}")
    g.c("stream (kv head, scale group) = ((wg>>1)&3)*4 + (wg>>6); slot j = (wg>>3)&7; parity = wg&1")
    e(f"s_bfe_u32 s{S_STRM}, s2, 0x20001")
    e(f"s_lshr_b32 s{S_T0}, s2, 6")
    e(f"s_lshl_b32 s{S_STRM}, s{S_STRM}, 2")
    e(f"s_add_u32 s{S_STRM}, s{S_STRM}, s{S_T0}")
    e(f"s_bfe_u32 s{S_SPLIT}, s2, 0x30003")
    e(f"s_lshr_b32 s{S_KVH}, s{S_STRM}, 1")
    e(f"s_lshl_b32 s{S_BKV}, s{S_STRM}, 23")
    g.c("64-token block of round r: (phase + parity*NE*8 + j + 8r) mod 256")
    e(f"s_mul_i32 s{S_X}, s{S_KVH}, {PHI}")
    e(f"s_add_u32 s{S_X}, s{S_X}, s{S_SPLIT}")
    e(f"s_and_b32 s{S_T1}, s{S_STRM}, 1")
    e(f"s_mul_i32 s{S_T0}, s{S_T1}, {PHIB}")
    e(f"s_add_u32 s{S_X}, s{S_X}, s{S_T0}")
    e(f"s_lshl_b32 s{S_T1}, s{S_T1}, 4")
    e(f"s_add_u32 s{S_SPLIT}, s{S_SPLIT}, s{S_T1}")
    e(f"s_and_b32 s{S_T1}, s2, 1")
    if inv:
        e(f"s_xor_b32 s{S_T1}, s{S_T1}, 1")
    e(f"s_cselect_b32 s{S_N}, {NO}, {NE}")
    e(f"s_mul_i32 s{S_T0}, s{S_T1}, {NE*8}")
    e(f"s_add_u32 s{S_X}, s{S_X}, s{S_T0}")
    e(f"s_lshl_b32 s{S_T1}, s{S_T1}, 3")
    e(f"s_add_u32 s{S_SPLIT}, s{S_SPLIT}, s{S_T1}")

    def offsets():
        e(f"s_lshl_b32 s{S_T0}, s{S_R}, 3")
        e(f"s_add_u32 s{S_T0}, s{S_T0}, s{S_X}")
        e(f"s_and_b32 s{S_T0}, s{S_T0}, 255")
        e(f"s_lshl_b32 s{S_OFF}, s{S_T0}, 15")
        e(f"s_add_u32 s{S_OFF}, s{S_OFF}, s{S_BKV}")
        e(f"s_add_u32 s{S_R}, s{S_R}, 1")

    e(f"s_mov_b32 s{S_R}, 0")
    offsets()
    e(f"s_lshl_b32 s{S_QO}, s{S_KVH}, 10")
    e(f"s_lshl_b32 s{S_T2}, s{S_STRM}, 8")
    for r, n in ((R_K, 1 << 27), (R_Q, 8192), (R_KS, 4096), (R_KZ, 4096)):
        e(f"s_mov_b32 s{r+2}, 0x{n:x}")
        e(f"s_mov_b32 s{r+3}, 0x00020000")
    e("s_waitcnt lgkmcnt(0)")
    e(f"s_mov_b32 s{R_K}, s{S_QK}")
    e(f"s_mov_b32 s{R_K+1}, s{S_QK+1}")

    def ldK(buf, k):
        a, c = ((k >> 1) & 1, (k >> 2) * 2 + (k & 1)) if korder else (k >> 2, k & 3)
        if lay:
            return g.vm(f"buffer_load_dwordx4 {vr(V_BUF+32*buf+4*k,4)}, v{V_KO2 if a else V_KO}, {sr(R_K,4)}, s{S_OFF} offen offset:{c*128}{pol}")
        return g.vm(f"buffer_load_dwordx4 {vr(V_BUF+32*buf+4*k,4)}, v{V_KO}, {sr(R_K,4)}, s{S_OFF} offen offset:{a*1024+c*128}{pol}")

    def ldV(buf, k):
        hv, i = k >> 2, k & 3
        if lay:
            return g.vm(f"buffer_load_dwordx4 {vr(V_BUF+32*buf+4*k,4)}, v{V_VO2 if i >> 1 else V_VO}, {sr(R_V,4)}, s{S_OFF} offen offset:{(i&1)*512+hv*256}{pol}")
        return g.vm(f"buffer_load_dwordx4 {vr(V_BUF+32*buf+4*k,4)}, v{V_VO}, {sr(R_V,4)}, s{S_OFF} offen offset:{i*512+hv*256}{pol}")

    for k in range(8):
        ldK(0, k)
    for r, p in ((R_Q, S_Q), (R_KS, S_KS), (R_KZ, S_KZ)):
        e(f"s_mov_b32 s{r}, s{p}")
        e(f"s_mov_b32 s{r+1}, s{p+1}")
    g.vm(f"buffer_load_dword v{T2}, v{T0}, {sr(R_Q,4)}, s{S_QO} offen")
    g.vm(f"buffer_load_dword v{T3}, v{T1}, {sr(R_KS,4)}, s{S_T2} offen")
    i_kz = g.vm(f"buffer_load_dword v{T4}, v{T1}, {sr(R_KZ,4)}, s{S_T2} offen")
    offsets()
    for k in range(8):
        ldK(1, k)

    for r, n in ((R_V, 1 << 27), (R_VS, 1 << 19), (R_VZ, 1 << 19), (R_OUT, 8192), (R_WS, 1 << 29), (R_DBG, 256)):
        e(f"s_mov_b32 s{r+2}, 0x{n:x}")
        e(f"s_mov_b32 s{r+3}, 0x00020000")
    for r, p in ((R_V, S_QV), (R_VS, S_VS), (R_VZ, S_VZ), (R_OUT, S_OUT), (R_WS, S_WS), (R_DBG, S_DBG)):
        e(f"s_mov_b32 s{r}, s{p}")
        e(f"s_mov_b32 s{r+1}, s{p+1}")
    e(f"s_mov_b32 s{S_C}, 0x{f32bits(C):08x}")
    e(f"s_mov_b32 s{S_MASK}, 0xffff0000")
    e(f"s_lshl_b32 s{S_BVS}, s{S_STRM}, 15")
    g.c("V lane offset: token group g, 16B column chunk n")
    if not lay:
        e(f"v_lshlrev_b32 v{V_VO}, 13, v{V_WV}")
    e(f"v_lshl_add_u32 v{V_VO}, v{V_G}, 11, v{V_VO}")
    e(f"v_lshl_add_u32 v{V_VO}, v{V_N}, 4, v{V_VO}")
    if lay:
        e(f"v_add_u32 v{V_VO2}, 0x2000, v{V_VO}")
    g.c("bulk vs/vz offset: lane = (round, 16B half)")
    e(f"v_lshrrev_b32 v{T5}, 1, v{V_LANE}")
    e(f"v_lshlrev_b32 v{T5}, 3, v{T5}")
    e(f"v_add_u32 v{T5}, s{S_X}, v{T5}")
    e(f"v_and_b32 v{T5}, 255, v{T5}")
    e(f"v_lshlrev_b32 v{V_SA}, 7, v{T5}")
    e(f"v_lshl_add_u32 v{V_SA}, v{V_WV}, 5, v{V_SA}")
    e(f"v_lshl_add_u32 v{V_SA}, v{T7}, 4, v{V_SA}")
    e(f"v_and_b32 v{T5}, 8, v{V_LANE}")
    e(f"v_cmp_ne_u32 {sr(S_ODD,2)}, 0, v{T5}")
    e(f"v_and_b32 v{T6}, 4, v{V_LANE}")
    e(f"v_mov_b32 v{V_M}, 0xff7fffff")
    e(f"v_mov_b32 v{V_L}, 0")
    for x in range(36):
        e(f"v_mov_b32 v{V_ACC+x}, 0")
    e(f"v_mul_u32_u24 v{V_LS}, {NE*1024}, v{V_WV}")
    e(f"v_lshl_add_u32 v{V_LS}, v{V_LANE}, 4, v{V_LS}")
    e(f"v_lshlrev_b32 v{T5}, 7, v{T5}")
    e(f"v_lshl_add_u32 v{T5}, v{V_H}, 8, v{T5}")
    e(f"v_lshl_add_u32 v{T5}, v{T6}, 3, v{T5}")
    e(f"v_lshl_add_u32 v{T5}, v{V_G}, 3, v{T5}")
    e(f"v_lshlrev_b32 v{T7}, 5, v{T7}")
    e(f"v_lshl_add_u32 v{T7}, v{V_G}, 3, v{T7}")
    e(f"s_mov_b32 s{S_T0}, 0x07060302")
    g.c("q*ks (exact in fp32) split into bf16 high/low parts")
    g.wait_vm(i_kz)
    A0, A1, B0, B1 = V_D, V_D + 1, V_D + 2, V_D + 3
    e(f"v_lshlrev_b32 v{A0}, 16, v{T2}")
    e(f"v_and_b32 v{A1}, s{S_MASK}, v{T2}")
    e(f"v_lshlrev_b32 v{B0}, 16, v{T3}")
    e(f"v_and_b32 v{B1}, s{S_MASK}, v{T3}")
    e(f"v_mul_f32 v{A0}, v{A0}, v{B0}")
    e(f"v_mul_f32 v{A1}, v{A1}, v{B1}")
    e(f"v_and_b32 v{B0}, s{S_MASK}, v{A0}")
    e(f"v_and_b32 v{B1}, s{S_MASK}, v{A1}")
    e(f"v_sub_f32 v{B0}, v{A0}, v{B0}")
    e(f"v_sub_f32 v{B1}, v{A1}, v{B1}")
    e(f"v_perm_b32 v{A0}, v{A1}, v{A0}, s{S_T0}")
    e(f"v_perm_b32 v{B0}, v{B1}, v{B0}, s{S_T0}")
    e(f"ds_write_b32 v{T0}, v{A0} offset:{L_QS}")
    e(f"ds_write_b32 v{T0}, v{B0} offset:{L_QS+1024}")
    e(f"ds_write_b32 v{T1}, v{T4} offset:{L_KZ}")
    e("s_waitcnt lgkmcnt(0)")
    e("s_barrier")
    for c in range(4):
        e(f"ds_read_b64 {vr(V_QB+2*c,2)}, v{T5} offset:{L_QS+64*c}")
    for c in range(4):
        e(f"ds_read_b64 {vr(V_PK+2*c,2)}, v{T7} offset:{L_KZ+64*c}")
    e("s_waitcnt lgkmcnt(0)")
    for ee in range(2):
        e(f"v_mfma_f32_16x16x32_bf16 {vr(V_NC,4)}, {vr(V_PK+4*ee,4)}, {vr(V_QB+4*ee,4)}, {'0' if ee == 0 else vr(V_NC,4)}")
    g.nop(10)
    for r in range(4):
        e(f"v_xor_b32 v{V_NC+r}, 0x80000000, v{V_NC+r}")

    def ld_bulk():
        e(f"s_lshl_b32 s{S_T0}, s{S_N}, 1")
        e(f"v_cmp_gt_u32 vcc, s{S_T0}, v{V_LANE}")
        g.nop(1)
        e("s_mov_b64 exec, vcc")
        g.vm(f"buffer_load_dwordx4 {vr(V_SZ,4)}, v{V_SA}, {sr(R_VS,4)}, s{S_BVS} offen{vspol}")
        g.vm(f"buffer_load_dwordx4 {vr(V_SZ+4,4)}, v{V_SA}, {sr(R_VZ,4)}, s{S_BVS} offen{vspol}")
        e("s_mov_b64 exec, -1")

    if vsat == "start":
        ld_bulk()

    def issue_pair(buf, nxt, k0):
        if nxt == "K":
            ldK(buf, k0)
            ldK(buf, k0 + 1)
        elif nxt == "V":
            ldV(buf, k0)
            ldV(buf, k0 + 1)

    def bodyK(buf, nxt, younger=8):
        g.issued = 8 + younger
        g.known_done = 0
        offsets()
        B = V_BUF + 32 * buf
        for p in range(4):
            a, ee = (p & 1, p >> 1) if korder else (p >> 1, p & 1)
            k0, k1 = 2 * p, 2 * p + 1
            b0, b1 = B + 4 * k0, B + 4 * k1
            pk = V_PK + 4 * (p & 1)
            g.wait_vm(k0)
            for k in range(4):
                e(f"v_cvt_f32_i32 v{b0+k}, v{b0+k}")
            g.wait_vm(k1)
            for k in range(4):
                e(f"v_cvt_f32_i32 v{b1+k}, v{b1+k}")
            e(f"v_cvt_pk_bf16_f32 v{pk}, v{b0}, v{b0+1}")
            e(f"v_cvt_pk_bf16_f32 v{pk+1}, v{b0+2}, v{b0+3}")
            e(f"v_cvt_pk_bf16_f32 v{pk+2}, v{b1}, v{b1+1}")
            e(f"v_cvt_pk_bf16_f32 v{pk+3}, v{b1+2}, v{b1+3}")
            issue_pair(buf, nxt, k0)
            e(f"v_mfma_f32_16x16x32_bf16 {vr(V_D+4*a,4)}, {vr(pk,4)}, {vr(V_QB+4*ee,4)}, {vr(V_NC,4) if ee == 0 else vr(V_D+4*a,4)}")
        e(f"v_add_f32_dpp v{V_S}, v{V_D+1}, v{V_D} row_ror:4 row_mask:0xf bank_mask:0xf")
        e(f"v_add_f32_dpp v{V_S+1}, v{V_D+3}, v{V_D+2} row_ror:4 row_mask:0xf bank_mask:0xf")
        g.nop(1)
        e(f"v_add_f32_dpp v{V_S}, v{V_S}, v{V_S} row_ror:8 row_mask:0xf bank_mask:0xf")
        e(f"v_add_f32_dpp v{V_S+1}, v{V_S+1}, v{V_S+1} row_ror:8 row_mask:0xf bank_mask:0xf")
        e(f"v_max3_f32 v{V_M}, v{V_M}, v{V_S}, v{V_S+1}")
        g.nop(3)
        e(f"v_add_f32_dpp v{V_S+2}, v{V_D+5}, v{V_D+4} row_ror:4 row_mask:0xf bank_mask:0xf")
        e(f"v_add_f32_dpp v{V_S+3}, v{V_D+7}, v{V_D+6} row_ror:4 row_mask:0xf bank_mask:0xf")
        g.nop(1)
        e(f"v_add_f32_dpp v{V_S+2}, v{V_S+2}, v{V_S+2} row_ror:8 row_mask:0xf bank_mask:0xf")
        e(f"v_add_f32_dpp v{V_S+3}, v{V_S+3}, v{V_S+3} row_ror:8 row_mask:0xf bank_mask:0xf")
        e(f"ds_write_b128 v{V_LS}, {vr(V_S,4)} offset:{L_S}")
        e(f"v_max3_f32 v{V_M}, v{V_M}, v{V_S+2}, v{V_S+3}")
        e(f"v_add_u32 v{V_LS}, 1024, v{V_LS}")

    def bodyV(buf, nxt, younger=8, last=None):
        g.issued = 8 + younger
        g.known_done = 0
        B = V_BUF + 32 * buf
        e(f"ds_read_b128 {vr(V_S,4)}, v{V_LS} offset:{L_S}")
        if lay:
            e(f"ds_read2_b32 {vr(V_SZ,2)}, v{V_SA} offset0:0 offset1:8")
            e(f"ds_read2_b32 {vr(V_SZ+2,2)}, v{V_SA} offset0:32 offset1:40")
        else:
            e(f"ds_read2_b64 {vr(V_SZ,4)}, v{V_SA} offset0:0 offset1:16")
        if nxt:
            offsets()
        e(f"v_add_u32 v{V_LS}, 1024, v{V_LS}")
        e(f"v_add_u32 v{V_SA}, 256, v{V_SA}")
        X0, X1, X2, X3 = T4, T5, T6, T7
        e("s_waitcnt lgkmcnt(0)")
        for i in range(4):
            e(f"v_fma_f32 v{V_S+i}, v{V_S+i}, s{S_C}, -v{V_M}")
        for i in range(4):
            e(f"v_exp_f32 v{V_S+i}, v{V_S+i}")
        e(f"v_lshlrev_b32 v{X0}, 16, v{V_SZ}")
        e(f"v_and_b32 v{X1}, s{S_MASK}, v{V_SZ}")
        e(f"v_lshlrev_b32 v{X2}, 16, v{V_SZ+1}")
        e(f"v_and_b32 v{X3}, s{S_MASK}, v{V_SZ+1}")
        e(f"v_add_f32 v{T0}, v{V_S}, v{V_S+1}")
        e(f"v_mul_f32 v{X0}, v{X0}, v{V_S}")
        e(f"v_add_f32 v{T1}, v{V_S+2}, v{V_S+3}")
        e(f"v_mul_f32 v{X1}, v{X1}, v{V_S+1}")
        e(f"v_mul_f32 v{X2}, v{X2}, v{V_S+2}")
        e(f"v_mul_f32 v{X3}, v{X3}, v{V_S+3}")
        e(f"v_add_f32 v{V_L}, v{V_L}, v{T0}")
        for i, X in enumerate((X0, X1, X2, X3)):
            e(f"v_and_b32 v{V_S+i}, s{S_MASK}, v{X}")
        e(f"v_add_f32 v{V_L}, v{V_L}, v{T1}")
        for i, X in enumerate((X0, X1, X2, X3)):
            e(f"v_sub_f32 v{X}, v{X}, v{V_S+i}")
        for i, X in enumerate((X0, X1, X2, X3)):
            e(f"v_cndmask_b32 v{X}, v{V_S+i}, v{X}, {sr(S_ODD,2)}")
        e(f"v_cvt_pk_bf16_f32 v{V_PA}, v{X0}, v{X1}")
        e(f"v_cvt_pk_bf16_f32 v{V_PA+1}, v{X2}, v{X3}")
        g.nop(2)
        e(f"v_mfma_f32_16x16x16_bf16 {vr(V_Z,4)}, {vr(V_PA,2)}, {vr(V_SZ+2,2)}, {vr(V_Z,4)}")
        if last:
            last("stats")
        for p in range(4):
            hv, q = p >> 1, p & 1
            k0, k1 = 2 * p, 2 * p + 1
            b0, b1 = B + 4 * k0, B + 4 * k1
            pk = V_PK + 8 * hv
            g.wait_vm(k0)
            for k in range(4):
                e(f"v_cvt_f32_i32 v{b0+k}, v{b0+k}")
            g.wait_vm(k1)
            for k in range(4):
                e(f"v_cvt_f32_i32 v{b1+k}, v{b1+k}")
            for j in range(4):
                e(f"v_cvt_pk_bf16_f32 v{pk+2*j+q}, v{b0+j}, v{b1+j}")
            issue_pair(buf, nxt, k0)
            if last and p == 2:
                last("half")
            if q == 1:
                if not nxt:
                    g.nop(1)
                for j in range(4):
                    acc = V_ACC + 4 * (hv * 4 + j)
                    e(f"v_mfma_f32_16x16x16_bf16 {vr(acc,4)}, {vr(V_PA,2)}, {vr(pk+2*j,2)}, {vr(acc,4)}")

    g.c("---- K phase (s75 = units issued so far, two units in flight)")
    g.lab("L_k")
    bodyK(0, "K")
    e(f"s_cmp_ge_u32 s{S_R}, s{S_N}")
    e("s_cbranch_scc1 L_kt")
    bodyK(1, "K")
    e("s_branch L_k")
    g.lab("L_kt")
    e(f"s_mov_b32 s{S_R}, 0")
    if vsat == "kt":
        g.issued = 16
        g.known_done = 0
        ld_bulk()
        bodyK(1, "V", younger=10)
        bodyK(0, "V", younger=10)
    else:
        bodyK(1, "V")
        bodyK(0, "V")
    if stamp:
        e(f"s_memrealtime {sr(S_TS+8,2)}")

    g.c("---- workgroup maximum; park vs/vz in LDS; epilogue addresses")
    e(f"v_mov_b32 v{T1}, v{V_M}")
    e(f"v_lshlrev_b32 v{T2}, 2, v{V_WV}")
    e(f"v_lshl_add_u32 v{T2}, v{V_H}, 4, v{T2}")
    e(f"v_permlane16_swap_b32 v{V_M}, v{T1}")
    e(f"v_max_f32 v{V_M}, v{V_M}, v{T1}")
    e(f"v_mov_b32 v{T1}, v{V_M}")
    e(f"v_lshlrev_b32 v{T3}, 4, v{V_H}")
    e(f"v_mul_u32_u24 v{V_LS}, {NE*1024}, v{V_WV}")
    e(f"v_permlane32_swap_b32 v{V_M}, v{T1}")
    e(f"v_max_f32 v{V_M}, v{V_M}, v{T1}")
    e(f"v_lshl_add_u32 v{V_LS}, v{V_LANE}, 4, v{V_LS}")
    e("s_mov_b64 exec, 0xf")
    e(f"ds_write_b32 v{T2}, v{V_M} offset:{L_ML}")
    e("s_mov_b64 exec, -1")
    e(f"v_lshrrev_b32 v{T4}, 1, v{V_LANE}")
    e(f"v_lshlrev_b32 v{T4}, 8, v{T4}")
    e(f"v_and_b32 v{T5}, 1, v{V_LANE}")
    e(f"v_lshl_add_u32 v{T4}, v{T5}, 4, v{T4}")
    e(f"v_lshl_add_u32 v{T4}, v{V_WV}, 5, v{T4}")
    if lay:
        e(f"v_and_b32 v{T5}, 1, v{V_WV}")
        e(f"v_lshlrev_b32 v{V_SA}, 2, v{T5}")
        e(f"v_lshrrev_b32 v{T5}, 1, v{V_WV}")
        e(f"v_lshl_add_u32 v{V_SA}, v{T5}, 6, v{V_SA}")
    else:
        e(f"v_lshlrev_b32 v{V_SA}, 5, v{V_WV}")
    e(f"v_lshl_add_u32 v{V_SA}, v{V_G}, 3, v{V_SA}")
    e(f"v_add_u32 v{V_SA}, {L_SZ}, v{V_SA}")
    e("s_waitcnt vmcnt(16)")
    e(f"ds_write_b128 v{T4}, {vr(V_SZ,4)} offset:{L_SZ}")
    e(f"ds_write_b128 v{T4}, {vr(V_SZ+4,4)} offset:{L_SZ+128}")
    VAW, VRD, VST, VSO2, VHB8, VE = V_QB, V_QB + 1, V_QB + 2, V_QB + 3, V_QB + 4, V_QB + 5
    VL16, VWW, VWR, VOUT, VZERO, VEL = V_QB + 6, V_QB + 7, V_NC, V_NC + 1, V_NC + 2, V_NC + 3
    U4, U5, U6 = V_D + 4, V_D + 5, V_D + 6
    e(f"v_lshrrev_b32 v{T0}, 5, v{V_LANE}")
    e(f"v_mul_u32_u24 v{VAW}, 6144, v{V_WV}")
    e(f"v_mul_u32_u24 v{T1}, 3072, v{T0}")
    e(f"v_add_u32 v{VAW}, v{VAW}, v{T1}")
    e(f"v_lshl_add_u32 v{VAW}, v{V_N}, 4, v{VAW}")
    e(f"v_bfe_u32 v{U4}, v{V_LANE}, 3, 2")
    e(f"v_and_b32 v{U5}, 7, v{V_LANE}")
    e(f"v_lshrrev_b32 v{U6}, 1, v{V_WV}")
    e(f"v_lshl_add_u32 v{U6}, v{U6}, 2, v{U4}")
    e(f"v_mul_u32_u24 v{VRD}, 384, v{U6}")
    e(f"v_add_u32 v{VRD}, v{VRD}, v{T1}")
    e(f"v_and_b32 v{U6}, 1, v{V_WV}")
    e(f"v_lshl_add_u32 v{VRD}, v{U6}, 7, v{VRD}")
    e(f"v_lshl_add_u32 v{VRD}, v{U5}, 4, v{VRD}")
    e(f"v_lshrrev_b32 v{U6}, 1, v{V_H}")
    e(f"v_lshlrev_b32 v{VE}, 4, v{U6}")
    e(f"v_and_b32 v{U6}, 1, v{V_H}")
    e(f"v_lshl_add_u32 v{VE}, v{U6}, 2, v{VE}")
    e(f"v_lshl_add_u32 v{VST}, v{V_WV}, 5, v{VE}")
    e(f"v_lshlrev_b32 v{VHB8}, 4, v{T0}")
    e(f"v_and_b32 v{U6}, 31, v{V_LANE}")
    e(f"v_lshlrev_b32 v{VSO2}, 4, v{U6}")
    e(f"v_lshl_add_u32 v{VSO2}, v{T0}, 3, v{VSO2}")
    e(f"v_lshlrev_b32 v{VL16}, 4, v{V_LANE}")
    e(f"v_lshl_add_u32 v{VWW}, v{V_WV}, 9, v{VSO2}")
    e(f"v_lshl_add_u32 v{VWR}, v{V_WV}, 9, v{VHB8}")
    e(f"v_lshl_add_u32 v{VOUT}, v{U5}, 2, v{U4}")
    e(f"v_lshlrev_b32 v{VOUT}, 1, v{VOUT}")
    e(f"v_lshl_add_u32 v{VOUT}, v{T0}, 9, v{VOUT}")
    e(f"v_lshl_add_u32 v{VEL}, v{U6}, 5, v{VHB8}")
    e(f"v_mov_b32 v{VZERO}, 0")
    e(f"s_lshl_b32 s{S_T0}, s{S_KVH}, 2")
    e(f"s_add_u32 s{S_T0}, s{S_T0}, s{S_WAVE}")
    e(f"s_lshl_b32 s{S_REC}, s{S_T0}, 14")
    e(f"s_lshl_b32 s{S_OWN}, s{S_SPLIT}, 9")
    e(f"s_add_u32 s{S_OWN}, s{S_OWN}, s{S_REC}")
    e(f"s_lshl_b32 s{S_RECE}, s{S_KVH}, 10")
    e(f"s_add_u32 s{S_RECE}, s{S_RECE}, {WS_E}")
    e(f"s_lshl_b32 s{S_OWNE}, s{S_SPLIT}, 5")
    e(f"s_add_u32 s{S_OWNE}, s{S_OWNE}, s{S_RECE}")
    e(f"s_lshl_b32 s{S_CTR}, s{S_KVH}, 5")
    e(f"s_lshl_b32 s{S_T0}, s{S_WAVE}, 6")
    e(f"s_add_u32 s{S_QO}, s{S_QO}, s{S_T0}")
    e("s_waitcnt lgkmcnt(0)")
    e("s_barrier")
    e(f"ds_read_b128 {vr(V_D,4)}, v{T3} offset:{L_ML}")
    e("s_waitcnt lgkmcnt(0)")
    g.c("lanes of unused MFMA columns keep their own max in the mix so their exps stay <= 1")
    e(f"v_max3_f32 v{V_M}, v{V_M}, v{V_D}, v{V_D+1}")
    e(f"v_max3_f32 v{V_M}, v{V_M}, v{V_D+2}, v{V_D+3}")
    e(f"v_mul_f32 v{V_M}, s{S_C}, v{V_M}")
    e(f"s_cmp_lg_u32 s{S_WAVE}, 0")
    e("s_cbranch_scc1 L_v")
    e("s_mov_b64 exec, 0xf")
    e(f"ds_write_b32 v{VE}, v{V_M} offset:{L_FLAG+16}")
    e("s_mov_b64 exec, -1")

    g.c("---- V phase")
    g.lab("L_v")
    bodyV(1, "V")
    e(f"s_cmp_ge_u32 s{S_R}, s{S_N}")
    e("s_cbranch_scc1 L_vt")
    bodyV(0, "V")
    e("s_branch L_v")
    g.lab("L_vt")
    bodyV(0, None)

    def last(what):
        if what == "stats":
            e(f"v_mov_b32 v{T1}, v{V_L}")
            g.nop(2)
            e(f"v_permlane16_swap_b32 v{V_L}, v{T1}")
            e(f"v_add_f32 v{V_L}, v{V_L}, v{T1}")
            e(f"v_mov_b32 v{T1}, v{V_L}")
            g.nop(2)
            e(f"v_permlane32_swap_b32 v{V_L}, v{T1}")
            e(f"v_add_f32 v{V_L}, v{V_L}, v{T1}")
            e(f"v_permlane32_swap_b32 v{V_Z}, v{V_Z+2}")
            e(f"v_permlane32_swap_b32 v{V_Z+1}, v{V_Z+3}")
            e(f"v_lshl_add_u32 v{T0}, v{V_WV}, 5, v{VHB8}")
            e(f"v_pk_add_f32 {vr(V_Z,2)}, {vr(V_Z,2)}, {vr(V_Z+2,2)}")
            e("s_mov_b64 exec, 0xf")
            e(f"ds_write_b32 v{VST}, v{V_L} offset:{L_ST}")
            e("s_mov_b32 exec_lo, 1")
            e("s_mov_b32 exec_hi, 1")
            e(f"ds_write_b64 v{T0}, {vr(V_Z,2)} offset:{L_ST+8}")
            e("s_mov_b64 exec, -1")
            e(f"ds_read_b64 {vr(V_D,2)}, v{VHB8} offset:{L_FLAG+16}")
        else:
            e("s_mov_b32 exec_lo, 0xffff")
            e("s_mov_b32 exec_hi, 0xffff")
            for blk in range(4):
                e(f"ds_write_b128 v{VAW}, {vr(V_ACC+4*blk,4)} offset:{L_O+blk*384}")
            e("s_mov_b64 exec, -1")

    bodyV(1, None, younger=0, last=last)

    g.c("---- workgroup reduce, publish partial (write-through), arrive")
    tst()
    if stamp:
        e(f"s_memrealtime {sr(S_TS+2,2)}")
    e("s_mov_b32 exec_lo, 0xffff")
    e("s_mov_b32 exec_hi, 0xffff")
    g.nop(4)
    for blk in range(4, 8):
        e(f"ds_write_b128 v{VAW}, {vr(V_ACC+4*blk,4)} offset:{L_O+blk*384}")
    e("s_mov_b64 exec, -1")
    e("s_waitcnt lgkmcnt(0)")
    e("s_barrier")
    tst()
    RB = V_BUF
    SB = V_BUF + 16
    for w in range(4):
        e(f"ds_read_b128 {vr(RB+4*w,4)}, v{VRD} offset:{L_O+w*6144}")
    for w in range(4):
        e(f"ds_read_b128 {vr(SB+4*w,4)}, v{VHB8} offset:{L_ST+w*32}")
    e("s_waitcnt lgkmcnt(6)")
    e(f"v_pk_add_f32 {vr(RB,2)}, {vr(RB,2)}, {vr(RB+4,2)}")
    e(f"v_pk_add_f32 {vr(RB+2,2)}, {vr(RB+2,2)}, {vr(RB+6,2)}")
    e("s_waitcnt lgkmcnt(4)")
    e(f"v_pk_add_f32 {vr(RB+8,2)}, {vr(RB+8,2)}, {vr(RB+12,2)}")
    e(f"v_pk_add_f32 {vr(RB+10,2)}, {vr(RB+10,2)}, {vr(RB+14,2)}")
    e(f"v_pk_add_f32 {vr(RB,2)}, {vr(RB,2)}, {vr(RB+8,2)}")
    e(f"v_pk_add_f32 {vr(RB+2,2)}, {vr(RB+2,2)}, {vr(RB+10,2)}")
    e("s_waitcnt lgkmcnt(0)")
    e(f"v_pk_add_f32 {vr(SB+2,2)}, {vr(SB+2,2)}, {vr(SB+6,2)}")
    e(f"v_pk_add_f32 {vr(SB+10,2)}, {vr(SB+10,2)}, {vr(SB+14,2)}")
    e(f"v_permlane32_swap_b32 v{RB}, v{RB+2}")
    e(f"v_permlane32_swap_b32 v{RB+1}, v{RB+3}")
    e(f"v_pk_add_f32 {vr(SB+2,2)}, {vr(SB+2,2)}, {vr(SB+10,2)}")
    e(f"v_pk_add_f32 {vr(RB,2)}, {vr(RB,2)}, {vr(RB+2,2)}")
    e(f"v_pk_add_f32 {vr(SB,2)}, {vr(SB,2)}, {vr(SB+4,2)}")
    e(f"v_pk_add_f32 {vr(RB,2)}, {vr(RB,2)}, {vr(SB+2,2)} neg_lo:[0,1] neg_hi:[0,1]")
    g.issued = 0
    g.known_done = 0
    g.vm(f"buffer_store_dwordx2 {vr(RB,2)}, v{VSO2}, {sr(R_WS,4)}, s{S_OWN} offen sc1")
    e(f"s_cmp_lg_u32 s{S_WAVE}, 0")
    e("s_cbranch_scc1 L_noL")
    e(f"v_pk_add_f32 {vr(SB+8,2)}, {vr(SB+8,2)}, {vr(SB+12,2)}")
    e("s_mov_b32 exec_lo, 1")
    e("s_mov_b32 exec_hi, 1")
    e(f"v_pk_add_f32 {vr(V_D+2,2)}, {vr(SB,2)}, {vr(SB+8,2)}")
    g.vm(f"buffer_store_dwordx4 {vr(V_D,4)}, v{VHB8}, {sr(R_WS,4)}, s{S_OWNE} offen sc1")
    e("s_mov_b64 exec, 1")
    e(f"v_mov_b32 v{T1}, 1")
    g.lab("L_noL")
    tst()
    e("s_waitcnt vmcnt(0)")
    g.known_done = g.issued
    tst()
    e("s_barrier")
    tst()
    e(f"s_cmp_lg_u32 s{S_WAVE}, 0")
    e("s_cbranch_scc1 L_skip_atomic")
    g.vm(f"buffer_atomic_add v{T1}, v{VZERO}, {sr(R_DBG,4)}, s{S_CTR} offen sc0")
    e("s_waitcnt vmcnt(0)")
    g.known_done = g.issued
    e(f"ds_write_b32 v{VZERO}, v{T1} offset:{L_FLAG}")
    e("s_mov_b64 exec, -1")
    e("s_waitcnt lgkmcnt(0)")
    g.lab("L_skip_atomic")
    tst()
    e("s_barrier")
    e(f"ds_read_b32 v{T1}, v{VZERO} offset:{L_FLAG}")
    e("s_waitcnt lgkmcnt(0)")
    e(f"v_readfirstlane_b32 s{S_T0}, v{T1}")
    g.nop(1)
    if stamp:
        e(f"s_memrealtime {sr(S_TS+4,2)}")
        e("s_waitcnt lgkmcnt(0)")
        e(f"s_lshl_b32 s{S_T1}, s2, 2")
        e(f"s_add_u32 s{S_T1}, s{S_T1}, s{S_WAVE}")
        e(f"s_lshl_b32 s{S_T1}, s{S_T1}, 5")
        e(f"s_add_u32 s{S_T1}, s{S_T1}, 0x100000")
        e(f"s_getreg_b32 s{S_TS+6}, hwreg(HW_REG_XCC_ID)")
        e(f"s_getreg_b32 s{S_TS+7}, hwreg(HW_REG_HW_ID)")
        e(f"s_and_b32 s{S_TS+6}, s{S_TS+6}, 15")
        e(f"s_lshl_b32 s{S_TS+7}, s{S_TS+7}, 4")
        e(f"s_or_b32 s{S_TS+6}, s{S_TS+6}, s{S_TS+7}")
        XS = V_ACC + 16
        for k in range(4):
            e(f"v_mov_b32 v{XS+k}, s{S_TS+2*k}")
        e(f"v_mov_b32 v{XS+4}, s{S_R}")
        e(f"v_mov_b32 v{XS+5}, s{S_TS+8}")
        e(f"v_mov_b32 v{XS+6}, s{S_TS}")
        e(f"v_mov_b32 v{XS+7}, s{S_TS}")
        e("s_mov_b64 exec, 1")
        g.vm(f"buffer_store_dwordx4 {vr(XS,4)}, v{VZERO}, {sr(R_WS,4)}, s{S_T1} offen")
        g.vm(f"buffer_store_dwordx4 {vr(XS+4,4)}, v{VZERO}, {sr(R_WS,4)}, s{S_T1} offen offset:16")
        e("s_mov_b64 exec, -1")
    e(f"s_cmp_lg_u32 s{S_T0}, 31")
    e("s_cbranch_scc1 L_end")

    g.c("---- final merge by the last arriving workgroup of this kv head (wave = 32-column block)")
    tst()
    OB = V_BUF
    WB = V_BUF + 64
    EB = V_ACC
    MX = V_ACC + 4
    M2 = V_ACC + 6
    N0 = V_ACC + 8
    N1 = V_ACC + 12
    ie = g.vm(f"buffer_load_dwordx4 {vr(EB,4)}, v{VEL}, {sr(R_WS,4)}, s{S_RECE} offen sc1")
    io = []

    def ldO(k):
        if k and k % 4 == 0:
            e(f"s_add_u32 s{S_REC}, s{S_REC}, 4096")
        io.append(g.vm(f"buffer_load_dwordx4 {vr(OB+4*k,4)}, v{VL16}, {sr(R_WS,4)}, s{S_REC} offen offset:{(k&3)*1024} sc1"))

    def reduce32(op, a, src=None):
        first = True
        for ctl in ("quad_perm:[1,0,3,2]", "quad_perm:[2,3,0,1]", "row_ror:4", "row_ror:8"):
            for r in range(2):
                sreg = (src + r) if (first and src is not None) else (a + r)
                e(f"v_{op}_f32_dpp v{a+r}, v{sreg}, v{sreg} {ctl} row_mask:0xf bank_mask:0xf")
            g.nop(1)
            first = False
        e(f"v_mov_b32 v{M2}, v{a}")
        e(f"v_mov_b32 v{M2+1}, v{a+1}")
        g.nop(1)
        e(f"v_permlane16_swap_b32 v{a}, v{M2}")
        e(f"v_permlane16_swap_b32 v{a+1}, v{M2+1}")
        e(f"v_{op}_f32 v{a}, v{a}, v{M2}")
        e(f"v_{op}_f32 v{a+1}, v{a+1}, v{M2+1}")

    for k in range(NFIRST):
        ldO(k)
    tst()
    g.wait_vm(ie)
    tst()
    reduce32("max", MX, EB)
    e(f"v_sub_f32 v{EB}, v{EB}, v{MX}")
    e(f"v_sub_f32 v{EB+1}, v{EB+1}, v{MX+1}")
    e(f"v_exp_f32 v{EB}, v{EB}")
    e(f"v_exp_f32 v{EB+1}, v{EB+1}")
    g.nop(1)
    e(f"ds_write_b64 v{VWW}, {vr(EB,2)} offset:{L_W}")
    e(f"v_pk_mul_f32 {vr(EB+2,2)}, {vr(EB+2,2)}, {vr(EB,2)}")
    for k in range(8):
        e(f"ds_read_b128 {vr(WB+4*k,4)}, v{VWR} offset:{L_W+k*32}")
    for k in range(NFIRST, 16):
        ldO(k)
    tst()
    reduce32("add", EB + 2)
    e(f"v_rcp_f32 v{EB+2}, v{EB+2}")
    e(f"v_rcp_f32 v{EB+3}, v{EB+3}")
    e("s_waitcnt lgkmcnt(0)")
    for k in range(16):
        g.wait_vm(io[k])
        if k == 8:
            e("s_waitcnt lgkmcnt(0)")
        N = N0 if k % 2 == 0 else N1
        Wk = WB + 4 * (k & 7)
        for hh in (0, 2):
            if k < 2:
                e(f"v_pk_mul_f32 {vr(N+hh,2)}, {vr(Wk+hh,2)}, {vr(OB+4*k+hh,2)}")
            else:
                e(f"v_pk_fma_f32 {vr(N+hh,2)}, {vr(Wk+hh,2)}, {vr(OB+4*k+hh,2)}, {vr(N+hh,2)}")
        if k < 8:
            e(f"ds_read_b128 {vr(Wk,4)}, v{VWR} offset:{L_W+(k+8)*32}")
    tst()
    e(f"v_pk_add_f32 {vr(N0,2)}, {vr(N0,2)}, {vr(N1,2)}")
    e(f"v_pk_add_f32 {vr(N0+2,2)}, {vr(N0+2,2)}, {vr(N1+2,2)}")
    g.nop(2)
    e(f"v_permlane32_swap_b32 v{N0}, v{N0+2}")
    e(f"v_permlane32_swap_b32 v{N0+1}, v{N0+3}")
    e(f"v_pk_add_f32 {vr(N0,2)}, {vr(N0,2)}, {vr(N0+2,2)}")
    e(f"v_pk_mul_f32 {vr(N0,2)}, {vr(N0,2)}, {vr(EB+2,2)}")
    e(f"v_cvt_pk_bf16_f32 v{N0}, v{N0}, v{N0+1}")
    g.vm(f"buffer_store_short v{N0}, v{VOUT}, {sr(R_OUT,4)}, s{S_QO} offen")
    g.vm(f"buffer_store_short_d16_hi v{N0}, v{VOUT}, {sr(R_OUT,4)}, s{S_QO} offen offset:256")
    if tail:
        tst()
        e("s_waitcnt vmcnt(0)")
        tst()
        e(f"s_lshl_b32 s{S_T1}, s{S_KVH}, 2")
        e(f"s_add_u32 s{S_T1}, s{S_T1}, s{S_WAVE}")
        e(f"s_lshl_b32 s{S_T1}, s{S_T1}, 6")
        e(f"s_add_u32 s{S_T1}, s{S_T1}, 0x300000")
        for k in range(16):
            e(f"v_mov_b32 v{V_BUF+k}, v{V_TSV+min(k, tcount[0]-1)}")
        e("s_mov_b64 exec, 1")
        for k in range(4):
            e(f"buffer_store_dwordx4 {vr(V_BUF+4*k,4)}, v{VZERO}, {sr(R_WS,4)}, s{S_T1} offen offset:{16*k}")
    if dbgtime or stamp:
        e(f"s_memrealtime {sr(S_TS+2,2)}")
        e("s_waitcnt lgkmcnt(0)")
        if dbgtime:
            e(f"s_sub_u32 s{S_T1}, s{S_TS+2}, s{S_TS}")
        else:
            e(f"s_mov_b32 s{S_T1}, s{S_TS+2}")
        e(f"v_mov_b32 v{T0}, s{S_T1}")
        e(f"s_lshl_b32 s{S_T2}, s{S_KVH}, 3")
        e(f"s_add_u32 s{S_T2}, s{S_T2}, 4")
        e("s_mov_b64 exec, 1")
        e(f"buffer_store_dword v{T0}, v{VZERO}, {sr(R_DBG,4)}, s{S_T2} offen")
    g.lab("L_end")
    e("s_endpgm")

    body_t = "\n".join(g.L)
    nv = (NV + 7) // 8 * 8
    text = HEADER + f"; @launch grid=(256,1,1) block=(256,1,1) lds={LDS}\n" + DOC
    text += f""".amdgcn_target "amdgcn-amd-amdhsa--gfx950"
.text
.globl {NAME}_kernel
.p2align 8
.type {NAME}_kernel,@function
{NAME}_kernel:
{body_t}
.section .rodata,"a"
.p2align 6
.amdhsa_kernel {NAME}_kernel
  .amdhsa_next_free_vgpr {nv}
  .amdhsa_next_free_sgpr {NSGPR}
  .amdhsa_accum_offset {nv}
  .amdhsa_group_segment_fixed_size 0
  .amdhsa_kernarg_size 80
  .amdhsa_user_sgpr_count 2
  .amdhsa_user_sgpr_kernarg_segment_ptr 1
  .amdhsa_system_sgpr_workgroup_id_x 1
  .amdhsa_float_denorm_mode_32 3
.end_amdhsa_kernel
"""
    return text


if __name__ == "__main__":
    ap = argparse.ArgumentParser()
    ap.add_argument("-o", default=f"cdna_kernels/{NAME}.s")
    ap.add_argument("--pol", default="nt")
    ap.add_argument("--NO", type=int, default=15)
    ap.add_argument("--PHI", type=int, default=16)
    ap.add_argument("--PHIB", type=int, default=64)
    ap.add_argument("--stamp", action="store_true")
    ap.add_argument("--dbgtime", action="store_true")
    ap.add_argument("--tail", action="store_true")
    ap.add_argument("--NFIRST", type=int, default=10)
    ap.add_argument("--lay", type=int, default=0)
    ap.add_argument("--vspol", default="nt")
    ap.add_argument("--vsat", default="kt")
    ap.add_argument("--korder", type=int, default=0)
    ap.add_argument("--inv", type=int, default=0)
    a = ap.parse_args()
    open(a.o, "w").write(gen(pol=a.pol, NO=a.NO, PHI=a.PHI, PHIB=a.PHIB, stamp=a.stamp, dbgtime=a.dbgtime, tail=a.tail,
                             NFIRST=a.NFIRST, lay=a.lay, vspol=a.vspol, vsat=a.vsat, korder=a.korder, inv=a.inv))
    print("wrote", a.o)
```

```python
import sys, math, argparse
from gen import G, vr, sr, NAME, HEADER, f32bits

DOC = """; Algorithm (all reformulations are exact up to fp32 rounding):
"""


def gen(pol="nt", NO=15, PHI=16, PHIB=64, stamp=False, dbgtime=False, tail=False, NFIRST=10, lay=0, vspol="nt",
        vsat="kt", korder=0, inv=0, adapt=0, RL=7):
    g = G()
    e = g.e
    pol = (" " + pol) if pol else ""
    vspol = (" " + vspol) if vspol else ""
    C = (128.0 ** -0.5) * math.log2(math.e)
    NE = 32 - NO
    assert NO % 2 == 1 and NO >= 3

    S_Q, S_QK, S_QV, S_KS, S_KZ, S_VS, S_VZ, S_OUT, S_DBG, S_WS = 4, 6, 8, 10, 12, 14, 16, 18, 20, 22
    R_K, R_V, R_VS, R_VZ, R_Q, R_KS, R_KZ, R_OUT, R_WS, R_DBG = 24, 28, 32, 36, 40, 44, 48, 52, 56, 60
    S_STRM, S_SPLIT, S_KVH, S_WAVE, S_C, S_MASK = 64, 65, 66, 67, 68, 69
    S_BKV, S_BVS, S_OFF, S_R, S_N, S_X = 70, 71, 73, 75, 76, 77
    S_T0, S_T1 = 78, 79
    S_ODD = 80
    S_QO = 82
    S_T2 = 83
    S_TS = 84
    S_REC, S_RECE, S_OWN, S_OWNE, S_CTR = 94, 95, 96, 97, 98
    NSGPR = 102

    V_LANE, V_KO, V_VO, V_SA, V_WV, V_G, V_N, V_H = 1, 2, 3, 4, 5, 6, 7, 8
    V_LS = 9
    V_M, V_L = 10, 11
    V_T = 12
    V_QB = 20
    V_NC = 28
    V_D = 32
    V_S = 40
    V_PA = 44
    V_KO2, V_VO2 = 46, 47
    V_SZ = 48
    V_PK = 56
    V_ACC = 72
    V_Z = 104
    V_BUF = 108
    V_TSV = V_BUF + 96
    NV = V_BUF + 96 + (16 if tail else 0)

    tcount = [0]

    def tst():
        if tail:
            k = tcount[0]
            tcount[0] += 1
            e("s_memtime s[100:101]")
            e("s_waitcnt lgkmcnt(0)")
            e(f"v_mov_b32 v{V_TSV+k}, s100")

    L_QS = 0
    L_KZ = 2048
    L_ML = 2304
    L_FLAG = 2368
    L_ST = 2432
    L_W = 2560
    L_O = 4608
    L_SZ = L_O + 4 * 6144
    L_S = L_SZ + 4 * 2048
    LDS = L_S + 4 * NE * 1024
    assert 81920 < LDS <= 160 * 1024 and L_S < 65536

    WS_E = 32 * 16384

    T0, T1, T2, T3, T4, T5, T6, T7 = range(V_T, V_T + 8)

    e("s_cmp_ge_u32 s2, 256")
    e("s_cbranch_scc1 L_end")
    e("s_load_dwordx16 s[4:19], s[0:1], 0")
    e("s_load_dwordx4 s[20:23], s[0:1], 64")
    if stamp or dbgtime:
        e(f"s_memrealtime {sr(S_TS,2)}")
    e(f"v_and_b32 v{V_LANE}, 63, v0")
    e(f"v_lshrrev_b32 v{V_WV}, 6, v0")
    e(f"v_lshrrev_b32 v{V_G}, 4, v{V_LANE}")
    e(f"v_and_b32 v{V_N}, 15, v{V_LANE}")
    e(f"v_and_b32 v{V_H}, 3, v{V_LANE}")
    e(f"v_readfirstlane_b32 s{S_WAVE}, v{V_WV}")
    g.c("K lane offset: MFMA row m=(g',r1,hf) -> token row, 64B half hf, 16B chunk g (whole 128B lines per load)")
    if lay == 2:
        e(f"v_and_b32 v{T0}, 1, v{V_WV}")
        e(f"v_lshlrev_b32 v{V_VO}, 10, v{T0}")
        e(f"v_lshrrev_b32 v{T0}, 1, v{V_WV}")
        e(f"v_lshl_add_u32 v{V_VO}, v{T0}, 14, v{V_VO}")
        e(f"v_lshrrev_b32 v{T0}, 2, v{V_N}")
        e(f"v_lshl_add_u32 v{V_KO}, v{T0}, 11, v{V_VO}")
        e(f"v_bfe_u32 v{T0}, v{V_N}, 1, 1")
        e(f"v_lshl_add_u32 v{V_KO}, v{T0}, 9, v{V_KO}")
    else:
        e(f"v_lshlrev_b32 v{V_KO}, 13, v{V_WV}")
        e(f"v_lshrrev_b32 v{T0}, 2, v{V_N}")
        e(f"v_lshl_add_u32 v{V_KO}, v{T0}, 11, v{V_KO}")
        e(f"v_bfe_u32 v{T0}, v{V_N}, 1, 1")
        e(f"v_lshl_add_u32 v{V_KO}, v{T0}, 9, v{V_KO}")
    e(f"v_and_b32 v{T7}, 1, v{V_N}")
    e(f"v_lshl_add_u32 v{V_KO}, v{T7}, 6, v{V_KO}")
    e(f"v_lshl_add_u32 v{V_KO}, v{V_G}, 4, v{V_KO}")
    if lay:
        e(f"v_add_u32 v{V_KO2}, 0x2000, v{V_KO}")
    e(f"v_lshlrev_b32 v{T0}, 2, v0")
    e(f"v_lshlrev_b32 v{T1}, 2, v{V_LANE}")
    g.c("stream (kv head, scale group) = ((wg>>1)&3)*4 + (wg>>6); slot j = (wg>>3)&7; parity = wg&1")
    e(f"s_bfe_u32 s{S_STRM}, s2, 0x20001")
    e(f"s_lshr_b32 s{S_T0}, s2, 6")
    e(f"s_lshl_b32 s{S_STRM}, s{S_STRM}, 2")
    e(f"s_add_u32 s{S_STRM}, s{S_STRM}, s{S_T0}")
    e(f"s_bfe_u32 s{S_SPLIT}, s2, 0x30003")
    e(f"s_lshr_b32 s{S_KVH}, s{S_STRM}, 1")
    e(f"s_lshl_b32 s{S_BKV}, s{S_STRM}, 23")
    g.c("64-token block of round r: (phase + parity*NE*8 + j + 8r) mod 256")
    e(f"s_mul_i32 s{S_X}, s{S_KVH}, {PHI}")
    e(f"s_add_u32 s{S_X}, s{S_X}, s{S_SPLIT}")
    e(f"s_and_b32 s{S_T1}, s{S_STRM}, 1")
    e(f"s_mul_i32 s{S_T0}, s{S_T1}, {PHIB}")
    e(f"s_add_u32 s{S_X}, s{S_X}, s{S_T0}")
    e(f"s_lshl_b32 s{S_T1}, s{S_T1}, 4")
    e(f"s_add_u32 s{S_SPLIT}, s{S_SPLIT}, s{S_T1}")
    S_XB, S_CAND = 72, 74
    e(f"s_and_b32 s{S_T1}, s2, 1")
    if inv:
        e(f"s_xor_b32 s{S_T1}, s{S_T1}, 1")
    if adapt:
        e(f"s_mov_b32 s{S_N}, 255")
        e(f"s_mul_i32 s{S_XB}, s{S_T1}, {NE*8}")
    else:
        e(f"s_cselect_b32 s{S_N}, {NO}, {NE}")
        e(f"s_mul_i32 s{S_T0}, s{S_T1}, {NE*8}")
        e(f"s_add_u32 s{S_X}, s{S_X}, s{S_T0}")
    e(f"s_lshl_b32 s{S_T1}, s{S_T1}, 3")
    e(f"s_add_u32 s{S_SPLIT}, s{S_SPLIT}, s{S_T1}")

    def offsets():
        e(f"s_lshl_b32 s{S_T0}, s{S_R}, 3")
        e(f"s_add_u32 s{S_T0}, s{S_T0}, s{S_X}")
        if adapt:
            e(f"s_cmp_lt_u32 s{S_R}, {NO}")
            e(f"s_cselect_b32 s{S_T1}, s{S_XB}, 0")
            e(f"s_add_u32 s{S_T0}, s{S_T0}, s{S_T1}")
        e(f"s_and_b32 s{S_T0}, s{S_T0}, 255")
        e(f"s_lshl_b32 s{S_OFF}, s{S_T0}, 15")
        e(f"s_add_u32 s{S_OFF}, s{S_OFF}, s{S_BKV}")
        e(f"s_add_u32 s{S_R}, s{S_R}, 1")

    e(f"s_mov_b32 s{S_R}, 0")
    offsets()
    e(f"s_lshl_b32 s{S_QO}, s{S_KVH}, 10")
    e(f"s_lshl_b32 s{S_T2}, s{S_STRM}, 8")
    for r, n in ((R_K, 1 << 27), (R_Q, 8192), (R_KS, 4096), (R_KZ, 4096)):
        e(f"s_mov_b32 s{r+2}, 0x{n:x}")
        e(f"s_mov_b32 s{r+3}, 0x00020000")
    e("s_waitcnt lgkmcnt(0)")
    e(f"s_mov_b32 s{R_K}, s{S_QK}")
    e(f"s_mov_b32 s{R_K+1}, s{S_QK+1}")

    def ldK(buf, k):
        a, c = ((k >> 1) & 1, (k >> 2) * 2 + (k & 1)) if korder else (k >> 2, k & 3)
        if lay:
            return g.vm(f"buffer_load_dwordx4 {vr(V_BUF+32*buf+4*k,4)}, v{V_KO2 if a else V_KO}, {sr(R_K,4)}, s{S_OFF} offen offset:{c*128}{pol}")
        return g.vm(f"buffer_load_dwordx4 {vr(V_BUF+32*buf+4*k,4)}, v{V_KO}, {sr(R_K,4)}, s{S_OFF} offen offset:{a*1024+c*128}{pol}")

    def ldV(buf, k):
        hv, i = k >> 2, k & 3
        if lay:
            return g.vm(f"buffer_load_dwordx4 {vr(V_BUF+32*buf+4*k,4)}, v{V_VO2 if i >> 1 else V_VO}, {sr(R_V,4)}, s{S_OFF} offen offset:{(i&1)*512+hv*256}{pol}")
        return g.vm(f"buffer_load_dwordx4 {vr(V_BUF+32*buf+4*k,4)}, v{V_VO}, {sr(R_V,4)}, s{S_OFF} offen offset:{i*512+hv*256}{pol}")

    for k in range(8):
        ldK(0, k)
    for r, p in ((R_Q, S_Q), (R_KS, S_KS), (R_KZ, S_KZ)):
        e(f"s_mov_b32 s{r}, s{p}")
        e(f"s_mov_b32 s{r+1}, s{p+1}")
    g.vm(f"buffer_load_dword v{T2}, v{T0}, {sr(R_Q,4)}, s{S_QO} offen")
    g.vm(f"buffer_load_dword v{T3}, v{T1}, {sr(R_KS,4)}, s{S_T2} offen")
    i_kz = g.vm(f"buffer_load_dword v{T4}, v{T1}, {sr(R_KZ,4)}, s{S_T2} offen")
    offsets()
    for k in range(8):
        ldK(1, k)

    for r, n in ((R_V, 1 << 27), (R_VS, 1 << 19), (R_VZ, 1 << 19), (R_OUT, 8192), (R_WS, 1 << 29), (R_DBG, 256)):
        e(f"s_mov_b32 s{r+2}, 0x{n:x}")
        e(f"s_mov_b32 s{r+3}, 0x00020000")
    for r, p in ((R_V, S_QV), (R_VS, S_VS), (R_VZ, S_VZ), (R_OUT, S_OUT), (R_WS, S_WS), (R_DBG, S_DBG)):
        e(f"s_mov_b32 s{r}, s{p}")
        e(f"s_mov_b32 s{r+1}, s{p+1}")
    e(f"s_mov_b32 s{S_C}, 0x{f32bits(C):08x}")
    e(f"s_mov_b32 s{S_MASK}, 0xffff0000")
    e(f"s_lshl_b32 s{S_BVS}, s{S_STRM}, 15")
    g.c("V lane offset: token group g, 16B column chunk n")
    if not lay:
        e(f"v_lshlrev_b32 v{V_VO}, 13, v{V_WV}")
    e(f"v_lshl_add_u32 v{V_VO}, v{V_G}, 11, v{V_VO}")
    e(f"v_lshl_add_u32 v{V_VO}, v{V_N}, 4, v{V_VO}")
    if lay:
        e(f"v_add_u32 v{V_VO2}, 0x2000, v{V_VO}")
    VZ0, VFL = V_KO2, V_VO2
    if adapt:
        assert not lay
        g.c("which wg parity sits on the even dies only steers the 17/15 work split (speed); all waves agree on")
        g.c("the first value written to d_debug[1]")
        e(f"s_getreg_b32 s{S_CAND}, hwreg(HW_REG_XCC_ID)")
        e(f"s_xor_b32 s{S_CAND}, s{S_CAND}, s2")
        e(f"s_and_b32 s{S_CAND}, s{S_CAND}, 1")
        e(f"s_add_u32 s{S_CAND}, s{S_CAND}, 1")
        e(f"v_mov_b32 v{VZ0}, 0")
        e(f"v_mov_b32 v{V_PA}, s{S_CAND}")
        e(f"v_mov_b32 v{V_PA+1}, 0")
        e(f"s_or_b32 s{S_T0}, s2, s{S_WAVE}")
        e("s_cbranch_scc1 L_nowr")
        e("s_mov_b64 exec, 1")
        e(f"buffer_atomic_cmpswap {vr(V_PA,2)}, v{VZ0}, {sr(R_DBG,4)}, 0 offen offset:4")
        e("s_mov_b64 exec, -1")
        g.lab("L_nowr")
    g.c("bulk vs/vz offset: lane = (round, 16B half)")
    e(f"v_lshrrev_b32 v{T5}, 1, v{V_LANE}")
    if adapt:
        e(f"v_cmp_gt_u32 vcc, {NO}, v{T5}")
        e(f"v_mov_b32 v{T6}, s{S_XB}")
    e(f"v_lshlrev_b32 v{T5}, 3, v{T5}")
    e(f"v_add_u32 v{T5}, s{S_X}, v{T5}")
    if adapt:
        e(f"v_cndmask_b32 v{T6}, 0, v{T6}, vcc")
        e(f"v_add_u32 v{T5}, v{T5}, v{T6}")
    e(f"v_and_b32 v{T5}, 255, v{T5}")
    e(f"v_lshlrev_b32 v{V_SA}, 7, v{T5}")
    e(f"v_lshl_add_u32 v{V_SA}, v{V_WV}, 5, v{V_SA}")
    e(f"v_lshl_add_u32 v{V_SA}, v{T7}, 4, v{V_SA}")
    e(f"v_and_b32 v{T5}, 8, v{V_LANE}")
    e(f"v_cmp_ne_u32 {sr(S_ODD,2)}, 0, v{T5}")
    e(f"v_and_b32 v{T6}, 4, v{V_LANE}")
    e(f"v_mov_b32 v{V_M}, 0xff7fffff")
    e(f"v_mov_b32 v{V_L}, 0")
    for x in range(36):
        e(f"v_mov_b32 v{V_ACC+x}, 0")
    e(f"v_mul_u32_u24 v{V_LS}, {NE*1024}, v{V_WV}")
    e(f"v_lshl_add_u32 v{V_LS}, v{V_LANE}, 4, v{V_LS}")
    e(f"v_lshlrev_b32 v{T5}, 7, v{T5}")
    e(f"v_lshl_add_u32 v{T5}, v{V_H}, 8, v{T5}")
    e(f"v_lshl_add_u32 v{T5}, v{T6}, 3, v{T5}")
    e(f"v_lshl_add_u32 v{T5}, v{V_G}, 3, v{T5}")
    e(f"v_lshlrev_b32 v{T7}, 5, v{T7}")
    e(f"v_lshl_add_u32 v{T7}, v{V_G}, 3, v{T7}")
    e(f"s_mov_b32 s{S_T0}, 0x07060302")
    g.c("q*ks (exact in fp32) split into bf16 high/low parts")
    g.wait_vm(i_kz)
    A0, A1, B0, B1 = V_D, V_D + 1, V_D + 2, V_D + 3
    e(f"v_lshlrev_b32 v{A0}, 16, v{T2}")
    e(f"v_and_b32 v{A1}, s{S_MASK}, v{T2}")
    e(f"v_lshlrev_b32 v{B0}, 16, v{T3}")
    e(f"v_and_b32 v{B1}, s{S_MASK}, v{T3}")
    e(f"v_mul_f32 v{A0}, v{A0}, v{B0}")
    e(f"v_mul_f32 v{A1}, v{A1}, v{B1}")
    e(f"v_and_b32 v{B0}, s{S_MASK}, v{A0}")
    e(f"v_and_b32 v{B1}, s{S_MASK}, v{A1}")
    e(f"v_sub_f32 v{B0}, v{A0}, v{B0}")
    e(f"v_sub_f32 v{B1}, v{A1}, v{B1}")
    e(f"v_perm_b32 v{A0}, v{A1}, v{A0}, s{S_T0}")
    e(f"v_perm_b32 v{B0}, v{B1}, v{B0}, s{S_T0}")
    e(f"ds_write_b32 v{T0}, v{A0} offset:{L_QS}")
    e(f"ds_write_b32 v{T0}, v{B0} offset:{L_QS+1024}")
    e(f"ds_write_b32 v{T1}, v{T4} offset:{L_KZ}")
    e("s_waitcnt lgkmcnt(0)")
    e("s_barrier")
    for c in range(4):
        e(f"ds_read_b64 {vr(V_QB+2*c,2)}, v{T5} offset:{L_QS+64*c}")
    for c in range(4):
        e(f"ds_read_b64 {vr(V_PK+2*c,2)}, v{T7} offset:{L_KZ+64*c}")
    e("s_waitcnt lgkmcnt(0)")
    for ee in range(2):
        e(f"v_mfma_f32_16x16x32_bf16 {vr(V_NC,4)}, {vr(V_PK+4*ee,4)}, {vr(V_QB+4*ee,4)}, {'0' if ee == 0 else vr(V_NC,4)}")
    g.nop(10)
    for r in range(4):
        e(f"v_xor_b32 v{V_NC+r}, 0x80000000, v{V_NC+r}")

    def ld_bulk():
        e(f"s_lshl_b32 s{S_T0}, s{S_N}, 1")
        e(f"v_cmp_gt_u32 vcc, s{S_T0}, v{V_LANE}")
        g.nop(1)
        e("s_mov_b64 exec, vcc")
        g.vm(f"buffer_load_dwordx4 {vr(V_SZ,4)}, v{V_SA}, {sr(R_VS,4)}, s{S_BVS} offen{vspol}")
        g.vm(f"buffer_load_dwordx4 {vr(V_SZ+4,4)}, v{V_SA}, {sr(R_VZ,4)}, s{S_BVS} offen{vspol}")
        e("s_mov_b64 exec, -1")

    if vsat == "start":
        ld_bulk()

    def issue_pair(buf, nxt, k0):
        if nxt == "K":
            ldK(buf, k0)
            ldK(buf, k0 + 1)
        elif nxt == "V":
            ldV(buf, k0)
            ldV(buf, k0 + 1)

    def bodyK(buf, nxt, younger=8):
        g.issued = 8 + younger
        g.known_done = 0
        offsets()
        B = V_BUF + 32 * buf
        for p in range(4):
            a, ee = (p & 1, p >> 1) if korder else (p >> 1, p & 1)
            k0, k1 = 2 * p, 2 * p + 1
            b0, b1 = B + 4 * k0, B + 4 * k1
            pk = V_PK + 4 * (p & 1)
            g.wait_vm(k0)
            for k in range(4):
                e(f"v_cvt_f32_i32 v{b0+k}, v{b0+k}")
            g.wait_vm(k1)
            for k in range(4):
                e(f"v_cvt_f32_i32 v{b1+k}, v{b1+k}")
            e(f"v_cvt_pk_bf16_f32 v{pk}, v{b0}, v{b0+1}")
            e(f"v_cvt_pk_bf16_f32 v{pk+1}, v{b0+2}, v{b0+3}")
            e(f"v_cvt_pk_bf16_f32 v{pk+2}, v{b1}, v{b1+1}")
            e(f"v_cvt_pk_bf16_f32 v{pk+3}, v{b1+2}, v{b1+3}")
            issue_pair(buf, nxt, k0)
            e(f"v_mfma_f32_16x16x32_bf16 {vr(V_D+4*a,4)}, {vr(pk,4)}, {vr(V_QB+4*ee,4)}, {vr(V_NC,4) if ee == 0 else vr(V_D+4*a,4)}")
        e(f"v_add_f32_dpp v{V_S}, v{V_D+1}, v{V_D} row_ror:4 row_mask:0xf bank_mask:0xf")
        e(f"v_add_f32_dpp v{V_S+1}, v{V_D+3}, v{V_D+2} row_ror:4 row_mask:0xf bank_mask:0xf")
        g.nop(1)
        e(f"v_add_f32_dpp v{V_S}, v{V_S}, v{V_S} row_ror:8 row_mask:0xf bank_mask:0xf")
        e(f"v_add_f32_dpp v{V_S+1}, v{V_S+1}, v{V_S+1} row_ror:8 row_mask:0xf bank_mask:0xf")
        e(f"v_max3_f32 v{V_M}, v{V_M}, v{V_S}, v{V_S+1}")
        g.nop(3)
        e(f"v_add_f32_dpp v{V_S+2}, v{V_D+5}, v{V_D+4} row_ror:4 row_mask:0xf bank_mask:0xf")
        e(f"v_add_f32_dpp v{V_S+3}, v{V_D+7}, v{V_D+6} row_ror:4 row_mask:0xf bank_mask:0xf")
        g.nop(1)
        e(f"v_add_f32_dpp v{V_S+2}, v{V_S+2}, v{V_S+2} row_ror:8 row_mask:0xf bank_mask:0xf")
        e(f"v_add_f32_dpp v{V_S+3}, v{V_S+3}, v{V_S+3} row_ror:8 row_mask:0xf bank_mask:0xf")
        e(f"ds_write_b128 v{V_LS}, {vr(V_S,4)} offset:{L_S}")
        e(f"v_max3_f32 v{V_M}, v{V_M}, v{V_S+2}, v{V_S+3}")
        e(f"v_add_u32 v{V_LS}, 1024, v{V_LS}")

    def bodyV(buf, nxt, younger=8, last=None):
        g.issued = 8 + younger
        g.known_done = 0
        B = V_BUF + 32 * buf
        e(f"ds_read_b128 {vr(V_S,4)}, v{V_LS} offset:{L_S}")
        if lay:
            e(f"ds_read2_b32 {vr(V_SZ,2)}, v{V_SA} offset0:0 offset1:8")
            e(f"ds_read2_b32 {vr(V_SZ+2,2)}, v{V_SA} offset0:32 offset1:40")
        else:
            e(f"ds_read2_b64 {vr(V_SZ,4)}, v{V_SA} offset0:0 offset1:16")
        if nxt:
            offsets()
        e(f"v_add_u32 v{V_LS}, 1024, v{V_LS}")
        e(f"v_add_u32 v{V_SA}, 256, v{V_SA}")
        X0, X1, X2, X3 = T4, T5, T6, T7
        e("s_waitcnt lgkmcnt(0)")
        for i in range(4):
            e(f"v_fma_f32 v{V_S+i}, v{V_S+i}, s{S_C}, -v{V_M}")
        for i in range(4):
            e(f"v_exp_f32 v{V_S+i}, v{V_S+i}")
        e(f"v_lshlrev_b32 v{X0}, 16, v{V_SZ}")
        e(f"v_and_b32 v{X1}, s{S_MASK}, v{V_SZ}")
        e(f"v_lshlrev_b32 v{X2}, 16, v{V_SZ+1}")
        e(f"v_and_b32 v{X3}, s{S_MASK}, v{V_SZ+1}")
        e(f"v_add_f32 v{T0}, v{V_S}, v{V_S+1}")
        e(f"v_mul_f32 v{X0}, v{X0}, v{V_S}")
        e(f"v_add_f32 v{T1}, v{V_S+2}, v{V_S+3}")
        e(f"v_mul_f32 v{X1}, v{X1}, v{V_S+1}")
        e(f"v_mul_f32 v{X2}, v{X2}, v{V_S+2}")
        e(f"v_mul_f32 v{X3}, v{X3}, v{V_S+3}")
        e(f"v_add_f32 v{V_L}, v{V_L}, v{T0}")
        for i, X in enumerate((X0, X1, X2, X3)):
            e(f"v_and_b32 v{V_S+i}, s{S_MASK}, v{X}")
        e(f"v_add_f32 v{V_L}, v{V_L}, v{T1}")
        for i, X in enumerate((X0, X1, X2, X3)):
            e(f"v_sub_f32 v{X}, v{X}, v{V_S+i}")
        for i, X in enumerate((X0, X1, X2, X3)):
            e(f"v_cndmask_b32 v{X}, v{V_S+i}, v{X}, {sr(S_ODD,2)}")
        e(f"v_cvt_pk_bf16_f32 v{V_PA}, v{X0}, v{X1}")
        e(f"v_cvt_pk_bf16_f32 v{V_PA+1}, v{X2}, v{X3}")
        g.nop(2)
        e(f"v_mfma_f32_16x16x16_bf16 {vr(V_Z,4)}, {vr(V_PA,2)}, {vr(V_SZ+2,2)}, {vr(V_Z,4)}")
        if last:
            last("stats")
        for p in range(4):
            hv, q = p >> 1, p & 1
            k0, k1 = 2 * p, 2 * p + 1
            b0, b1 = B + 4 * k0, B + 4 * k1
            pk = V_PK + 8 * hv
            g.wait_vm(k0)
            for k in range(4):
                e(f"v_cvt_f32_i32 v{b0+k}, v{b0+k}")
            g.wait_vm(k1)
            for k in range(4):
                e(f"v_cvt_f32_i32 v{b1+k}, v{b1+k}")
            for j in range(4):
                e(f"v_cvt_pk_bf16_f32 v{pk+2*j+q}, v{b0+j}, v{b1+j}")
            issue_pair(buf, nxt, k0)
            if last and p == 2:
                last("half")
            if q == 1:
                if not nxt:
                    g.nop(1)
                for j in range(4):
                    acc = V_ACC + 4 * (hv * 4 + j)
                    e(f"v_mfma_f32_16x16x16_bf16 {vr(acc,4)}, {vr(V_PA,2)}, {vr(pk+2*j,2)}, {vr(acc,4)}")

    g.c("---- K phase (s75 = units issued so far, two units in flight)")
    g.lab("L_k")
    bodyK(0, "K")
    e(f"s_cmp_ge_u32 s{S_R}, s{S_N}")
    e("s_cbranch_scc1 L_kt")
    if adapt:
        e(f"s_cmp_lg_u32 s{S_R}, {RL}")
        e("s_cbranch_scc1 L_nold")
        e(f"buffer_load_dword v{VFL}, v{VZ0}, {sr(R_DBG,4)}, 0 offen offset:4 sc1")
        g.lab("L_nold")
        e(f"s_cmp_lg_u32 s{S_R}, {RL+4}")
        e("s_cbranch_scc1 L_nores")
        e(f"v_readfirstlane_b32 s{S_T0}, v{VFL}")
        g.nop(1)
        e(f"s_cmp_lg_u32 s{S_T0}, 0")
        e("s_cbranch_scc1 L_have")
        e("s_mov_b64 exec, 1")
        e(f"buffer_atomic_cmpswap {vr(V_PA,2)}, v{VZ0}, {sr(R_DBG,4)}, 0 offen offset:4 sc0")
        e("s_waitcnt vmcnt(0)")
        e(f"v_readfirstlane_b32 s{S_T0}, v{V_PA}")
        e("s_mov_b64 exec, -1")
        e(f"s_cmp_eq_u32 s{S_T0}, 0")
        e(f"s_cselect_b32 s{S_T0}, s{S_CAND}, s{S_T0}")
        g.lab("L_have")
        e(f"s_xor_b32 s{S_T0}, s{S_T0}, s2")
        e(f"s_and_b32 s{S_T0}, s{S_T0}, 1")
        e(f"s_cselect_b32 s{S_N}, {NE}, {NO}")
        g.lab("L_nores")
    bodyK(1, "K")
    e("s_branch L_k")
    g.lab("L_kt")
    e(f"s_mov_b32 s{S_R}, 0")
    if vsat == "kt":
        g.issued = 16
        g.known_done = 0
        ld_bulk()
        bodyK(1, "V", younger=10)
        bodyK(0, "V", younger=10)
    else:
        bodyK(1, "V")
        bodyK(0, "V")
    if stamp:
        e(f"s_memrealtime {sr(S_TS+8,2)}")

    g.c("---- workgroup maximum; park vs/vz in LDS; epilogue addresses")
    e(f"v_mov_b32 v{T1}, v{V_M}")
    e(f"v_lshlrev_b32 v{T2}, 2, v{V_WV}")
    e(f"v_lshl_add_u32 v{T2}, v{V_H}, 4, v{T2}")
    e(f"v_permlane16_swap_b32 v{V_M}, v{T1}")
    e(f"v_max_f32 v{V_M}, v{V_M}, v{T1}")
    e(f"v_mov_b32 v{T1}, v{V_M}")
    e(f"v_lshlrev_b32 v{T3}, 4, v{V_H}")
    e(f"v_mul_u32_u24 v{V_LS}, {NE*1024}, v{V_WV}")
    e(f"v_permlane32_swap_b32 v{V_M}, v{T1}")
    e(f"v_max_f32 v{V_M}, v{V_M}, v{T1}")
    e(f"v_lshl_add_u32 v{V_LS}, v{V_LANE}, 4, v{V_LS}")
    e("s_mov_b64 exec, 0xf")
    e(f"ds_write_b32 v{T2}, v{V_M} offset:{L_ML}")
    e("s_mov_b64 exec, -1")
    e(f"v_lshrrev_b32 v{T4}, 1, v{V_LANE}")
    e(f"v_lshlrev_b32 v{T4}, 8, v{T4}")
    e(f"v_and_b32 v{T5}, 1, v{V_LANE}")
    e(f"v_lshl_add_u32 v{T4}, v{T5}, 4, v{T4}")
    e(f"v_lshl_add_u32 v{T4}, v{V_WV}, 5, v{T4}")
    if lay:
        e(f"v_and_b32 v{T5}, 1, v{V_WV}")
        e(f"v_lshlrev_b32 v{V_SA}, 2, v{T5}")
        e(f"v_lshrrev_b32 v{T5}, 1, v{V_WV}")
        e(f"v_lshl_add_u32 v{V_SA}, v{T5}, 6, v{V_SA}")
    else:
        e(f"v_lshlrev_b32 v{V_SA}, 5, v{V_WV}")
    e(f"v_lshl_add_u32 v{V_SA}, v{V_G}, 3, v{V_SA}")
    e(f"v_add_u32 v{V_SA}, {L_SZ}, v{V_SA}")
    e("s_waitcnt vmcnt(16)")
    e(f"ds_write_b128 v{T4}, {vr(V_SZ,4)} offset:{L_SZ}")
    e(f"ds_write_b128 v{T4}, {vr(V_SZ+4,4)} offset:{L_SZ+128}")
    VAW, VRD, VST, VSO2, VHB8, VE = V_QB, V_QB + 1, V_QB + 2, V_QB + 3, V_QB + 4, V_QB + 5
    VL16, VWW, VWR, VOUT, VZERO, VEL = V_QB + 6, V_QB + 7, V_NC, V_NC + 1, V_NC + 2, V_NC + 3
    U4, U5, U6 = V_D + 4, V_D + 5, V_D + 6
    e(f"v_lshrrev_b32 v{T0}, 5, v{V_LANE}")
    e(f"v_mul_u32_u24 v{VAW}, 6144, v{V_WV}")
    e(f"v_mul_u32_u24 v{T1}, 3072, v{T0}")
    e(f"v_add_u32 v{VAW}, v{VAW}, v{T1}")
    e(f"v_lshl_add_u32 v{VAW}, v{V_N}, 4, v{VAW}")
    e(f"v_bfe_u32 v{U4}, v{V_LANE}, 3, 2")
    e(f"v_and_b32 v{U5}, 7, v{V_LANE}")
    e(f"v_lshrrev_b32 v{U6}, 1, v{V_WV}")
    e(f"v_lshl_add_u32 v{U6}, v{U6}, 2, v{U4}")
    e(f"v_mul_u32_u24 v{VRD}, 384, v{U6}")
    e(f"v_add_u32 v{VRD}, v{VRD}, v{T1}")
    e(f"v_and_b32 v{U6}, 1, v{V_WV}")
    e(f"v_lshl_add_u32 v{VRD}, v{U6}, 7, v{VRD}")
    e(f"v_lshl_add_u32 v{VRD}, v{U5}, 4, v{VRD}")
    e(f"v_lshrrev_b32 v{U6}, 1, v{V_H}")
    e(f"v_lshlrev_b32 v{VE}, 4, v{U6}")
    e(f"v_and_b32 v{U6}, 1, v{V_H}")
    e(f"v_lshl_add_u32 v{VE}, v{U6}, 2, v{VE}")
    e(f"v_lshl_add_u32 v{VST}, v{V_WV}, 5, v{VE}")
    e(f"v_lshlrev_b32 v{VHB8}, 4, v{T0}")
    e(f"v_and_b32 v{U6}, 31, v{V_LANE}")
    e(f"v_lshlrev_b32 v{VSO2}, 4, v{U6}")
    e(f"v_lshl_add_u32 v{VSO2}, v{T0}, 3, v{VSO2}")
    e(f"v_lshlrev_b32 v{VL16}, 4, v{V_LANE}")
    e(f"v_lshl_add_u32 v{VWW}, v{V_WV}, 9, v{VSO2}")
    e(f"v_lshl_add_u32 v{VWR}, v{V_WV}, 9, v{VHB8}")
    e(f"v_lshl_add_u32 v{VOUT}, v{U5}, 2, v{U4}")
    e(f"v_lshlrev_b32 v{VOUT}, 1, v{VOUT}")
    e(f"v_lshl_add_u32 v{VOUT}, v{T0}, 9, v{VOUT}")
    e(f"v_lshl_add_u32 v{VEL}, v{U6}, 5, v{VHB8}")
    e(f"v_mov_b32 v{VZERO}, 0")
    e(f"s_lshl_b32 s{S_T0}, s{S_KVH}, 2")
    e(f"s_add_u32 s{S_T0}, s{S_T0}, s{S_WAVE}")
    e(f"s_lshl_b32 s{S_REC}, s{S_T0}, 14")
    e(f"s_lshl_b32 s{S_OWN}, s{S_SPLIT}, 9")
    e(f"s_add_u32 s{S_OWN}, s{S_OWN}, s{S_REC}")
    e(f"s_lshl_b32 s{S_RECE}, s{S_KVH}, 10")
    e(f"s_add_u32 s{S_RECE}, s{S_RECE}, {WS_E}")
    e(f"s_lshl_b32 s{S_OWNE}, s{S_SPLIT}, 5")
    e(f"s_add_u32 s{S_OWNE}, s{S_OWNE}, s{S_RECE}")
    e(f"s_lshl_b32 s{S_CTR}, s{S_KVH}, 5")
    e(f"s_lshl_b32 s{S_T0}, s{S_WAVE}, 6")
    e(f"s_add_u32 s{S_QO}, s{S_QO}, s{S_T0}")
    e("s_waitcnt lgkmcnt(0)")
    e("s_barrier")
    e(f"ds_read_b128 {vr(V_D,4)}, v{T3} offset:{L_ML}")
    e("s_waitcnt lgkmcnt(0)")
    g.c("lanes of unused MFMA columns keep their own max in the mix so their exps stay <= 1")
    e(f"v_max3_f32 v{V_M}, v{V_M}, v{V_D}, v{V_D+1}")
    e(f"v_max3_f32 v{V_M}, v{V_M}, v{V_D+2}, v{V_D+3}")
    e(f"v_mul_f32 v{V_M}, s{S_C}, v{V_M}")
    e(f"s_cmp_lg_u32 s{S_WAVE}, 0")
    e("s_cbranch_scc1 L_v")
    e("s_mov_b64 exec, 0xf")
    e(f"ds_write_b32 v{VE}, v{V_M} offset:{L_FLAG+16}")
    e("s_mov_b64 exec, -1")

    g.c("---- V phase")
    g.lab("L_v")
    bodyV(1, "V")
    e(f"s_cmp_ge_u32 s{S_R}, s{S_N}")
    e("s_cbranch_scc1 L_vt")
    bodyV(0, "V")
    e("s_branch L_v")
    g.lab("L_vt")
    bodyV(0, None)

    def last(what):
        if what == "stats":
            e(f"v_mov_b32 v{T1}, v{V_L}")
            g.nop(2)
            e(f"v_permlane16_swap_b32 v{V_L}, v{T1}")
            e(f"v_add_f32 v{V_L}, v{V_L}, v{T1}")
            e(f"v_mov_b32 v{T1}, v{V_L}")
            g.nop(2)
            e(f"v_permlane32_swap_b32 v{V_L}, v{T1}")
            e(f"v_add_f32 v{V_L}, v{V_L}, v{T1}")
            e(f"v_permlane32_swap_b32 v{V_Z}, v{V_Z+2}")
            e(f"v_permlane32_swap_b32 v{V_Z+1}, v{V_Z+3}")
            e(f"v_lshl_add_u32 v{T0}, v{V_WV}, 5, v{VHB8}")
            e(f"v_pk_add_f32 {vr(V_Z,2)}, {vr(V_Z,2)}, {vr(V_Z+2,2)}")
            e("s_mov_b64 exec, 0xf")
            e(f"ds_write_b32 v{VST}, v{V_L} offset:{L_ST}")
            e("s_mov_b32 exec_lo, 1")
            e("s_mov_b32 exec_hi, 1")
            e(f"ds_write_b64 v{T0}, {vr(V_Z,2)} offset:{L_ST+8}")
            e("s_mov_b64 exec, -1")
            e(f"ds_read_b64 {vr(V_D,2)}, v{VHB8} offset:{L_FLAG+16}")
        else:
            e("s_mov_b32 exec_lo, 0xffff")
            e("s_mov_b32 exec_hi, 0xffff")
            for blk in range(4):
                e(f"ds_write_b128 v{VAW}, {vr(V_ACC+4*blk,4)} offset:{L_O+blk*384}")
            e("s_mov_b64 exec, -1")

    bodyV(1, None, younger=0, last=last)

    g.c("---- workgroup reduce, publish partial (write-through), arrive")
    tst()
    if stamp:
        e(f"s_memrealtime {sr(S_TS+2,2)}")
    e("s_mov_b32 exec_lo, 0xffff")
    e("s_mov_b32 exec_hi, 0xffff")
    g.nop(4)
    for blk in range(4, 8):
        e(f"ds_write_b128 v{VAW}, {vr(V_ACC+4*blk,4)} offset:{L_O+blk*384}")
    e("s_mov_b64 exec, -1")
    e("s_waitcnt lgkmcnt(0)")
    e("s_barrier")
    tst()
    RB = V_BUF
    SB = V_BUF + 16
    for w in range(4):
        e(f"ds_read_b128 {vr(RB+4*w,4)}, v{VRD} offset:{L_O+w*6144}")
    for w in range(4):
        e(f"ds_read_b128 {vr(SB+4*w,4)}, v{VHB8} offset:{L_ST+w*32}")
    e("s_waitcnt lgkmcnt(6)")
    e(f"v_pk_add_f32 {vr(RB,2)}, {vr(RB,2)}, {vr(RB+4,2)}")
    e(f"v_pk_add_f32 {vr(RB+2,2)}, {vr(RB+2,2)}, {vr(RB+6,2)}")
    e("s_waitcnt lgkmcnt(4)")
    e(f"v_pk_add_f32 {vr(RB+8,2)}, {vr(RB+8,2)}, {vr(RB+12,2)}")
    e(f"v_pk_add_f32 {vr(RB+10,2)}, {vr(RB+10,2)}, {vr(RB+14,2)}")
    e(f"v_pk_add_f32 {vr(RB,2)}, {vr(RB,2)}, {vr(RB+8,2)}")
    e(f"v_pk_add_f32 {vr(RB+2,2)}, {vr(RB+2,2)}, {vr(RB+10,2)}")
    e("s_waitcnt lgkmcnt(0)")
    e(f"v_pk_add_f32 {vr(SB+2,2)}, {vr(SB+2,2)}, {vr(SB+6,2)}")
    e(f"v_pk_add_f32 {vr(SB+10,2)}, {vr(SB+10,2)}, {vr(SB+14,2)}")
    e(f"v_permlane32_swap_b32 v{RB}, v{RB+2}")
    e(f"v_permlane32_swap_b32 v{RB+1}, v{RB+3}")
    e(f"v_pk_add_f32 {vr(SB+2,2)}, {vr(SB+2,2)}, {vr(SB+10,2)}")
    e(f"v_pk_add_f32 {vr(RB,2)}, {vr(RB,2)}, {vr(RB+2,2)}")
    e(f"v_pk_add_f32 {vr(SB,2)}, {vr(SB,2)}, {vr(SB+4,2)}")
    e(f"v_pk_add_f32 {vr(RB,2)}, {vr(RB,2)}, {vr(SB+2,2)} neg_lo:[0,1] neg_hi:[0,1]")
    g.issued = 0
    g.known_done = 0
    g.vm(f"buffer_store_dwordx2 {vr(RB,2)}, v{VSO2}, {sr(R_WS,4)}, s{S_OWN} offen sc1")
    e(f"s_cmp_lg_u32 s{S_WAVE}, 0")
    e("s_cbranch_scc1 L_noL")
    e(f"v_pk_add_f32 {vr(SB+8,2)}, {vr(SB+8,2)}, {vr(SB+12,2)}")
    e("s_mov_b32 exec_lo, 1")
    e("s_mov_b32 exec_hi, 1")
    e(f"v_pk_add_f32 {vr(V_D+2,2)}, {vr(SB,2)}, {vr(SB+8,2)}")
    g.vm(f"buffer_store_dwordx4 {vr(V_D,4)}, v{VHB8}, {sr(R_WS,4)}, s{S_OWNE} offen sc1")
    e("s_mov_b64 exec, 1")
    e(f"v_mov_b32 v{T1}, 1")
    g.lab("L_noL")
    tst()
    e("s_waitcnt vmcnt(0)")
    g.known_done = g.issued
    tst()
    e("s_barrier")
    tst()
    e(f"s_cmp_lg_u32 s{S_WAVE}, 0")
    e("s_cbranch_scc1 L_skip_atomic")
    g.vm(f"buffer_atomic_add v{T1}, v{VZERO}, {sr(R_DBG,4)}, s{S_CTR} offen sc0")
    e("s_waitcnt vmcnt(0)")
    g.known_done = g.issued
    e(f"ds_write_b32 v{VZERO}, v{T1} offset:{L_FLAG}")
    e("s_mov_b64 exec, -1")
    e("s_waitcnt lgkmcnt(0)")
    g.lab("L_skip_atomic")
    tst()
    e("s_barrier")
    e(f"ds_read_b32 v{T1}, v{VZERO} offset:{L_FLAG}")
    e("s_waitcnt lgkmcnt(0)")
    e(f"v_readfirstlane_b32 s{S_T0}, v{T1}")
    g.nop(1)
    if stamp:
        e(f"s_memrealtime {sr(S_TS+4,2)}")
        e("s_waitcnt lgkmcnt(0)")
        e(f"s_lshl_b32 s{S_T1}, s2, 2")
        e(f"s_add_u32 s{S_T1}, s{S_T1}, s{S_WAVE}")
        e(f"s_lshl_b32 s{S_T1}, s{S_T1}, 5")
        e(f"s_add_u32 s{S_T1}, s{S_T1}, 0x100000")
        e(f"s_getreg_b32 s{S_TS+6}, hwreg(HW_REG_XCC_ID)")
        e(f"s_getreg_b32 s{S_TS+7}, hwreg(HW_REG_HW_ID)")
        e(f"s_and_b32 s{S_TS+6}, s{S_TS+6}, 15")
        e(f"s_lshl_b32 s{S_TS+7}, s{S_TS+7}, 4")
        e(f"s_or_b32 s{S_TS+6}, s{S_TS+6}, s{S_TS+7}")
        XS = V_ACC + 16
        for k in range(4):
            e(f"v_mov_b32 v{XS+k}, s{S_TS+2*k}")
        e(f"v_mov_b32 v{XS+4}, s{S_R}")
        e(f"v_mov_b32 v{XS+5}, s{S_TS+8}")
        e(f"v_mov_b32 v{XS+6}, s{S_TS}")
        e(f"v_mov_b32 v{XS+7}, s{S_TS}")
        e("s_mov_b64 exec, 1")
        g.vm(f"buffer_store_dwordx4 {vr(XS,4)}, v{VZERO}, {sr(R_WS,4)}, s{S_T1} offen")
        g.vm(f"buffer_store_dwordx4 {vr(XS+4,4)}, v{VZERO}, {sr(R_WS,4)}, s{S_T1} offen offset:16")
        e("s_mov_b64 exec, -1")
    e(f"s_cmp_lg_u32 s{S_T0}, 31")
    e("s_cbranch_scc1 L_end")

    g.c("---- final merge by the last arriving workgroup of this kv head (wave = 32-column block)")
    tst()
    OB = V_BUF
    WB = V_BUF + 64
    EB = V_ACC
    MX = V_ACC + 4
    M2 = V_ACC + 6
    N0 = V_ACC + 8
    N1 = V_ACC + 12
    ie = g.vm(f"buffer_load_dwordx4 {vr(EB,4)}, v{VEL}, {sr(R_WS,4)}, s{S_RECE} offen sc1")
    io = []

    def ldO(k):
        if k and k % 4 == 0:
            e(f"s_add_u32 s{S_REC}, s{S_REC}, 4096")
        io.append(g.vm(f"buffer_load_dwordx4 {vr(OB+4*k,4)}, v{VL16}, {sr(R_WS,4)}, s{S_REC} offen offset:{(k&3)*1024} sc1"))

    def reduce32(op, a, src=None):
        first = True
        for ctl in ("quad_perm:[1,0,3,2]", "quad_perm:[2,3,0,1]", "row_ror:4", "row_ror:8"):
            for r in range(2):
                sreg = (src + r) if (first and src is not None) else (a + r)
                e(f"v_{op}_f32_dpp v{a+r}, v{sreg}, v{sreg} {ctl} row_mask:0xf bank_mask:0xf")
            g.nop(1)
            first = False
        e(f"v_mov_b32 v{M2}, v{a}")
        e(f"v_mov_b32 v{M2+1}, v{a+1}")
        g.nop(1)
        e(f"v_permlane16_swap_b32 v{a}, v{M2}")
        e(f"v_permlane16_swap_b32 v{a+1}, v{M2+1}")
        e(f"v_{op}_f32 v{a}, v{a}, v{M2}")
        e(f"v_{op}_f32 v{a+1}, v{a+1}, v{M2+1}")

    for k in range(NFIRST):
        ldO(k)
    tst()
    g.wait_vm(ie)
    tst()
    reduce32("max", MX, EB)
    e(f"v_sub_f32 v{EB}, v{EB}, v{MX}")
    e(f"v_sub_f32 v{EB+1}, v{EB+1}, v{MX+1}")
    e(f"v_exp_f32 v{EB}, v{EB}")
    e(f"v_exp_f32 v{EB+1}, v{EB+1}")
    g.nop(1)
    e(f"ds_write_b64 v{VWW}, {vr(EB,2)} offset:{L_W}")
    e(f"v_pk_mul_f32 {vr(EB+2,2)}, {vr(EB+2,2)}, {vr(EB,2)}")
    for k in range(8):
        e(f"ds_read_b128 {vr(WB+4*k,4)}, v{VWR} offset:{L_W+k*32}")
    for k in range(NFIRST, 16):
        ldO(k)
    tst()
    reduce32("add", EB + 2)
    e(f"v_rcp_f32 v{EB+2}, v{EB+2}")
    e(f"v_rcp_f32 v{EB+3}, v{EB+3}")
    e("s_waitcnt lgkmcnt(0)")
    for k in range(16):
        g.wait_vm(io[k])
        if k == 8:
            e("s_waitcnt lgkmcnt(0)")
        N = N0 if k % 2 == 0 else N1
        Wk = WB + 4 * (k & 7)
        for hh in (0, 2):
            if k < 2:
                e(f"v_pk_mul_f32 {vr(N+hh,2)}, {vr(Wk+hh,2)}, {vr(OB+4*k+hh,2)}")
            else:
                e(f"v_pk_fma_f32 {vr(N+hh,2)}, {vr(Wk+hh,2)}, {vr(OB+4*k+hh,2)}, {vr(N+hh,2)}")
        if k < 8:
            e(f"ds_read_b128 {vr(Wk,4)}, v{VWR} offset:{L_W+(k+8)*32}")
    tst()
    e(f"v_pk_add_f32 {vr(N0,2)}, {vr(N0,2)}, {vr(N1,2)}")
    e(f"v_pk_add_f32 {vr(N0+2,2)}, {vr(N0+2,2)}, {vr(N1+2,2)}")
    g.nop(2)
    e(f"v_permlane32_swap_b32 v{N0}, v{N0+2}")
    e(f"v_permlane32_swap_b32 v{N0+1}, v{N0+3}")
    e(f"v_pk_add_f32 {vr(N0,2)}, {vr(N0,2)}, {vr(N0+2,2)}")
    e(f"v_pk_mul_f32 {vr(N0,2)}, {vr(N0,2)}, {vr(EB+2,2)}")
    e(f"v_cvt_pk_bf16_f32 v{N0}, v{N0}, v{N0+1}")
    g.vm(f"buffer_store_short v{N0}, v{VOUT}, {sr(R_OUT,4)}, s{S_QO} offen")
    g.vm(f"buffer_store_short_d16_hi v{N0}, v{VOUT}, {sr(R_OUT,4)}, s{S_QO} offen offset:256")
    if tail:
        tst()
        e("s_waitcnt vmcnt(0)")
        tst()
        e(f"s_lshl_b32 s{S_T1}, s{S_KVH}, 2")
        e(f"s_add_u32 s{S_T1}, s{S_T1}, s{S_WAVE}")
        e(f"s_lshl_b32 s{S_T1}, s{S_T1}, 6")
        e(f"s_add_u32 s{S_T1}, s{S_T1}, 0x300000")
        for k in range(16):
            e(f"v_mov_b32 v{V_BUF+k}, v{V_TSV+min(k, tcount[0]-1)}")
        e("s_mov_b64 exec, 1")
        for k in range(4):
            e(f"buffer_store_dwordx4 {vr(V_BUF+4*k,4)}, v{VZERO}, {sr(R_WS,4)}, s{S_T1} offen offset:{16*k}")
    if dbgtime or stamp:
        e(f"s_memrealtime {sr(S_TS+2,2)}")
        e("s_waitcnt lgkmcnt(0)")
        if dbgtime:
            e(f"s_sub_u32 s{S_T1}, s{S_TS+2}, s{S_TS}")
        else:
            e(f"s_mov_b32 s{S_T1}, s{S_TS+2}")
        e(f"v_mov_b32 v{T0}, s{S_T1}")
        e(f"s_lshl_b32 s{S_T2}, s{S_KVH}, 3")
        e(f"s_add_u32 s{S_T2}, s{S_T2}, 4")
        e("s_mov_b64 exec, 1")
        e(f"buffer_store_dword v{T0}, v{VZERO}, {sr(R_DBG,4)}, s{S_T2} offen")
    g.lab("L_end")
    e("s_endpgm")

    body_t = "\n".join(g.L)
    nv = (NV + 7) // 8 * 8
    text = HEADER + f"; @launch grid=(256,1,1) block=(256,1,1) lds={LDS}\n" + DOC
    text += f""".amdgcn_target "amdgcn-amd-amdhsa--gfx950"
.text
.globl {NAME}_kernel
.p2align 8
.type {NAME}_kernel,@function
{NAME}_kernel:
{body_t}
.section .rodata,"a"
.p2align 6
.amdhsa_kernel {NAME}_kernel
  .amdhsa_next_free_vgpr {nv}
  .amdhsa_next_free_sgpr {NSGPR}
  .amdhsa_accum_offset {nv}
  .amdhsa_group_segment_fixed_size 0
  .amdhsa_kernarg_size 80
  .amdhsa_user_sgpr_count 2
  .amdhsa_user_sgpr_kernarg_segment_ptr 1
  .amdhsa_system_sgpr_workgroup_id_x 1
  .amdhsa_float_denorm_mode_32 3
.end_amdhsa_kernel
"""
    return text


if __name__ == "__main__":
    ap = argparse.ArgumentParser()
    ap.add_argument("-o", default=f"cdna_kernels/{NAME}.s")
    ap.add_argument("--pol", default="nt")
    ap.add_argument("--NO", type=int, default=15)
    ap.add_argument("--PHI", type=int, default=16)
    ap.add_argument("--PHIB", type=int, default=64)
    ap.add_argument("--stamp", action="store_true")
    ap.add_argument("--dbgtime", action="store_true")
    ap.add_argument("--tail", action="store_true")
    ap.add_argument("--NFIRST", type=int, default=10)
    ap.add_argument("--lay", type=int, default=0)
    ap.add_argument("--vspol", default="nt")
    ap.add_argument("--vsat", default="kt")
    ap.add_argument("--korder", type=int, default=0)
    ap.add_argument("--inv", type=int, default=0)
    ap.add_argument("--adapt", type=int, default=0)
    ap.add_argument("--RL", type=int, default=7)
    a = ap.parse_args()
    open(a.o, "w").write(gen(pol=a.pol, NO=a.NO, PHI=a.PHI, PHIB=a.PHIB, stamp=a.stamp, dbgtime=a.dbgtime, tail=a.tail,
                             NFIRST=a.NFIRST, lay=a.lay, vspol=a.vspol, vsat=a.vsat, korder=a.korder, inv=a.inv, adapt=a.adapt, RL=a.RL))
    print("wrote", a.o)
```
